```python
import torch

def _softmax(x, axis=-1):
    return torch.softmax(x, dim=axis)
def _gelu(x):
    return torch.nn.functional.gelu(x, approximate="tanh")
def _silu(x):
    return torch.nn.functional.silu(x)
def _sigmoid(x):
    return torch.sigmoid(x)
def _layernorm(x, axis=-1, eps=1e-5):
    m = x.mean(dim=axis, keepdim=True)
    v = x.var(dim=axis, keepdim=True, unbiased=False)
    return (x - m) / torch.sqrt(v + eps)
def _scatter_add(tgt, idx, src, axis=0):
    return tgt.clone().index_add_(axis, idx, src)
def _segment_sum(src, seg, n):
    out = torch.zeros((n,) + src.shape[1:], dtype=src.dtype)
    return out.index_add_(0, seg, src)
def _pad(x, pw):
    flat = tuple(v for pair in reversed(pw) for v in pair)
    return torch.nn.functional.pad(x, flat)

kernel_name = 'recurrent_scan__linear_attn_block__glu_gated_swiglu__prompt'

def setup_inputs():

    _w = (lambda a: (lambda t: t.to(torch.bfloat16) if t.is_floating_point() else t)(torch.as_tensor(a)))
    def _A_setup():
        B, S, D = 1, 2048, 640
        return {
            "x": _w((lambda *s: torch.randn(*s, dtype=torch.bfloat16) * 0.05)(B, S, D)),
            "wqkv": _w((lambda *s: torch.randn(*s, dtype=torch.bfloat16) * 0.8)(D, 3 * D)),
            "wo": _w((lambda *s: torch.randn(*s, dtype=torch.bfloat16) * 0.8)(D, D)),
        }
    _A_in = _A_setup()

    def _B_setup():
        B, S, D, F = 1, 2048, 640, 1728
        return {
            "x": _w((lambda *s: torch.randn(*s, dtype=torch.bfloat16) * 0.05)(B, S, D)),
            "w1": _w((lambda *s: torch.randn(*s, dtype=torch.bfloat16) * 0.2)(D, F) * (2.0 / D) ** 0.5),
            "w3": _w((lambda *s: torch.randn(*s, dtype=torch.bfloat16) * 0.2)(D, F) * (2.0 / D) ** 0.5),
            "w2": _w((lambda *s: torch.randn(*s, dtype=torch.bfloat16) * 0.2)(F, D) * (2.0 / F) ** 0.5),
        }
    _B_in = _B_setup()

    return {
        "A_x": _A_in["x"],
        "A_wqkv": _A_in["wqkv"],
        "A_wo": _A_in["wo"],
        "B_x": _B_in["x"],
        "B_w1": _B_in["w1"],
        "B_w3": _B_in["w3"],
        "B_w2": _B_in["w2"],
    }

def reference(A_x, A_wqkv, A_wo, B_x, B_w1, B_w3, B_w2):
    def _A_ref(x, wqkv, wo):
        B, S, D = x.shape
        H = 32; Dh = D // H
        qkv = (lambda x, *d: x.permute(*d))((x @ wqkv).reshape(B, S, 3, H, Dh), 2, 0, 3, 1, 4)
        q, k, v = qkv[0], qkv[1], qkv[2]
        phi = lambda t: torch.where(t > 0, t + 1, torch.exp(t)) + 1e-6
        pq, pk = phi(q), phi(k)
        kv = torch.einsum("bhsd,bhse->bhde", pk, v)
        z = torch.einsum("bhsd->bhd", pk)
        num = torch.einsum("bhqd,bhde->bhqe", pq, kv)
        den = torch.einsum("bhqd,bhd->bhq", pq, z)[..., None] + 1e-6
        o = num / den
        return (lambda x, *d: x.permute(*d))(o, 0, 2, 1, 3).reshape(B, S, D) @ wo

    def _B_ref(x, w1, w3, w2):
        gate = torch.einsum("bsd,df->bsf", x, w1)
        up = torch.einsum("bsd,df->bsf", x, w3)
        h = _silu(gate) * up
        out = torch.einsum("bsf,fd->bsd", h, w2)
        return out

    x = A_x
    xn = _layernorm(x, axis=-1)
    s = _A_ref(xn, A_wqkv, A_wo)
    g = _silu(_B_ref(xn, B_w1, B_w3, B_w2))
    return x + s * g
```

```python
import sys

NAME = "recurrent_scan__linear_attn_block__glu_gated_swiglu__prompt"
S, D, F = 2048, 640, 1728

HB_OFF   = 0
HB_SZ    = 32 * 54 * 4096
PQ_OFF   = HB_OFF + HB_SZ
PQ_SZ    = 32 * 20 * 4096
W2F_OFF  = PQ_OFF + PQ_SZ
W2F_SZ   = 8 * 54 * 5120
WOF_OFF  = W2F_OFF + W2F_SZ
WOF_SZ   = 32 * 8 * 5120
MF_OFF   = WOF_OFF + WOF_SZ
MF_SZ    = 8 * 20 * 5120
KVP_OFF  = MF_OFF + MF_SZ
KVP_SZ   = 8 * 32 * 1920
ZF_OFF   = KVP_OFF + KVP_SZ
ZF_SZ    = 8 * 1280
FL_OFF   = ZF_OFF + ZF_SZ
FL_SZ    = 8 * 128
WS_USED  = FL_OFF + FL_SZ
OOB      = 0x40000000

LOG2E = 0x3fb8aa3b
EPS6  = 0x358637bd
EPS5  = 0x3727c5ac
INV640 = 0x3acccccd
ONES_BF = 0x3f803f80

OPT = dict(k1map="4x8", k2map="8x4", stamp=0, prefetch_code=1)
for a in sys.argv[2:]:
    k, v = a.split("=")
    OPT[k] = int(v) if v.lstrip("-").isdigit() else v

class Asm:
    def __init__(self):
        self.L = []
    def __call__(self, s):
        for line in s.strip("\n").split("\n"):
            self.L.append("    " + line.strip())
    def label(self, l):
        self.L.append(l + ":")
    def raw(self, s):
        self.L.append(s)
    def text(self):
        return "\n".join(self.L) + "\n"

def vr(b, n):
    return f"v[{b}:{b+n-1}]" if n > 1 else f"v{b}"
def ar(b, n):
    return f"a[{b}:{b+n-1}]" if n > 1 else f"a{b}"

def srd(a, d, lo, hi, size):
    a(f"s_mov_b32 s{d}, s{lo}")
    a(f"s_and_b32 s{d+1}, s{hi}, 0xffff")
    a(f"s_mov_b32 s{d+2}, {size}")
    a(f"s_mov_b32 s{d+3}, 0x20000")

def stamp(a, slot, sbase):
    if not OPT["stamp"]:
        return
    va, vb = sbase
    a(f"s_memrealtime s[96:97]")
    a(f"s_waitcnt lgkmcnt(0)")
    a(f"v_mov_b32 v{va}, s96")
    a(f"s_lshl_b32 s98, s2, 5")
    a(f"s_lshl_b32 s99, s20, 2")
    a(f"s_add_u32 s98, s98, s99")
    a(f"s_add_u32 s98, s98, {WS_USED + slot * 8192}")
    a(f"v_mov_b32 v{vb}, s98")
    a(f"buffer_store_dword v{va}, v{vb}, s[92:95], 0 offen")

K1_LDS = 122880
SLOT = 24576
CS_LDS = 98304
ST_LDS = 98304 + 1024
V_LANE, V_XOFF, V_D0, V_R0, V_RC = 1, 2, 3, 6, 9
V_SUM, V_SQ, V_CS = 10, 12, 14
V_T = 16
V_X = 64
V_F = [96, 124]
V_ACC = 160

def k1_mainloop(a, kind, tag):
    nu = 5 if kind == "q" else 6
    pitch = 192 if kind == "ffn" else 320
    wpitch = 3456 if kind == "ffn" else 3840
    def rd_addr(u):
        if kind == "ffn":
            return V_R0, (u & 1) * 12288 + 64 * (u >> 1)
        if kind == "q":
            return V_R0, 16 * u
        return V_R0 + (u % 3), 160 * (u // 3)
    def reads(u, fb, j, stoff):
        out = []
        if u < nu:
            av, off = rd_addr(u)
            dst = fb + 4 * u
        else:
            av, off = V_RC, 0
            dst = fb + 24
        for sec in range(2):
            o = stoff + off + (16 * j + 4 * sec) * pitch
            assert o < 65536
            out.append(f"ds_read_b64_tr_b16 {vr(dst + 2 * sec, 2)}, v{av} offset:{o}")
        return out
    def dma(i, par):
        L = []
        if par == 0:
            L.append(f"s_add_u32 m0, s33, s{28+i}")
        else:
            L.append(f"s_add_u32 m0, s34, s{28+i}")
        L.append("s_nop 0")
        L.append(f"buffer_load_dwordx4 v{V_D0+i}, s[12:15], s24 offen lds")
        return L
    naddr = [V_R0, V_RC] if kind != "kv" else [V_R0, V_R0 + 1, V_R0 + 2, V_RC]

    def dma_pro(stage):
        a(f"s_mov_b32 s24, {stage * 64 * wpitch}")
        for i in range(3):
            a(f"s_add_u32 m0, s{28+i}, {stage * SLOT}")
            a("s_nop 0")
            a(f"buffer_load_dwordx4 v{V_D0+i}, s[12:15], s24 offen lds")
    def xl(stage, j):
        a(f"buffer_load_dwordx4 {vr(V_X + 16 * (stage & 1) + 4 * j, 4)}, v{V_XOFF}, s[8:11], 0 offen offset:{stage * 128 + 32 * j}")
    dma_pro(0)
    for j in range(3): xl(0, j)
    dma_pro(1)
    xl(0, 3)
    for j in range(3): xl(1, j)
    dma_pro(2)
    xl(1, 3)
    for r in range(16 * nu):
        a(f"v_mov_b32 v{V_ACC + r}, 0")
    for r in range(6):
        a(f"v_mov_b32 v{V_SUM + r}, 0")
    a(f"s_mov_b32 s23, 256")
    a(f"s_mov_b32 s24, {3 * 64 * wpitch}")
    a(f"s_mov_b32 s25, 0")
    a(f"s_mov_b32 s26, {2 * SLOT}")
    a(f"s_mov_b32 s27, 0")
    a("s_waitcnt vmcnt(14)")
    a("s_barrier")
    for u in list(range(nu)) + [6]:
        for l in reads(u, V_F[0], 0, 0): a(l)
    a.raw(".p2align 4")
    a.label(f"L_k1_{tag}_loop")
    a(f"s_add_u32 s33, s25, s26")
    a(f"s_add_u32 s33, s33, {SLOT}")
    a(f"s_mov_b32 s34, s25")
    for par in range(2):
        for j in range(4):
            cur, nxt = V_F[j & 1], V_F[(j + 1) & 1]
            xf = V_X + 16 * par + 4 * j
            a(f"s_waitcnt vmcnt({10 if j == 3 else 13}) lgkmcnt(0)")
            extra = []
            if j == 3:
                a("s_barrier")
                for i in range(3): extra.append(dma(i, par))
                if par == 1:
                    for av in naddr:
                        a(f"v_add_u32 v{av}, s26, v{av}")
            if j == 3:
                nj, stoff = 0, (SLOT if par == 0 else 0)
            else:
                nj, stoff = j + 1, par * SLOT
            dots = []
            for r in range(4):
                dots.append(f"v_dot2_f32_bf16 v{V_SUM + (r & 1)}, v{xf + r}, s31, v{V_SUM + (r & 1)}")
                dots.append(f"v_dot2_f32_bf16 v{V_SQ + (r & 1)}, v{xf + r}, v{xf + r}, v{V_SQ + (r & 1)}")
            for r in range(4):
                dots.append(f"v_dot2_f32_bf16 v{V_CS + (r & 1)}, v{cur + 24 + r}, s31, v{V_CS + (r & 1)}")
            for u in range(nu):
                acc = vr(V_ACC + 16 * u, 16)
                w, x = vr(cur + 4 * u, 4), vr(xf, 4)
                if kind == "kv":
                    a(f"v_mfma_f32_32x32x16_bf16 {acc}, {x}, {w}, {acc}")
                else:
                    a(f"v_mfma_f32_32x32x16_bf16 {acc}, {w}, {x}, {acc}")
                for l in reads(u, nxt, nj, stoff): a(l)
                if u == nu - 1:
                    for l in reads(6, nxt, nj, stoff): a(l)
                k = 2 if u < nu - 1 else len(dots)
                for l in dots[:k]: a(l)
                dots = dots[k:]
                if extra:
                    for l in extra.pop(0): a(l)
            a(f"buffer_load_dwordx4 {vr(xf, 4)}, v{V_XOFF}, s[8:11], s23 offen offset:{32 * j}")
            if j == 3:
                a(f"s_add_u32 s23, s23, 128")
                a(f"s_cmp_ge_u32 s23, 1280")
                a(f"s_cselect_b32 s23, {OOB}, s23")
                a(f"s_add_u32 s24, s24, {64 * wpitch}")
    a("s_add_u32 s25, s25, s26")
    a("s_sub_u32 s26, 0, s26")
    a("s_add_u32 s27, s27, 1")
    a("s_cmp_lt_u32 s27, 5")
    a(f"s_cbranch_scc1 L_k1_{tag}_loop")
    a("s_waitcnt vmcnt(0) lgkmcnt(0)")
    T = V_T
    a(f"v_add_f32 v{V_SUM}, v{V_SUM}, v{V_SUM+1}")
    a(f"v_add_f32 v{V_SQ}, v{V_SQ}, v{V_SQ+1}")
    a(f"v_add_f32 v{V_CS}, v{V_CS}, v{V_CS+1}")
    a(f"v_mov_b32 v{V_SUM+1}, v{V_SUM}")
    a(f"v_mov_b32 v{V_SQ+1}, v{V_SQ}")
    a(f"v_mov_b32 v{V_CS+1}, v{V_CS}")
    a("s_nop 1")
    a(f"v_permlane32_swap_b32 v{V_SUM}, v{V_SUM+1}")
    a(f"v_permlane32_swap_b32 v{V_SQ}, v{V_SQ+1}")
    a(f"v_permlane32_swap_b32 v{V_CS}, v{V_CS+1}")
    a("s_nop 1")
    a(f"v_add_f32 v{V_SUM}, v{V_SUM}, v{V_SUM+1}")
    a(f"v_add_f32 v{V_SQ}, v{V_SQ}, v{V_SQ+1}")
    a(f"v_add_f32 v{V_CS}, v{V_CS}, v{V_CS+1}")
    a(f"v_and_b32 v{T}, 31, v{V_LANE}")
    a(f"s_lshl_b32 s32, s20, 7")
    a(f"s_add_u32 s32, s32, {CS_LDS}")
    a(f"v_lshl_add_u32 v{T+1}, v{T}, 2, s32")
    a(f"ds_write_b32 v{T+1}, v{V_CS}")
    a(f"v_mul_f32 v{V_SUM}, {hex(INV640)}, v{V_SUM}")
    a(f"v_mul_f32 v{V_SQ}, {hex(INV640)}, v{V_SQ}")
    a(f"v_fma_f32 v{V_SQ}, -v{V_SUM}, v{V_SUM}, v{V_SQ}")
    a(f"v_max_f32 v{V_SQ}, 0, v{V_SQ}")
    a(f"v_add_f32 v{V_SQ}, {hex(EPS5)}, v{V_SQ}")
    a(f"v_rsq_f32 v{V_SQ}, v{V_SQ}")
    a(f"v_sub_f32 v{V_SUM}, 0, v{V_SUM}")
    a("s_nop 0")

def k1_store_base(a, vdst, region, nt, tbase_mul):
    T = V_T
    a(f"s_lshl_b32 s32, s21, 2")
    a(f"s_lshr_b32 s35, s20, 1")
    a(f"s_add_u32 s32, s32, s35")
    a(f"s_mul_i32 s32, s32, {nt}")
    a(f"s_mul_i32 s35, s22, {tbase_mul}")
    a(f"s_add_u32 s32, s32, s35")
    a(f"s_lshl_b32 s32, s32, 2")
    a(f"s_and_b32 s35, s20, 1")
    a(f"s_lshl_b32 s35, s35, 1")
    a(f"s_add_u32 s32, s32, s35")
    a(f"s_lshl_b32 s32, s32, 10")
    a(f"s_add_u32 s32, s32, {region}")
    a(f"v_bfe_u32 v{T}, v{V_LANE}, 4, 1")
    a(f"v_lshlrev_b32 v{T}, 10, v{T}")
    a(f"v_lshrrev_b32 v{T+1}, 5, v{V_LANE}")
    a(f"v_lshl_add_u32 v{T}, v{T+1}, 8, v{T}")
    a(f"v_and_b32 v{T+1}, 15, v{V_LANE}")
    a(f"v_lshl_add_u32 v{T}, v{T+1}, 4, v{T}")
    a(f"v_add_u32 v{vdst}, s32, v{T}")

def k1_cs_addr(a, vdst):
    a(f"v_lshrrev_b32 v{vdst}, 5, v{V_LANE}")
    a(f"v_lshlrev_b32 v{vdst}, 4, v{vdst}")
    a(f"v_add_u32 v{vdst}, {CS_LDS}, v{vdst}")

def phi(a, t, tmp, rs, rsl):
    a(f"v_mul_f32 v{tmp}, {rsl}, v{t}")
    a(f"v_min_f32 v{tmp}, 0, v{tmp}")
    a(f"v_exp_f32 v{tmp}, v{tmp}")
    a(f"v_max_f32 v{t}, 0, v{t}")
    a(f"v_add_f32 v{tmp}, {hex(EPS6)}, v{tmp}")
    a(f"v_fma_f32 v{t}, v{t}, {rs}, v{tmp}")

def k1_epi_ffn(a):
    T = V_T
    VST, VCA, VC1, VR2 = T + 4, T + 5, T + 6, T + 7
    k1_store_base(a, VST, HB_OFF, 54, 3)
    k1_cs_addr(a, VCA)
    a(f"v_mul_f32 v{VC1}, {hex(LOG2E | 0x80000000)}, v{V_SQ}")
    a(f"v_mul_f32 v{VR2}, v{V_SQ}, v{V_SQ}")
    a("s_waitcnt lgkmcnt(0)")
    a("s_barrier")
    CB = 64
    for u in range(6):
        for g in range(4):
            a(f"ds_read_b128 {vr(CB + 16 * u + 4 * g, 4)}, v{VCA} offset:{u * 128 + g * 32}")
        if u % 2 == 1 and u < 5 and False:
            pass
    E = T + 8
    P = T + 24
    for p in range(3):
        a(f"s_waitcnt lgkmcnt({max(0, min(15, 16 - 8 * p))})" if p < 2 else "s_waitcnt lgkmcnt(0)")
        G, U = V_ACC + 32 * p, V_ACC + 32 * p + 16
        CG, CU = CB + 32 * p, CB + 32 * p + 16
        for r in range(16):
            a(f"v_fmac_f32 v{G+r}, v{V_SUM}, v{CG+r}")
        for r in range(16):
            a(f"v_mul_f32 v{E+r}, v{VC1}, v{G+r}")
        for r in range(16):
            a(f"v_exp_f32 v{E+r}, v{E+r}")
            a(f"v_fmac_f32 v{U+r}, v{V_SUM}, v{CU+r}")
        for r in range(16):
            a(f"v_add_f32 v{E+r}, 1.0, v{E+r}")
            a(f"v_mul_f32 v{G+r}, v{G+r}, v{U+r}")
        for r in range(16):
            a(f"v_rcp_f32 v{E+r}, v{E+r}")
            a(f"v_mul_f32 v{G+r}, v{VR2}, v{G+r}")
        for r in range(16):
            a(f"v_mul_f32 v{G+r}, v{G+r}, v{E+r}")
        for r in range(8):
            a(f"v_cvt_pk_bf16_f32 v{U+r}, v{G+2*r}, v{G+2*r+1}")
        a(f"s_mov_b32 s32, {p * 4096}")
        a(f"buffer_store_dwordx4 {vr(U, 4)}, v{VST}, s[16:19], s32 offen")
        a(f"buffer_store_dwordx4 {vr(U + 4, 4)}, v{VST}, s[16:19], s32 offen offset:512")

def k1_epi_q(a):
    T = V_T
    VST, VCA, VRL = T + 4, T + 5, T + 6
    k1_store_base(a, VST, PQ_OFF, 20, 5)
    k1_cs_addr(a, VCA)
    a(f"v_mul_f32 v{VRL}, {hex(LOG2E)}, v{V_SQ}")
    a("s_waitcnt lgkmcnt(0)")
    a("s_barrier")
    CB = 64
    for u in range(5):
        for g in range(4):
            a(f"ds_read_b128 {vr(CB + 16 * u + 4 * g, 4)}, v{VCA} offset:{u * 128 + g * 32}")
    E = T + 8
    for u in range(5):
        a(f"s_waitcnt lgkmcnt({min(15, 16 - 4 * u)})")
        G, C = V_ACC + 16 * u, CB + 16 * u
        for r in range(16):
            a(f"v_fmac_f32 v{G+r}, v{V_SUM}, v{C+r}")
        for r in range(16):
            a(f"v_mul_f32 v{E+r}, v{VRL}, v{G+r}")
            a(f"v_max_f32 v{G+r}, 0, v{G+r}")
        for r in range(16):
            a(f"v_min_f32 v{E+r}, 0, v{E+r}")
        for r in range(16):
            a(f"v_exp_f32 v{E+r}, v{E+r}")
        for r in range(16):
            a(f"v_add_f32 v{E+r}, {hex(EPS6)}, v{E+r}")
        for r in range(16):
            a(f"v_fma_f32 v{G+r}, v{G+r}, v{V_SQ}, v{E+r}")
        for r in range(8):
            a(f"v_cvt_pk_bf16_f32 v{C+r}, v{G+2*r}, v{G+2*r+1}")
        a(f"s_mov_b32 s32, {u * 4096}")
        a(f"buffer_store_dwordx4 {vr(C, 4)}, v{VST}, s[16:19], s32 offen")
        a(f"buffer_store_dwordx4 {vr(C + 4, 4)}, v{VST}, s[16:19], s32 offen offset:512")

def k1_epi_kv(a):
    T = V_T
    a(f"s_lshl_b32 s32, s20, 8")
    a(f"s_add_u32 s32, s32, {ST_LDS}")
    a(f"v_and_b32 v{T}, 31, v{V_LANE}")
    a(f"v_lshl_add_u32 v{T+1}, v{T}, 2, s32")
    a(f"ds_write_b32 v{T+1}, v{V_SUM}")
    a(f"ds_write_b32 v{T+1}, v{V_SQ} offset:128")
    a(f"v_lshrrev_b32 v{T+2}, 5, v{V_LANE}")
    a(f"v_lshl_add_u32 v{T+2}, v{T+2}, 4, s32")
    a(f"v_lshlrev_b32 v{T+3}, 2, v{T}")
    a(f"v_add_u32 v{T+3}, {CS_LDS}, v{T+3}")
    a("s_waitcnt lgkmcnt(0)")
    a("s_barrier")
    NM, RS, RL, CSV = 64, 80, 96, 112
    for g in range(4):
        a(f"ds_read_b128 {vr(NM + 4 * g, 4)}, v{T+2} offset:{g * 32}")
        a(f"ds_read_b128 {vr(RS + 4 * g, 4)}, v{T+2} offset:{128 + g * 32}")
    for u in range(6):
        a(f"ds_read_b32 v{CSV + u}, v{T+3} offset:{u * 128}")
    a(f"s_lshl_b32 s32, s20, 11")
    a(f"v_lshl_add_u32 v{T+4}, v{V_LANE}, 4, s32")
    a(f"v_mov_b32 v{T+5}, {hex(ONES_BF)}")
    a("s_waitcnt lgkmcnt(0)")
    for r in range(16):
        a(f"v_mul_f32 v{RL+r}, {hex(LOG2E)}, v{RS+r}")
    E, P = T + 8, 120
    padmask = {0: 0x00f00000, 1: 0x0000f000, 2: 0xf00000f0}
    for u in range(6):
        G = V_ACC + 16 * u
        PK = P + 8 * (u & 1)
        for r in range(16):
            a(f"v_fmac_f32 v{G+r}, v{NM+r}, v{CSV+u}")
        if u < 3:
            for r in range(16):
                a(f"v_mul_f32 v{E+r}, v{RL+r}, v{G+r}")
                a(f"v_max_f32 v{G+r}, 0, v{G+r}")
            for r in range(16):
                a(f"v_min_f32 v{E+r}, 0, v{E+r}")
            for r in range(16):
                a(f"v_exp_f32 v{E+r}, v{E+r}")
            for r in range(16):
                a(f"v_add_f32 v{E+r}, {hex(EPS6)}, v{E+r}")
            for r in range(16):
                a(f"v_fma_f32 v{G+r}, v{G+r}, v{RS+r}, v{E+r}")
        else:
            for r in range(16):
                a(f"v_mul_f32 v{G+r}, v{G+r}, v{RS+r}")
        for r in range(8):
            a(f"v_cvt_pk_bf16_f32 v{PK+r}, v{G+2*r}, v{G+2*r+1}")
        if u >= 3:
            m = padmask[u - 3]
            a(f"s_mov_b32 s36, {hex(m)}")
            a(f"s_mov_b32 s37, {hex(m)}")
            for r in range(8):
                a(f"v_cndmask_b32 v{PK+r}, v{PK+r}, v{T+5}, s[36:37]")
        off = u * 16384
        if off + 1024 < 65536:
            a(f"ds_write_b128 v{T+4}, {vr(PK, 4)} offset:{off}")
            a(f"ds_write_b128 v{T+4}, {vr(PK + 4, 4)} offset:{off + 1024}")
        else:
            a(f"v_add_u32 v{T+6}, {off}, v{T+4}")
            a(f"ds_write_b128 v{T+6}, {vr(PK, 4)}")
            a(f"ds_write_b128 v{T+6}, {vr(PK + 4, 4)} offset:1024")
    a("s_waitcnt lgkmcnt(0)")
    a("s_barrier")
    a("s_cmp_ge_u32 s20, 7")
    a("s_cbranch_scc1 L_k1_end")
    a("s_lshl_b32 s32, s20, 2")
    a("s_lshr_b32 s36, 0x2211100, s32")
    a("s_and_b32 s36, s36, 3")
    a("s_lshr_b32 s37, 0x2121010, s32")
    a("s_and_b32 s37, s37, 3")
    a("s_lshl_b32 s38, s36, 14")
    a("s_add_u32 s39, s37, 3")
    a("s_lshl_b32 s39, s39, 14")
    a(f"v_lshl_add_u32 v{T}, v{V_LANE}, 4, s38")
    a(f"v_lshl_add_u32 v{T+1}, v{V_LANE}, 4, s39")
    KB, VB, AC = 64, 128, 192
    for i in range(16):
        a(f"ds_read_b128 {vr(KB + 4 * i, 4)}, v{T} offset:{i * 1024}")
        a(f"ds_read_b128 {vr(VB + 4 * i, 4)}, v{T+1} offset:{i * 1024}")
        if i % 4 == 3:
            a("s_waitcnt lgkmcnt(0)")
            for k in range(i - 3, i + 1):
                src = "0" if k == 0 else vr(AC, 16)
                a(f"v_mfma_f32_32x32x16_bf16 {vr(AC, 16)}, {vr(VB + 4 * k, 4)}, {vr(KB + 4 * k, 4)}, {src}")
    a(f"v_and_b32 v{T}, 31, v{V_LANE}")
    a("s_lshl_b32 s38, s36, 5")
    a(f"v_add_u32 v{T}, s38, v{T}")
    a(f"v_mul_u32_u24 v{T+1}, 2731, v{T}")
    a(f"v_lshrrev_b32 v{T+1}, 16, v{T+1}")
    a(f"v_mul_u32_u24 v{T+2}, 24, v{T+1}")
    a(f"v_sub_u32 v{T+2}, v{T}, v{T+2}")
    a("s_lshl_b32 s38, s21, 5")
    a("s_lshl_b32 s39, s22, 2")
    a("s_add_u32 s38, s38, s39")
    a("s_mul_i32 s38, s38, 1920")
    a(f"s_add_u32 s38, s38, {KVP_OFF}")
    a(f"v_mul_u32_u24 v{T+3}, 1920, v{T+1}")
    a(f"v_mul_u32_u24 v{T+4}, 96, v{T+2}")
    a(f"v_add3_u32 v{T+3}, v{T+3}, v{T+4}, s38")
    a(f"v_mov_b32 v{T+4}, {hex(OOB)}")
    a(f"v_cmp_gt_u32 vcc, 20, v{T+2}")
    a("s_nop 1")
    a(f"v_cndmask_b32 v{T+3}, v{T+4}, v{T+3}, vcc")
    a(f"v_lshrrev_b32 v{T+5}, 5, v{V_LANE}")
    a(f"v_lshlrev_b32 v{T+5}, 2, v{T+5}")
    a("s_lshl_b32 s39, s37, 5")
    a(f"v_add_u32 v{T+5}, s39, v{T+5}")
    for rq in range(4):
        a(f"v_add_u32 v{T+6}, {8 * rq}, v{T+5}")
        a(f"v_mul_u32_u24 v{T+7}, 2731, v{T+6}")
        a(f"v_lshrrev_b32 v{T+7}, 16, v{T+7}")
        a(f"v_mul_u32_u24 v{T+8}, 24, v{T+7}")
        a(f"v_sub_u32 v{T+8}, v{T+6}, v{T+8}")
        a(f"v_lshl_add_u32 v{T+8}, v{T+8}, 2, v{T+3}")
        a(f"v_cmp_eq_u32 vcc, v{T+7}, v{T+1}")
        a("s_nop 1")
        a(f"v_cndmask_b32 v{T+10+rq}, v{T+4}, v{T+8}, vcc")
    a("s_nop 7")
    for rq in range(4):
        a(f"buffer_store_dwordx4 {vr(AC + 4 * rq, 4)}, v{T+10+rq}, s[16:19], 0 offen")

def k1_relayout(a):
    T = V_T
    a("s_lshl_b32 s32, s21, 1")
    a("s_add_u32 s32, s32, s22")
    a("s_lshl_b32 s32, s32, 3")
    a("s_add_u32 s32, s32, s20")
    a("s_load_dwordx2 s[40:41], s[0:1], 48")
    a("s_load_dwordx2 s[42:43], s[0:1], 16")
    for i in range(5):
        a(f"v_add_u32 v{T}, {64 * i}, v{V_LANE}")
        a(f"v_mul_u32_u24 v{T+1}, 52429, v{T}")
        a(f"v_lshrrev_b32 v{T+1}, 19, v{T+1}")
        a(f"v_mul_u32_u24 v{T+2}, 10, v{T+1}")
        a(f"v_sub_u32 v{T+2}, v{T}, v{T+2}")
        a(f"v_mul_u32_u24 v{T+3}, 1280, v{T+1}")
        a(f"v_lshl_add_u32 v{64+i}, v{T+2}, 4, v{T+3}")
        a(f"v_mov_b32 v{T+3}, {hex(OOB)}")
        a(f"v_cmp_gt_u32 vcc, 20, v{T+1}")
        a("s_nop 1")
        a(f"v_cndmask_b32 v{72+i}, v{T+3}, v{64+i}, vcc")
    a("s_mul_i32 s33, s20, 15360")
    a(f"v_lshrrev_b32 v{T}, 4, v{V_LANE}")
    a(f"v_bfe_u32 v{T+1}, v{V_LANE}, 2, 2")
    a(f"v_and_b32 v{T+2}, 3, v{V_LANE}")
    a(f"v_lshlrev_b32 v{T+2}, 3, v{T+2}")
    a(f"v_add_u32 v{T+2}, s33, v{T+2}")
    a(f"v_lshrrev_b32 v{T+3}, 1, v{T}")
    a(f"v_lshlrev_b32 v{T+3}, 4, v{T+3}")
    a(f"v_and_b32 v{T+4}, 1, v{T}")
    a(f"v_lshl_add_u32 v{T+3}, v{T+4}, 2, v{T+3}")
    a(f"v_add_u32 v{T+3}, v{T+3}, v{T+1}")
    a(f"v_mul_u32_u24 v{T+3}, 160, v{T+3}")
    a(f"v_add_u32 v80, v{T+3}, v{T+2}")
    a(f"v_lshl_add_u32 v{T+3}, v{T}, 3, v{T+1}")
    a(f"v_mul_u32_u24 v{T+3}, 160, v{T+3}")
    a(f"v_add_u32 v81, v{T+3}, v{T+2}")
    a(f"v_lshlrev_b32 v82, 4, v{V_LANE}")
    a(f"v_add_u32 v83, 4096, v82")
    a("s_waitcnt lgkmcnt(0)")
    srd(a, 44, 40, 41, F * D * 2)
    srd(a, 48, 42, 43, D * D * 2)
    a("s_cmp_lt_u32 s32, 8")
    a("s_cbranch_scc0 L_k1_rl_nofl")
    a("s_lshl_b32 s34, s32, 7")
    a(f"s_add_u32 s34, s34, {FL_OFF}")
    a(f"v_and_b32 v{T}, 31, v{V_LANE}")
    a(f"v_lshlrev_b32 v{T}, 2, v{T}")
    a(f"v_mov_b32 v{T+1}, 0")
    a(f"buffer_store_dword v{T+1}, v{T}, s[16:19], s34 offen")
    a.label("L_k1_rl_nofl")
    def item_setup(kind, add, slot):
        a(f"s_add_u32 s34, s32, {add}")
        a("s_lshr_b32 s35, s34, 3")
        a("s_and_b32 s36, s34, 7")
        a(f"s_mul_i32 s37, s35, {32 * 1280 if kind == 'w2' else 20 * 1280}")
        a("s_mul_i32 s38, s36, 160")
        a(f"s_add_u32 s{52 + 2 * slot}, s37, s38")
        if kind == "w2":
            a("s_mul_i32 s37, s36, 54")
            a("s_add_u32 s37, s37, s35")
            a("s_mul_i32 s37, s37, 5120")
            a(f"s_add_u32 s{53 + 2 * slot}, s37, {W2F_OFF}")
            if add == 384:
                a("s_cmp_lt_u32 s34, 432")
                a(f"s_cselect_b32 s{52 + 2 * slot}, s{52 + 2 * slot}, {OOB}")
                a(f"s_cselect_b32 s{53 + 2 * slot}, s{53 + 2 * slot}, {OOB}")
        else:
            a("s_mul_i32 s37, s34, 5120")
            a(f"s_add_u32 s{53 + 2 * slot}, s37, {WOF_OFF}")
    for rnd in ([("w2", 0), ("w2", 128), ("w2", 256)], [("wo", 0), ("wo", 128), ("w2", 384)]):
        for slot, (kind, add) in enumerate(rnd):
            item_setup(kind, add, slot)
            for i in range(5):
                a(f"s_add_u32 m0, s33, {slot * 5120 + i * 1024}")
                a("s_nop 0")
                if kind == "w2":
                    a(f"buffer_load_dwordx4 v{64+i}, s[44:47], s{52 + 2 * slot} offen lds")
                else:
                    a(f"buffer_load_dwordx4 v{72+i}, s[48:51], s{52 + 2 * slot} offen lds")
        for slot, (kind, add) in enumerate(rnd):
            if slot == 0:
                a("s_waitcnt vmcnt(0)")
            R = 96 + 20 * slot
            av = 80 if kind == "w2" else 81
            sec = 8 * 160 if kind == "w2" else 4 * 160
            for nb in range(5):
                a(f"ds_read_b64_tr_b16 {vr(R + 4 * nb, 2)}, v{av} offset:{slot * 5120 + 32 * nb}")
                a(f"ds_read_b64_tr_b16 {vr(R + 4 * nb + 2, 2)}, v{av} offset:{slot * 5120 + 32 * nb + sec}")
            a("s_waitcnt lgkmcnt(0)")
            for nb in range(5):
                if nb < 4:
                    a(f"buffer_store_dwordx4 {vr(R + 4 * nb, 4)}, v82, s[16:19], s{53 + 2 * slot} offen offset:{nb * 1024}")
                else:
                    a(f"buffer_store_dwordx4 {vr(R + 4 * nb, 4)}, v83, s[16:19], s{53 + 2 * slot} offen")
        a("s_waitcnt vmcnt(0)")

def gen_k1(a):
    T = V_T
    a.raw(".globl k1_kernel\n.p2align 8\n.type k1_kernel,@function")
    a.label("k1_kernel")
    a("s_cmp_ge_u32 s2, 256")
    a("s_cbranch_scc1 L_k1_end")
    a("s_load_dwordx2 s[4:5], s[0:1], 0")
    a("s_load_dwordx2 s[6:7], s[0:1], 72")
    a("s_load_dwordx2 s[36:37], s[0:1], 8")
    a("s_load_dwordx4 s[40:43], s[0:1], 32")
    a(f"v_and_b32 v{V_LANE}, 63, v0")
    a(f"v_lshrrev_b32 v{T}, 6, v0")
    a("s_nop 0")
    a(f"v_readfirstlane_b32 s20, v{T}")
    if OPT["prefetch_code"]:
        a("s_getpc_b64 s[44:45]")
        a(f"v_lshlrev_b32 v{T+1}, 7, v0")
        a(f"v_min_u32 v{T+1}, L_code_end-k1_kernel-256, v{T+1}")
        a(f"global_load_dword v62, v{T+1}, s[44:45]")
    a("s_and_b32 s32, s2, 7")
    a("s_lshr_b32 s33, s2, 3")
    if OPT["k1map"] == "4x8":
        a("s_and_b32 s21, s32, 1")
        a("s_lshl_b32 s21, s21, 2")
        a("s_and_b32 s34, s33, 3")
        a("s_add_u32 s21, s21, s34")
        a("s_lshr_b32 s35, s32, 1")
        a("s_lshl_b32 s35, s35, 3")
        a("s_lshr_b32 s34, s33, 2")
        a("s_add_u32 s35, s35, s34")
    elif OPT["k1map"] == "2x16":
        a("s_lshr_b32 s21, s32, 1")
        a("s_lshl_b32 s21, s21, 1")
        a("s_and_b32 s34, s33, 1")
        a("s_add_u32 s21, s21, s34")
        a("s_and_b32 s35, s32, 1")
        a("s_lshl_b32 s35, s35, 4")
        a("s_lshr_b32 s34, s33, 1")
        a("s_add_u32 s35, s35, s34")
    elif OPT["k1map"] == "8x4":
        a("s_and_b32 s21, s33, 7")
        a("s_lshl_b32 s35, s32, 2")
        a("s_lshr_b32 s34, s33, 3")
        a("s_add_u32 s35, s35, s34")
    elif OPT["k1map"] == "1x32":
        a("s_mov_b32 s21, s32")
        a("s_mov_b32 s35, s33")
    a(f"s_mov_b32 s31, {hex(ONES_BF)}")
    a("s_lshl_b32 s32, s21, 3")
    a("s_add_u32 s32, s32, s20")
    a("s_mul_i32 s32, s32, 40960")
    a(f"v_and_b32 v{T}, 31, v{V_LANE}")
    a(f"v_mul_u32_u24 v{T}, 1280, v{T}")
    a(f"v_lshrrev_b32 v{T+1}, 5, v{V_LANE}")
    a(f"v_lshl_add_u32 v{T}, v{T+1}, 4, v{T}")
    a(f"v_add_u32 v{V_XOFF}, s32, v{T}")
    a(f"v_lshlrev_b32 v{T+4}, 3, v{T+1}")
    a(f"v_bfe_u32 v{T+2}, v{V_LANE}, 2, 2")
    a(f"v_add_u32 v{T+4}, v{T+4}, v{T+2}")
    a(f"v_bfe_u32 v{T+5}, v{V_LANE}, 4, 1")
    a(f"v_lshlrev_b32 v{T+5}, 2, v{T+5}")
    a(f"v_and_b32 v{T+2}, 3, v{V_LANE}")
    a(f"v_add_u32 v{T+5}, v{T+5}, v{T+2}")
    a("s_waitcnt lgkmcnt(0)")
    srd(a, 8, 4, 5, S * D * 2)
    srd(a, 16, 6, 7, WS_USED)
    if OPT["stamp"]:
        srd(a, 92, 6, 7, WS_USED + 16 * 8192)
        stamp(a, 0, (T + 8, T + 9))
    a("s_cmp_lt_u32 s35, 18")
    a("s_cbranch_scc1 L_k1_ffn")
    a("s_cmp_lt_u32 s35, 26")
    a("s_cbranch_scc1 L_k1_kv")
    a("s_cmp_lt_u32 s35, 30")
    a("s_cbranch_scc1 L_k1_q")
    a("s_sub_u32 s22, s35, 30")
    k1_relayout(a)
    a("s_branch L_k1_end")

    a.label("L_k1_ffn")
    a("s_mov_b32 s22, s35")
    a("s_cmp_lt_u32 s20, 4")
    a("s_cselect_b32 s12, s40, s42")
    a("s_cselect_b32 s13, s41, s43")
    a("s_cselect_b32 s28, 0, 12288")
    a("s_and_b32 s13, s13, 0xffff")
    a(f"s_mov_b32 s14, {D * F * 2}")
    a("s_mov_b32 s15, 0x20000")
    a("s_and_b32 s32, s20, 3")
    a("s_mul_i32 s33, s32, 3072")
    a("s_add_u32 s28, s28, s33")
    a("s_add_u32 s29, s28, 1024")
    a("s_add_u32 s30, s28, 2048")
    a("s_mul_i32 s33, s32, 192")
    a("s_mul_i32 s34, s22, 192")
    for i in range(3):
        a(f"s_add_u32 s38, s33, {64 * i}")
        a(f"v_add_u32 v{T}, s38, v{V_LANE}")
        a(f"v_mul_u32_u24 v{T+1}, 43691, v{T}")
        a(f"v_lshrrev_b32 v{T+1}, 19, v{T+1}")
        a(f"v_mul_u32_u24 v{T+2}, 12, v{T+1}")
        a(f"v_sub_u32 v{T+2}, v{T}, v{T+2}")
        a(f"v_mul_u32_u24 v{T+1}, 3456, v{T+1}")
        a(f"v_lshl_add_u32 v{T+1}, v{T+2}, 4, v{T+1}")
        a(f"v_add_u32 v{V_D0+i}, s34, v{T+1}")
    a(f"v_mul_u32_u24 v{V_R0}, 192, v{T+4}")
    a(f"v_lshl_add_u32 v{V_R0}, v{T+5}, 3, v{V_R0}")
    a("s_min_u32 s32, s20, 5")
    a("s_and_b32 s33, s32, 1")
    a("s_mul_i32 s33, s33, 12288")
    a("s_lshr_b32 s32, s32, 1")
    a("s_lshl_b32 s32, s32, 6")
    a("s_add_u32 s32, s32, s33")
    a(f"v_add_u32 v{V_RC}, s32, v{V_R0}")
    k1_mainloop(a, "ffn", "ffn")
    stamp(a, 1, (T + 40, T + 41))
    k1_epi_ffn(a)
    a("s_branch L_k1_end")

    def qkv_common(kind):
        srd(a, 12, 36, 37, D * 1920 * 2)
        a("s_lshl_b32 s28, s20, 10")
        a("s_add_u32 s29, s28, 8192")
        a("s_add_u32 s30, s28, 16384")
        a("s_lshl_b32 s33, s20, 6")
        if kind == "q":
            a("s_mul_i32 s34, s22, 320")
        else:
            a("s_mul_i32 s34, s22, 160")
            a("s_add_u32 s34, s34, 1280")
        for i in range(3):
            a(f"s_add_u32 s38, s33, {512 * i}")
            a(f"v_add_u32 v{T}, s38, v{V_LANE}")
            a(f"v_mul_u32_u24 v{T+1}, 52429, v{T}")
            a(f"v_lshrrev_b32 v{T+1}, 20, v{T+1}")
            a(f"v_mul_u32_u24 v{T+2}, 20, v{T+1}")
            a(f"v_sub_u32 v{T+2}, v{T}, v{T+2}")
            a(f"v_mul_u32_u24 v{T+3}, 3840, v{T+1}")
            a(f"v_lshl_add_u32 v{T+3}, v{T+2}, 4, v{T+3}")
            if kind == "kv":
                a(f"v_add_u32 v{T+6}, {1280 - 160}, v{T+3}")
                a(f"v_cmp_lt_u32 vcc, 9, v{T+2}")
                a("s_nop 1")
                a(f"v_cndmask_b32 v{T+3}, v{T+3}, v{T+6}, vcc")
            a(f"v_add_u32 v{V_D0+i}, s34, v{T+3}")
            if i == 2:
                a(f"v_mov_b32 v{T+6}, {hex(OOB)}")
                a(f"v_cmp_lt_u32 vcc, 63, v{T+1}")
                a("s_nop 1")
                a(f"v_cndmask_b32 v{V_D0+i}, v{V_D0+i}, v{T+6}, vcc")

    a.label("L_k1_kv")
    a("s_sub_u32 s22, s35, 18")
    qkv_common("kv")
    def nib(l):
        v = 0
        for i, x in enumerate(l): v |= x << (4 * i)
        return v
    tabs = [(0, nib([0, 1, 2, 3, 4, 7, 5, 6])), (28, nib([0, 1, 2, 7, 3, 4, 5, 6])), (48, nib([2, 0, 3, 4, 5, 6, 7, 1]))]
    a(f"v_mul_u32_u24 v{T+6}, 320, v{T+4}")
    a(f"v_lshlrev_b32 v{T+7}, 2, v{T+5}")
    for u, (ws, tb) in enumerate(tabs):
        a(f"s_mov_b32 s32, {hex(tb)}")
        a(f"v_bfe_u32 v{T}, s32, v{T+7}, 4")
        a(f"v_lshl_add_u32 v{T}, v{T}, 3, v{T+6}")
        a(f"v_add_u32 v{V_R0+u}, {2 * ws}, v{T}")
    a(f"v_mov_b32 v{V_RC}, v{V_R0}")
    for w in (1, 2, 3, 4, 5):
        a(f"s_cmp_eq_u32 s20, {w}")
        a(f"s_cselect_b64 s[38:39], -1, 0")
        a(f"v_add_u32 v{T}, {160 * (w // 3)}, v{V_R0 + (w % 3)}")
        a(f"v_cndmask_b32 v{V_RC}, v{V_RC}, v{T}, s[38:39]")
    k1_mainloop(a, "kv", "kv")
    stamp(a, 1, (T + 40, T + 41))
    k1_epi_kv(a)
    a("s_branch L_k1_end")

    a.label("L_k1_q")
    a("s_sub_u32 s22, s35, 26")
    qkv_common("q")
    a(f"v_lshrrev_b32 v{T}, 2, v{T+5}")
    a(f"v_lshlrev_b32 v{T}, 1, v{T}")
    a(f"v_and_b32 v{T+1}, 1, v{T+5}")
    a(f"v_add_u32 v{T}, v{T}, v{T+1}")
    a(f"v_mul_u32_u24 v{T}, 80, v{T}")
    a(f"v_bfe_u32 v{T+1}, v{T+5}, 1, 1")
    a(f"v_lshl_add_u32 v{T}, v{T+1}, 3, v{T}")
    a(f"v_mul_u32_u24 v{T+6}, 320, v{T+4}")
    a(f"v_add_u32 v{V_R0}, v{T}, v{T+6}")
    a("s_min_u32 s32, s20, 4")
    a("s_lshl_b32 s32, s32, 4")
    a(f"v_add_u32 v{V_RC}, s32, v{V_R0}")
    k1_mainloop(a, "q", "q")
    stamp(a, 1, (T + 40, T + 41))
    k1_epi_q(a)
    a.label("L_k1_end")
    if OPT["stamp"]:
        a("s_cmp_ge_u32 s2, 256")
        a("s_cbranch_scc1 L_k1_end2")
        a("s_waitcnt vmcnt(0)")
        stamp(a, 2, (T + 40, T + 41))
        a.label("L_k1_end2")
    a("s_endpgm")

K2_LDS = 122880
W_LANE, W_L16, W_L16B, W_T = 1, 2, 3, 4
W_RING = 28
W_PQ = 136
W_Z = 216
W_MX = 236
W_X = 240
A_O, A_S, A_M = 0, 80, 160

def gen_k2(a):
    T = W_T
    a.raw(".globl k2_kernel\n.p2align 8\n.type k2_kernel,@function")
    a.label("k2_kernel")
    a("s_cmp_ge_u32 s2, 256")
    a("s_cbranch_scc1 L_k2_end")
    a("s_load_dwordx2 s[4:5], s[0:1], 0")
    a("s_load_dwordx2 s[6:7], s[0:1], 72")
    a("s_load_dwordx2 s[36:37], s[0:1], 56")
    a(f"v_and_b32 v{W_LANE}, 63, v0")
    a(f"v_lshrrev_b32 v{T}, 6, v0")
    a(f"v_lshlrev_b32 v{W_L16}, 4, v{W_LANE}")
    a(f"v_readfirstlane_b32 s20, v{T}")
    a(f"v_add_u32 v{W_L16B}, 4096, v{W_L16}")
    if OPT["prefetch_code"]:
        a("s_getpc_b64 s[44:45]")
        a(f"v_lshlrev_b32 v{T+1}, 7, v0")
        a(f"v_min_u32 v{T+1}, L_code_end-k2_kernel-256, v{T+1}")
        a(f"global_load_dword v27, v{T+1}, s[44:45]")
    a("s_and_b32 s32, s2, 7")
    a("s_lshr_b32 s33, s2, 3")
    if OPT["k2map"] == "8x4":
        a("s_lshr_b32 s21, s32, 1")
        a("s_lshl_b32 s21, s21, 3")
        a("s_and_b32 s34, s33, 7")
        a("s_add_u32 s21, s21, s34")
        a("s_and_b32 s22, s32, 1")
        a("s_lshl_b32 s22, s22, 2")
        a("s_lshr_b32 s34, s33, 3")
        a("s_add_u32 s22, s22, s34")
    elif OPT["k2map"] == "4x8":
        a("s_lshl_b32 s21, s32, 2")
        a("s_and_b32 s34, s33, 3")
        a("s_add_u32 s21, s21, s34")
        a("s_lshr_b32 s22, s33, 2")
    elif OPT["k2map"] == "16x2":
        a("s_and_b32 s21, s32, 1")
        a("s_lshl_b32 s21, s21, 4")
        a("s_and_b32 s34, s33, 15")
        a("s_add_u32 s21, s21, s34")
        a("s_lshr_b32 s22, s32, 1")
        a("s_lshl_b32 s22, s22, 1")
        a("s_lshr_b32 s34, s33, 4")
        a("s_add_u32 s22, s22, s34")
    a("s_waitcnt lgkmcnt(0)")
    srd(a, 8, 4, 5, S * D * 2)
    srd(a, 12, 36, 37, S * D * 2)
    srd(a, 16, 6, 7, WS_USED)
    if OPT["stamp"]:
        srd(a, 92, 6, 7, WS_USED + 16 * 8192)
        stamp(a, 4, (T + 8, T + 9))
    a("s_cmp_lg_u32 s20, 3")
    a("s_cbranch_scc1 L_k2_main")
    PB = W_RING
    PW = 160
    a(f"v_and_b32 v{T}, 15, v{W_LANE}")
    a(f"v_lshrrev_b32 v{T+1}, 4, v{W_LANE}")
    a(f"v_mul_u32_u24 v{T+2}, 96, v{T}")
    a(f"v_lshl_add_u32 v{T+2}, v{T+1}, 5, v{T+2}")
    a(f"v_mov_b32 v{T+4}, {hex(OOB)}")
    a(f"v_cmp_gt_u32 vcc, 3, v{T+1}")
    a("s_nop 1")
    a(f"v_cndmask_b32 v{T+2}, v{T+4}, v{T+2}, vcc")
    a(f"v_add_u32 v{T+3}, {16 * 96}, v{T+2}")
    a(f"v_cmp_gt_u32 vcc, 4, v{T}")
    a("s_nop 1")
    a(f"v_cndmask_b32 v{T+3}, v{T+4}, v{T+3}, vcc")
    a("s_mul_i32 s32, s21, 1920")
    a(f"s_add_u32 s32, s32, {KVP_OFF}")
    for p in range(8):
        for tl in range(2):
            for h in range(2):
                a(f"buffer_load_dwordx4 {vr(PB + 16 * p + 8 * tl + 4 * h, 4)}, v{T+2+tl}, s[16:19], s32 offen offset:{16 * h}")
        if p < 7:
            a(f"s_add_u32 s32, s32, {32 * 1920}")
    a("s_lshl_b32 s32, s21, 3")
    a("s_add_u32 s32, s32, s22")
    a("s_mul_i32 s32, s32, 5120")
    a(f"s_add_u32 s32, s32, {WOF_OFF}")
    for nb in range(5):
        if nb < 4:
            a(f"buffer_load_dwordx4 {vr(PW + 4 * nb, 4)}, v{W_L16}, s[16:19], s32 offen offset:{nb * 1024}")
        else:
            a(f"buffer_load_dwordx4 {vr(PW + 4 * nb, 4)}, v{W_L16B}, s[16:19], s32 offen")
    a(f"v_mov_b32 v{PW+20}, 0")
    a(f"v_mov_b32 v{PW+21}, 0")
    a(f"v_mov_b32 v{PW+23}, 0")
    a(f"v_mov_b32 v{T+5}, 0x3f80")
    a(f"v_cmp_eq_u32 vcc, 2, v{T+1}")
    a("s_nop 1")
    a(f"v_cndmask_b32 v{PW+22}, 0, v{T+5}, vcc")
    a("s_lshr_b32 s33, s21, 3")
    a("s_bfe_u32 s34, s21, 0x20001")
    a("s_and_b32 s35, s21, 1")
    a("s_mul_i32 s35, s35, 20")
    a("s_mul_i32 s38, s22, 20")
    a("s_mul_i32 s39, s33, 5")
    a("s_add_u32 s38, s38, s39")
    a("s_mul_i32 s40, s38, 5120")
    a("s_lshl_b32 s41, s34, 8")
    a("s_add_u32 s40, s40, s41")
    a(f"s_add_u32 s40, s40, {MF_OFF}")
    a("s_lshl_b32 s42, s38, 6")
    a("s_lshl_b32 s41, s34, 4")
    a("s_add_u32 s42, s42, s41")
    a(f"s_add_u32 s42, s42, {ZF_OFF}")
    for tl in range(2):
        a(f"v_lshlrev_b32 v{T+6}, 2, v{T+1}")
        a(f"v_add_u32 v{T+6}, s35, v{T+6}")
        if tl:
            a(f"v_add_u32 v{T+6}, 16, v{T+6}")
        a(f"v_lshrrev_b32 v{T+7}, 3, v{T+6}")
        a(f"v_bfe_u32 v{T+8}, v{T+6}, 2, 1")
        a(f"v_lshlrev_b32 v{T+8}, 3, v{T+8}")
        a(f"v_mul_u32_u24 v{T+9}, 5120, v{T+7}")
        a(f"v_lshl_add_u32 v{T+9}, v{T}, 4, v{T+9}")
        a(f"v_add3_u32 v{T+10+tl}, v{T+9}, v{T+8}, s40")
        a(f"v_lshl_add_u32 v{T+9}, v{T+7}, 6, v{T+8}")
        a(f"v_add_u32 v{T+12+tl}, s42, v{T+9}")
        a(f"v_cmp_eq_u32 vcc, 0, v{T}")
        a("s_nop 1")
        a(f"v_cndmask_b32 v{T+12+tl}, v{T+4}, v{T+12+tl}, vcc")
        if tl:
            a(f"v_cmp_eq_u32 vcc, 0, v{T+1}")
            a("s_nop 1")
            a(f"v_cndmask_b32 v{T+10+tl}, v{T+4}, v{T+10+tl}, vcc")
            a(f"v_cndmask_b32 v{T+12+tl}, v{T+4}, v{T+12+tl}, vcc")
    for p in range(1, 8):
        a(f"s_waitcnt vmcnt({5 + 4 * (7 - p)})")
        for r in range(16):
            a(f"v_add_f32 v{PB+r}, v{PB+r}, v{PB + 16 * p + r}")
    for r in range(8):
        a(f"v_cvt_pk_bf16_f32 v{PB+16+r}, v{PB+2*r}, v{PB+2*r+1}")
    a("s_waitcnt vmcnt(0)")
    a("s_nop 1")
    DD = PB + 32
    for nb in range(6):
        for tl in range(2):
            a(f"v_mfma_f32_16x16x32_bf16 {vr(DD + 8 * nb + 4 * tl, 4)}, {vr(PB + 16 + 4 * tl, 4)}, {vr(PW + 4 * nb, 4)}, 0")
    a("s_nop 7")
    a("s_mov_b32 s43, 4096")
    for nb in range(6):
        for tl in range(2):
            d = DD + 8 * nb + 4 * tl
            a(f"v_cvt_pk_bf16_f32 v{d}, v{d}, v{d+1}")
            a(f"v_cvt_pk_bf16_f32 v{d+1}, v{d+2}, v{d+3}")
            if nb < 4:
                a(f"buffer_store_dwordx2 {vr(d, 2)}, v{T+10+tl}, s[16:19], 0 offen offset:{nb * 1024} sc1")
            elif nb == 4:
                a(f"buffer_store_dwordx2 {vr(d, 2)}, v{T+10+tl}, s[16:19], s43 offen sc1")
            else:
                a(f"buffer_store_dwordx2 {vr(d, 2)}, v{T+12+tl}, s[16:19], 0 offen sc1")
    a("s_lshl_b32 s32, s22, 7")
    a("s_lshl_b32 s33, s21, 2")
    a("s_add_u32 s32, s32, s33")
    a(f"s_add_u32 s32, s32, {FL_OFF}")
    a(f"v_mov_b32 v{T+5}, 1")
    a(f"v_mov_b32 v{T+6}, 0")
    a(f"v_cmp_eq_u32 vcc, 0, v{W_LANE}")
    a("s_nop 1")
    a(f"v_cndmask_b32 v{T+6}, v{T+4}, v{T+6}, vcc")
    a("s_waitcnt vmcnt(0)")
    a(f"buffer_store_dword v{T+5}, v{T+6}, s[16:19], s32 offen sc1")
    a("s_waitcnt vmcnt(0)")

    a.label("L_k2_main")
    a("s_mul_i32 s32, s20, 15")
    a("s_mul_i32 s23, s21, 54")
    a("s_add_u32 s23, s23, s32")
    a("s_lshl_b32 s23, s23, 12")
    a(f"s_add_u32 s23, s23, {HB_OFF}")
    a("s_mul_i32 s24, s22, 54")
    a("s_add_u32 s24, s24, s32")
    a("s_mul_i32 s24, s24, 5120")
    a(f"s_add_u32 s24, s24, {W2F_OFF}")
    a("s_cmp_eq_u32 s20, 3")
    a("s_cselect_b32 s27, 2, 4")
    def ring_loads(st):
        R = W_RING + 36 * st
        L = []
        for rb in range(4):
            L.append(f"buffer_load_dwordx4 {vr(R + 4 * rb, 4)}, v{W_L16}, s[16:19], s23 offen offset:{rb * 1024}")
        for nb in range(5):
            if nb < 4:
                L.append(f"buffer_load_dwordx4 {vr(R + 16 + 4 * nb, 4)}, v{W_L16}, s[16:19], s24 offen offset:{nb * 1024}")
            else:
                L.append(f"buffer_load_dwordx4 {vr(R + 16 + 4 * nb, 4)}, v{W_L16B}, s[16:19], s24 offen")
        return L
    adv = ["s_add_u32 s23, s23, 4096", "s_add_u32 s24, s24, 5120"]
    for st in range(3):
        for l in ring_loads(st): a(l)
        for l in adv: a(l)
    for r in range(160):
        a(f"v_accvgpr_write_b32 a{r}, 0")
    def mfmas(st):
        R = W_RING + 36 * st
        L = []
        for rb in range(4):
            for nb in range(5):
                acc = ar(A_O + 20 * rb + 4 * nb, 4)
                L.append(f"v_mfma_f32_16x16x32_bf16 {acc}, {vr(R + 16 + 4 * nb, 4)}, {vr(R + 4 * rb, 4)}, {acc}")
        return L
    a.raw(".p2align 4")
    a.label("L_k2_loop")
    for st in range(3):
        a("s_waitcnt vmcnt(18)")
        for l in mfmas(st): a(l)
        for l in ring_loads(st): a(l)
        for l in adv: a(l)
    a("s_sub_u32 s27, s27, 1")
    a("s_cmp_lg_u32 s27, 0")
    a("s_cbranch_scc1 L_k2_loop")
    a("s_lshl_b32 s32, s22, 7")
    a(f"s_add_u32 s32, s32, {FL_OFF}")
    a(f"v_and_b32 v{T}, 31, v{W_LANE}")
    a(f"v_lshlrev_b32 v{T}, 2, v{T}")
    a(f"buffer_load_dword v{T+1}, v{T}, s[16:19], s32 offen sc1")
    a("s_mul_i32 s33, s20, 5")
    a("s_mul_i32 s25, s21, 20")
    a("s_add_u32 s25, s25, s33")
    a("s_lshl_b32 s25, s25, 12")
    a(f"s_add_u32 s25, s25, {PQ_OFF}")
    a("s_mul_i32 s26, s22, 20")
    a("s_add_u32 s26, s26, s33")
    a("s_lshl_b32 s28, s26, 6")
    a(f"s_add_u32 s28, s28, {ZF_OFF}")
    a("s_mul_i32 s26, s26, 5120")
    a(f"s_add_u32 s26, s26, {MF_OFF}")
    for u in range(5):
        for rb in range(4):
            a(f"buffer_load_dwordx4 {vr(W_PQ + 20 * rb + 4 * u, 4)}, v{W_L16}, s[16:19], s25 offen offset:{rb * 1024}")
        if u < 4:
            a("s_add_u32 s25, s25, 4096")
    a("s_waitcnt vmcnt(39)")
    for l in mfmas(0): a(l)
    a("s_waitcnt vmcnt(20)")
    a("s_mov_b32 s29, 0")
    a.label("L_k2_poll")
    a(f"v_cmp_ne_u32 vcc, 1, v{T+1}")
    a("s_cbranch_vccz L_k2_ready")
    a("s_sleep 4")
    a(f"buffer_load_dword v{T+1}, v{T}, s[16:19], s32 offen sc1")
    a("s_add_u32 s29, s29, 1")
    a("s_cmp_lt_u32 s29, 200000")
    a("s_waitcnt vmcnt(0)")
    a("s_cbranch_scc1 L_k2_poll")
    a.label("L_k2_ready")
    a(f"v_lshrrev_b32 v{T+2}, 4, v{W_LANE}")
    a(f"v_lshlrev_b32 v{T+3}, 4, v{T+2}")
    for u in range(5):
        a(f"buffer_load_dwordx4 {vr(W_Z + 4 * u, 4)}, v{T+3}, s[16:19], s28 offen offset:{u * 64} sc1")
    def mreg(u, nb):
        i = 5 * u + nb
        return ar(A_M + 4 * i, 4) if i < 24 else vr(W_MX, 4)
    for u in range(5):
        for nb in range(5):
            if nb < 4:
                a(f"buffer_load_dwordx4 {mreg(u, nb)}, v{W_L16}, s[16:19], s26 offen offset:{nb * 1024} sc1")
            else:
                a(f"buffer_load_dwordx4 {mreg(u, nb)}, v{W_L16B}, s[16:19], s26 offen sc1")
        if u < 4:
            a("s_add_u32 s26, s26, 5120")
    a("s_lshl_b32 s33, s21, 2")
    a("s_add_u32 s33, s33, s20")
    a("s_mul_i32 s33, s33, 20480")
    a("s_mul_i32 s34, s22, 160")
    a("s_add_u32 s33, s33, s34")
    a(f"v_and_b32 v{T+4}, 15, v{W_LANE}")
    a(f"v_mul_u32_u24 v{T+4}, 1280, v{T+4}")
    a(f"v_lshl_add_u32 v{T+4}, v{T+2}, 3, v{T+4}")
    a(f"v_add_u32 v{T+4}, s33, v{T+4}")
    for nb in range(5):
        a(f"buffer_load_dwordx2 {vr(W_X + 2 * nb, 2)}, v{T+4}, s[8:11], 0 offen offset:{nb * 32}")
    for l in mfmas(1): a(l)
    for l in mfmas(2): a(l)
    for k in range(1, 4):
        pass
    VA = T + 6
    for r in range(4):
        a(f"s_sub_u32 s33, s20, {r + 1}")
        a("s_and_b32 s33, s33, 3")
        a("s_mul_i32 s33, s33, 10240")
        a(f"s_add_u32 s33, s33, {r * 30720}")
        a(f"v_add_u32 v{VA + r}, s33, v{W_L16}")
    a("s_waitcnt vmcnt(30)")
    a("s_nop 4")
    def dump(which, accbase, tag):
        for r in range(4):
            a(f"s_cmp_eq_u32 s20, {r}")
            a(f"s_cbranch_scc1 L_k2_skip_{tag}{r}")
            for nb in range(5):
                a(f"ds_write_b128 v{VA + r}, {ar(accbase + 20 * r + 4 * nb, 4)} offset:{which * 5120 + nb * 1024}")
            a.label(f"L_k2_skip_{tag}{r}")
    dump(0, A_O, "o")
    N = W_RING
    for rb in range(4):
        P = W_PQ + 20 * rb
        for hd in range(2):
            dn = N + 2 * hd
            a(f"v_mov_b32 v{dn}, {hex(EPS6)}")
            a(f"v_mov_b32 v{dn+1}, 0")
        for i in range(10):
            for hd in range(2):
                dn = N + 2 * hd + (i & 1)
                a(f"v_dot2_f32_bf16 v{dn}, v{P + 10 * hd + i}, v{W_Z + 10 * hd + i}, v{dn}")
        a("s_nop 2")
        for hd in range(2):
            a(f"v_add_f32 v{N + 2 * hd}, v{N + 2 * hd}, v{N + 2 * hd + 1}")
        for hd in range(2):
            a(f"v_rcp_f32 v{N + 2 * hd}, v{N + 2 * hd}")
        E = N + 4
        for i in range(20):
            a(f"v_lshlrev_b32 v{E + 2 * i}, 16, v{P + i}")
            a(f"v_and_b32 v{E + 2 * i + 1}, 0xffff0000, v{P + i}")
        for i in range(20):
            a(f"v_pk_mul_f32 {vr(E + 2 * i, 2)}, {vr(E + 2 * i, 2)}, {vr(N + 2 * (i // 10), 2)} op_sel_hi:[1,0]")
        for i in range(20):
            a(f"v_cvt_pk_bf16_f32 v{P + i}, v{E + 2 * i}, v{E + 2 * i + 1}")
    a("s_waitcnt vmcnt(5)")
    a("s_nop 1")
    for u in range(5):
        for rb in range(4):
            for nb in range(5):
                acc = ar(A_S + 20 * rb + 4 * nb, 4)
                a(f"v_mfma_f32_16x16x32_bf16 {acc}, {mreg(u, nb)}, {vr(W_PQ + 20 * rb + 4 * u, 4)}, {acc}")
    a("s_nop 7")
    dump(1, A_S, "s")
    for r in range(4):
        a(f"s_cmp_lg_u32 s20, {r}")
        a(f"s_cbranch_scc1 L_k2_own{r}")
        for i in range(20):
            a(f"v_accvgpr_read_b32 v{N + i}, a{A_O + 20 * r + i}")
            a(f"v_accvgpr_read_b32 v{N + 20 + i}, a{A_S + 20 * r + i}")
        a.label(f"L_k2_own{r}")
    a("s_mul_i32 s33, s20, 30720")
    a(f"v_add_u32 v{VA}, s33, v{W_L16}")
    a("s_waitcnt lgkmcnt(0)")
    a("s_barrier")
    RD = N + 40
    for k in range(3):
        for i in range(10):
            a(f"ds_read_b128 {vr(RD + 40 * k + 4 * i, 4)}, v{VA} offset:{k * 10240 + i * 1024}")
        a(f"s_waitcnt lgkmcnt(0)")
        for i in range(40):
            a(f"v_add_f32 v{N + i}, v{N + i}, v{RD + 40 * k + i}")
    E = RD
    for i in range(20):
        a(f"v_mul_f32 v{E + i}, {hex(LOG2E | 0x80000000)}, v{N + i}")
    for i in range(20):
        a(f"v_exp_f32 v{E + i}, v{E + i}")
    for i in range(20):
        a(f"v_add_f32 v{E + i}, 1.0, v{E + i}")
        a(f"v_mul_f32 v{N + i}, v{N + i}, v{N + 20 + i}")
    for i in range(20):
        a(f"v_rcp_f32 v{E + i}, v{E + i}")
    a("s_waitcnt vmcnt(0)")
    XE = E + 20
    for i in range(10):
        a(f"v_lshlrev_b32 v{XE + 2 * i}, 16, v{W_X + i}")
        a(f"v_and_b32 v{XE + 2 * i + 1}, 0xffff0000, v{W_X + i}")
    for i in range(20):
        a(f"v_fmac_f32 v{XE + i}, v{N + i}, v{E + i}")
    for i in range(10):
        a(f"v_cvt_pk_bf16_f32 v{N + i}, v{XE + 2 * i}, v{XE + 2 * i + 1}")
    for nb in range(5):
        a(f"buffer_store_dwordx2 {vr(N + 2 * nb, 2)}, v{T+4}, s[12:15], 0 offen offset:{nb * 32}")
    if OPT["stamp"]:
        a("s_waitcnt vmcnt(0)")
        stamp(a, 5, (T + 8, T + 9))
    a.label("L_k2_end")
    a("s_endpgm")

def kd(name, vgpr, accum, sgpr=102):
    return f""".amdhsa_kernel {name}
  .amdhsa_next_free_vgpr {vgpr}
  .amdhsa_next_free_sgpr {sgpr}
  .amdhsa_accum_offset {accum}
  .amdhsa_group_segment_fixed_size 0
  .amdhsa_kernarg_size 80
  .amdhsa_user_sgpr_count 2
  .amdhsa_user_sgpr_kernarg_segment_ptr 1
  .amdhsa_system_sgpr_workgroup_id_x 1
.end_amdhsa_kernel"""

def main():
    a = Asm()
    a.raw(f"; @launch kernel=k1_kernel grid=(256,1,1) block=(512,1,1) lds={K1_LDS}")
    a.raw(f"; @launch kernel=k2_kernel grid=(256,1,1) block=(256,1,1) lds={K2_LDS}")
    a.raw('.amdgcn_target "amdgcn-amd-amdhsa--gfx950"')
    a.raw(".text")
    gen_k1(a)
    gen_k2(a)
    a.label("L_code_end")
    a("s_endpgm")
    a.raw('.section .rodata,"a"')
    a.raw(".p2align 6")
    a.raw(kd("k1_kernel", 256, 256))
    a.raw(".p2align 6")
    a.raw(kd("k2_kernel", 512, 256))
    open(sys.argv[1], "w").write(a.text())

if __name__ == "__main__":
    main()
```

```python
import sys

S, D, F = 2048, 640, 1728

HB_OFF   = 0
HB_SZ    = 32 * 54 * 4096
PQ_OFF   = HB_OFF + HB_SZ
PQ_SZ    = 32 * 20 * 4096
W2F_OFF  = PQ_OFF + PQ_SZ
W2F_SZ   = 8 * 54 * 5120
WOF_OFF  = W2F_OFF + W2F_SZ
WOF_SZ   = 32 * 8 * 5120
MF_OFF   = WOF_OFF + WOF_SZ
MF_SZ    = 8 * 20 * 5120
KVP_OFF  = MF_OFF + MF_SZ
KVP_SZ   = 8 * 32 * 1920
ZF_OFF   = KVP_OFF + KVP_SZ
ZF_SZ    = 8 * 1280
FL_OFF   = ZF_OFF + ZF_SZ
FL_SZ    = 8 * 128
ST_OFF   = FL_OFF + FL_SZ
ST_SZ    = 2 * 2048 * 4
WS_USED  = ST_OFF + ST_SZ
OOB      = 0x40000000

LOG2E = 0x3fb8aa3b
EPS6  = 0x358637bd
EPS5  = 0x3727c5ac
INV640 = 0x3acccccd
ONES_BF = 0x3f803f80

OPT = dict(k1map="4x8", k2map="8x4", stamp=0, prefetch_code=1, no_fill=0, no_x=0, no_dma=0, no_rd=0, no_mfma=0,
           nx=3, flag_st=6, k2_pq=3, k2_flag=8, k2_s=12)
for _a in sys.argv[2:]:
    _k, _v = _a.split("=")
    assert _k in OPT, _k
    OPT[_k] = int(_v) if _v.lstrip("-").isdigit() else _v

class Asm:
    def __init__(self):
        self.L = []
    def __call__(self, s):
        for line in s.strip("\n").split("\n"):
            self.L.append("    " + line.strip())
    def label(self, l):
        self.L.append(l + ":")
    def raw(self, s):
        self.L.append(s)
    def text(self):
        return "\n".join(self.L) + "\n"

class VQ:
    def __init__(self, a):
        self.a, self.q, self.done = a, [], 0
    def issue(self, tag, text):
        self.q.append(tag)
        self.a(text)
    def need(self, *tags):
        idxs = [i for i, t in enumerate(self.q) if t in tags]
        if not idxs:
            return None
        idx = max(idxs)
        if idx < self.done:
            return None
        n = min(63, len(self.q) - 1 - idx)
        self.done = len(self.q) - n
        return n
    def wait(self, *tags, lgkm=None):
        n = self.need(*tags) if tags else None
        parts = []
        if n is not None: parts.append(f"vmcnt({n})")
        if lgkm is not None: parts.append(f"lgkmcnt({lgkm})")
        if parts: self.a("s_waitcnt " + " ".join(parts))

def vr(b, n):
    return f"v[{b}:{b+n-1}]" if n > 1 else f"v{b}"
def ar(b, n):
    return f"a[{b}:{b+n-1}]" if n > 1 else f"a{b}"

def srd(a, d, lo, hi, size):
    a(f"s_mov_b32 s{d}, s{lo}")
    a(f"s_and_b32 s{d+1}, s{hi}, 0xffff")
    a(f"s_mov_b32 s{d+2}, {size}")
    a(f"s_mov_b32 s{d+3}, 0x20000")

def stamp(a, slot, va, vb):
    if not OPT["stamp"]:
        return
    a("s_memrealtime s[96:97]")
    a("s_waitcnt lgkmcnt(0)")
    a(f"v_mov_b32 v{va}, s96")
    a("s_lshl_b32 s98, s2, 5")
    a("s_lshl_b32 s99, s20, 2")
    a("s_add_u32 s98, s98, s99")
    a(f"s_add_u32 s98, s98, {WS_USED + slot * 8192}")
    a(f"v_mov_b32 v{vb}, s98")
    a(f"buffer_store_dword v{va}, v{vb}, s[92:95], 0 offen")
    a("s_memtime s[96:97]")
    a("s_waitcnt lgkmcnt(0)")
    a(f"v_mov_b32 v{va}, s96")
    a("s_mov_b32 s99, 65536")
    a(f"buffer_store_dword v{va}, v{vb}, s[92:95], s99 offen")

def tick(a, i):
    if OPT["stamp"]:
        a("s_memtime s[60:61]")
        a("s_waitcnt lgkmcnt(0)")
        a(f"s_mov_b32 s{70 + i}, s60")

def tick_dump(a, slot, wave, va, vb, tag):
    if not OPT["stamp"]:
        return
    a(f"s_cmp_lg_u32 s20, {wave}")
    a(f"s_cbranch_scc1 L_nost_{tag}")
    for i in range(8):
        a(f"v_mov_b32 v{va}, s{70+i}")
        a("s_lshl_b32 s98, s2, 5")
        a(f"s_add_u32 s98, s98, {WS_USED + slot * 8192 + 4 * i}")
        a(f"v_mov_b32 v{vb}, s98")
        a(f"buffer_store_dword v{va}, v{vb}, s[92:95], 0 offen")
    a.label(f"L_nost_{tag}")

def pk(op, d, x, y, z=None, bc=()):
    def o(v):
        return v if isinstance(v, str) else f"v[{v}:{v+1}]"
    n = 3 if z is not None else 2
    hi = [0 if i in bc else 1 for i in range(n)]
    ops = [o(x), o(y)] + ([o(z)] if z is not None else [])
    t = f"v_pk_{op}_f32 v[{d}:{d+1}], " + ", ".join(ops)
    if bc:
        t += " op_sel_hi:[" + ",".join(map(str, hi)) + "]"
    return t

K1_LDS = 122880
SLOT = 24576
CS_LDS = 98304
V_LANE, V_XOFF, V_XOFF2, V_D0, V_R0, V_RC, V_FL = 1, 2, 3, 4, 7, 10, 11
V_CS = 12
V_NM, V_RS = 16, 18
V_U = 20
V_T = 24
V_KNM, V_KRS = 24, 40
V_X = 56
V_F = [104, 132]
V_ACC = 160
V_PRE = 55

def k1_mainloop(a, kind, tag):
    nu = 5 if kind == "q" else 6
    pitch = 192 if kind == "ffn" else 320
    wpitch = 3456 if kind == "ffn" else 3840
    NX = OPT["nx"]
    NST = 10
    vq = VQ(a)
    def rd_addr(u):
        if kind == "ffn":
            return V_R0, (u & 1) * 12288 + 64 * (u >> 1)
        if kind == "q":
            return V_R0, 16 * u
        return V_R0 + (u % 3), 160 * (u // 3)
    naddr = [V_R0, V_RC] if kind != "kv" else [V_R0, V_R0 + 1, V_R0 + 2, V_RC]
    def reads(u, fb, n):
        s_, j = divmod(n, 4)
        stoff = (s_ & 1) * SLOT
        out = []
        if u < nu:
            av, off = rd_addr(u)
            dst = fb + 4 * u
        else:
            av, off = V_RC, 0
            dst = fb + 24
        for sec in range(2):
            o = stoff + off + (32 * (j >> 1) + 8 * (j & 1) + 4 * sec) * pitch
            assert o < 65536
            out.append(f"ds_read_b64_tr_b16 {vr(dst + 2 * sec, 2)}, v{av} offset:{o}")
        return out
    def dma(stage, i):
        if OPT["no_dma"] and stage > 2: return
        a(f"s_add_u32 m0, s{28+i}, {(stage % 4) * SLOT}")
        if i == 0:
            a(f"s_mov_b32 s24, {stage * 64 * wpitch}")
        else:
            a("s_nop 0")
        vq.issue(f"D{stage}", f"buffer_load_dwordx4 v{V_D0+i}, s[12:15], s24 offen lds")
    def xreg(stage, j):
        return V_X + 16 * (stage % NX) + 4 * j
    def xl(stage, j):
        if OPT["no_x"] and stage >= NX: return
        av = V_XOFF if (j & 1) == 0 else V_XOFF2
        vq.issue(f"x{stage}_{j}", f"buffer_load_dwordx4 {vr(xreg(stage, j), 4)}, v{av}, s[8:11], 0 offen offset:{stage * 128 + 64 * (j >> 1)}")
    def swaps(stage, kh):
        return [f"v_permlane16_swap_b32 v{xreg(stage, 2 * kh) + i}, v{xreg(stage, 2 * kh + 1) + i}" for i in range(4)]

    for i in range(3): dma(0, i)
    xl(0, 0); xl(0, 1)
    xl(0, 2); xl(0, 3)
    for i in range(3): dma(1, i)
    for st in range(1, NX):
        for j in range(4): xl(st, j)
        if st == 1:
            for i in range(3): dma(2, i)
    for r in range(4):
        a(f"v_mov_b32 v{V_CS + r}, 0")
    vq.wait("D0")
    a("s_barrier")
    for u in list(range(nu)) + [6]:
        for l in reads(u, V_F[0], 0): a(l)
    vq.wait("x0_0", "x0_1")
    for l in swaps(0, 0): a(l)
    a("s_nop 0")
    for n in range(4 * NST):
        s_, j = divmod(n, 4)
        cur, nxt = V_F[n & 1], V_F[(n + 1) & 1]
        xf = xreg(s_, j)
        last = n == 4 * NST - 1
        sw, need = [], []
        if j & 1 and not last:
            ns, nkh = (s_, 1) if j == 1 else (s_ + 1, 0)
            need = [f"x{ns}_{2 * nkh}", f"x{ns}_{2 * nkh + 1}"]
            sw = swaps(ns, nkh)
        if j == 3 and s_ + 1 < NST:
            need.append(f"D{s_ + 1}")
        if j == 0 and s_ % 2 == 0:
            tick(a, s_ // 2)
        vq.wait(*need, lgkm=0)
        extra = []
        if j == 3 and not last:
            a("s_barrier")
            if s_ + 3 < NST:
                extra = [lambda i=i: dma(s_ + 3, i) for i in range(3)]
            if s_ & 1:
                for av in naddr:
                    if (s_ & 2) == 0: a(f"v_add_u32 v{av}, {2 * SLOT}, v{av}")
                    else: a(f"v_subrev_u32 v{av}, {2 * SLOT}, v{av}")
        if j == 0 and s_ == OPT["flag_st"]:
            extra.append(lambda: vq.issue("flag", f"buffer_load_dword v{V_FL}, off, s[44:47], s48 sc1"))
        if j == 0 and s_ == OPT["flag_st"] + 2:
            vq.wait("flag")
            a(f"v_cmp_ne_u32 vcc, 1, v{V_FL}")
            a(f"s_cbranch_vccnz L_k1_{tag}_spin")
            a.label(f"L_k1_{tag}_go")
            if kind == "kv":
                for g in range(4):
                    extra.append(lambda g=g: vq.issue("stat", f"buffer_load_dwordx4 {vr(V_KNM + 4 * g, 4)}, v{V_NM}, s[16:19], s49 offen offset:{32 * g} sc1"))
                    extra.append(lambda g=g: vq.issue("stat", f"buffer_load_dwordx4 {vr(V_KRS + 4 * g, 4)}, v{V_NM}, s[16:19], s50 offen offset:{32 * g} sc1"))
            else:
                extra.append(lambda: vq.issue("stat", f"buffer_load_dword v{V_RS}, v{V_NM}, s[16:19], s50 offen sc1"))
                extra.append(lambda: vq.issue("stat", f"buffer_load_dword v{V_NM}, v{V_NM}, s[16:19], s49 offen sc1"))
        fill = []
        for r in range(4):
            t = V_U + 2 * (r & 1)
            c = V_CS + 2 * (r & 1)
            fill.append(f"v_lshlrev_b32 v{t}, 16, v{cur + 24 + r}")
            fill.append(f"v_and_b32 v{t + 1}, 0xffff0000, v{cur + 24 + r}")
            fill.append(f"v_add_f32 v{c}, v{c}, v{t}")
            fill.append(f"v_add_f32 v{c + 1}, v{c + 1}, v{t + 1}")
        if OPT["no_fill"]: fill = []
        fill = sw + fill
        per = -(-len(fill) // nu)
        for u in range(nu):
            acc = vr(V_ACC + 16 * u, 16)
            w, x = vr(cur + 4 * u, 4), vr(xf, 4)
            c = "0" if n == 0 else acc
            if not OPT["no_mfma"]:
                if kind == "kv":
                    a(f"v_mfma_f32_32x32x16_bf16 {acc}, {x}, {w}, {c}")
                else:
                    a(f"v_mfma_f32_32x32x16_bf16 {acc}, {w}, {x}, {c}")
            if not last and not OPT["no_rd"]:
                for l in reads(u, nxt, n + 1): a(l)
                if u == nu - 1:
                    for l in reads(6, nxt, n + 1): a(l)
            for l in fill[:per]: a(l)
            fill = fill[per:]
            for _ in range(2 if len(extra) > nu - u else 1):
                if extra: extra.pop(0)()
        while extra: extra.pop(0)()
        if s_ + NX < NST:
            xl(s_ + NX, j)
    tick(a, 5)
    a(f"v_add_f32 v{V_CS}, v{V_CS}, v{V_CS+1}")
    a(f"v_add_f32 v{V_CS+2}, v{V_CS+2}, v{V_CS+3}")
    a(f"v_add_f32 v{V_CS}, v{V_CS}, v{V_CS+2}")
    a(f"v_and_b32 v{V_U}, 31, v{V_LANE}")
    a(f"v_mov_b32 v{V_CS+1}, v{V_CS}")
    a(f"s_lshl_b32 s32, s20, 7")
    a(f"s_add_u32 s32, s32, {CS_LDS}")
    a(f"v_permlane32_swap_b32 v{V_CS}, v{V_CS+1}")
    a(f"v_lshl_add_u32 v{V_U+1}, v{V_U}, 2, s32")
    a("s_nop 0")
    a(f"v_add_f32 v{V_CS}, v{V_CS}, v{V_CS+1}")
    a(f"ds_write_b32 v{V_U+1}, v{V_CS}")
    return vq

def k1_spin(a, tag):
    a.label(f"L_k1_{tag}_spin")
    a("s_mov_b32 s51, 0")
    a.label(f"L_k1_{tag}_spin2")
    a("s_sleep 4")
    a(f"buffer_load_dword v{V_FL}, off, s[44:47], s48 sc1")
    a("s_add_u32 s51, s51, 1")
    a("s_cmp_ge_u32 s51, 200000")
    a("s_waitcnt vmcnt(0)")
    a(f"s_cbranch_scc1 L_k1_{tag}_go")
    a(f"v_cmp_ne_u32 vcc, 1, v{V_FL}")
    a(f"s_cbranch_vccnz L_k1_{tag}_spin2")
    a(f"s_branch L_k1_{tag}_go")

def k1_store_base(a, vdst, region, nt, tbase_mul, T):
    a(f"s_lshl_b32 s32, s21, 2")
    a(f"s_lshr_b32 s35, s20, 1")
    a(f"s_add_u32 s32, s32, s35")
    a(f"s_mul_i32 s32, s32, {nt}")
    a(f"s_mul_i32 s35, s22, {tbase_mul}")
    a(f"s_add_u32 s32, s32, s35")
    a(f"s_lshl_b32 s32, s32, 2")
    a(f"s_and_b32 s35, s20, 1")
    a(f"s_lshl_b32 s35, s35, 1")
    a(f"s_add_u32 s32, s32, s35")
    a(f"s_lshl_b32 s32, s32, 10")
    a(f"s_add_u32 s32, s32, {region}")
    a(f"v_bfe_u32 v{T}, v{V_LANE}, 4, 1")
    a(f"v_lshlrev_b32 v{T}, 10, v{T}")
    a(f"v_lshrrev_b32 v{T+1}, 5, v{V_LANE}")
    a(f"v_lshl_add_u32 v{T}, v{T+1}, 8, v{T}")
    a(f"v_and_b32 v{T+1}, 15, v{V_LANE}")
    a(f"v_lshl_add_u32 v{T}, v{T+1}, 4, v{T}")
    a(f"v_add_u32 v{vdst}, s32, v{T}")

V_ST, V_CA = 52, 53

def k1_pre_fq(a, region, nt, mul):
    k1_store_base(a, V_ST, region, nt, mul, V_T)
    a(f"v_lshrrev_b32 v{V_CA}, 5, v{V_LANE}")
    a(f"v_lshlrev_b32 v{V_CA}, 4, v{V_CA}")
    a(f"v_add_u32 v{V_CA}, {CS_LDS}, v{V_CA}")
    a(f"v_and_b32 v{V_NM}, 31, v{V_LANE}")
    a(f"v_lshlrev_b32 v{V_NM}, 2, v{V_NM}")

def k1_epi_ffn(a, vq):
    T = V_T
    C1, V2 = T, T + 2
    vq.wait("stat", lgkm=0)
    a("s_barrier")
    CB = 56
    for u in range(6):
        for g in range(4):
            a(f"ds_read_b128 {vr(CB + 16 * u + 4 * g, 4)}, v{V_CA} offset:{u * 128 + g * 32}")
        if u == 0:
            a(f"v_mul_f32 v{V2}, v{V_RS}, v{V_RS}")
            a(f"v_mul_f32 v{C1}, {hex(LOG2E | 0x80000000)}, v{V_RS}")
            a(f"v_rcp_f32 v{V2}, v{V2}")
    E = T + 4
    for p in range(3):
        a(f"s_waitcnt lgkmcnt({[15, 8, 0][p]})")
        G, U = V_ACC + 32 * p, V_ACC + 32 * p + 16
        CG, CU = CB + 32 * p, CB + 32 * p + 16
        for r in range(0, 16, 2):
            a(pk("fma", G + r, V_NM, CG + r, G + r, bc=(0,)))
        for r in range(0, 16, 2):
            a(pk("mul", E + r, G + r, C1, bc=(1,)))
            a(pk("fma", U + r, V_NM, CU + r, U + r, bc=(0,)))
        for r in range(16):
            a(f"v_exp_f32 v{E+r}, v{E+r}")
        for r in range(0, 16, 2):
            a(pk("mul", G + r, G + r, U + r))
            a(pk("fma", E + r, E + r, V2, V2, bc=(1, 2)))
        for r in range(16):
            a(f"v_rcp_f32 v{E+r}, v{E+r}")
        a("s_nop 0")
        for r in range(0, 16, 2):
            a(pk("mul", G + r, G + r, E + r))
        for r in range(8):
            a(f"v_cvt_pk_bf16_f32 v{U+r}, v{G+2*r}, v{G+2*r+1}")
        a(f"s_mov_b32 s32, {p * 4096}")
        a(f"buffer_store_dwordx4 {vr(U, 4)}, v{V_ST}, s[16:19], s32 offen")
        a(f"buffer_store_dwordx4 {vr(U + 4, 4)}, v{V_ST}, s[16:19], s32 offen offset:512")

def phi16(a, G, E, rl, rs, bc):
    b1 = (1,) if bc else ()
    for r in range(0, 16, 2):
        a(pk("mul", E + r, G + r, rl(r), bc=b1))
    for r in range(16):
        a(f"v_min_f32 v{E+r}, 0, v{E+r}")
        a(f"v_max_f32 v{G+r}, 0, v{G+r}")
    for r in range(16):
        a(f"v_exp_f32 v{E+r}, v{E+r}")
    a("s_nop 0")
    for r in range(0, 16, 2):
        a(pk("add", E + r, E + r, V_EPS, bc=(1,)))
    for r in range(0, 16, 2):
        a(pk("fma", G + r, G + r, rs(r), E + r, bc=b1))

V_EPS = 12

def k1_epi_q(a, vq):
    T = V_T
    RL = T
    vq.wait("stat", lgkm=0)
    a("s_barrier")
    CB = 56
    for u in range(5):
        for g in range(4):
            a(f"ds_read_b128 {vr(CB + 16 * u + 4 * g, 4)}, v{V_CA} offset:{u * 128 + g * 32}")
    a(f"v_mul_f32 v{RL}, {hex(LOG2E)}, v{V_RS}")
    a(f"v_mov_b32 v{V_EPS}, {hex(EPS6)}")
    E = T + 4
    for u in range(5):
        a(f"s_waitcnt lgkmcnt({min(15, 16 - 4 * u)})")
        G, C = V_ACC + 16 * u, CB + 16 * u
        for r in range(0, 16, 2):
            a(pk("fma", G + r, V_NM, C + r, G + r, bc=(0,)))
        phi16(a, G, E, lambda r: RL, lambda r: V_RS, True)
        for r in range(8):
            a(f"v_cvt_pk_bf16_f32 v{C+r}, v{G+2*r}, v{G+2*r+1}")
        a(f"s_mov_b32 s32, {u * 4096}")
        a(f"buffer_store_dwordx4 {vr(C, 4)}, v{V_ST}, s[16:19], s32 offen")
        a(f"buffer_store_dwordx4 {vr(C + 4, 4)}, v{V_ST}, s[16:19], s32 offen offset:512")

def k1_epi_kv(a, vq):
    T = 56
    a(f"v_lshlrev_b32 v{T+3}, 2, v{V_U}")
    a(f"v_add_u32 v{T+3}, {CS_LDS}, v{T+3}")
    vq.wait("stat", lgkm=0)
    a("s_barrier")
    RL, CSV, E, P = 72, 88, 104, 120
    for u in range(6):
        a(f"ds_read_b32 v{CSV + 2 * u}, v{T+3} offset:{u * 128}")
    a(f"s_lshl_b32 s32, s20, 11")
    a(f"v_lshl_add_u32 v{T+4}, v{V_LANE}, 4, s32")
    a(f"v_add_u32 v{T+6}, 65536, v{T+4}")
    a(f"v_mov_b32 v{T+5}, {hex(ONES_BF)}")
    a(f"v_mov_b32 v{V_EPS}, {hex(EPS6)}")
    for r in range(16):
        a(f"v_mul_f32 v{RL+r}, {hex(LOG2E)}, v{V_KRS+r}")
    a("s_waitcnt lgkmcnt(0)")
    padmask = {0: 0x00f00000, 1: 0x0000f000, 2: 0xf00000f0}
    for u in range(6):
        G = V_ACC + 16 * u
        PK = P + 8 * (u & 1)
        for r in range(0, 16, 2):
            a(pk("fma", G + r, V_KNM + r, CSV + 2 * u, G + r, bc=(1,)))
        if u < 3:
            phi16(a, G, E, lambda r: RL + r, lambda r: V_KRS + r, False)
        else:
            for r in range(0, 16, 2):
                a(pk("mul", G + r, G + r, V_KRS + r))
        for r in range(8):
            a(f"v_cvt_pk_bf16_f32 v{PK+r}, v{G+2*r}, v{G+2*r+1}")
        if u >= 3:
            m = padmask[u - 3]
            a(f"s_mov_b32 s36, {hex(m)}")
            a(f"s_mov_b32 s37, {hex(m)}")
            for r in range(8):
                a(f"v_cndmask_b32 v{PK+r}, v{PK+r}, v{T+5}, s[36:37]")
        off = u * 16384
        av = T + 4 if off < 65536 else T + 6
        off &= 65535
        a(f"ds_write_b128 v{av}, {vr(PK, 4)} offset:{off}")
        a(f"ds_write_b128 v{av}, {vr(PK + 4, 4)} offset:{off + 1024}")
    T = V_T
    a("s_lshl_b32 s32, s20, 2")
    a("s_lshr_b32 s36, 0x2211100, s32")
    a("s_and_b32 s36, s36, 3")
    a("s_lshr_b32 s37, 0x2121010, s32")
    a("s_and_b32 s37, s37, 3")
    a("s_lshl_b32 s38, s36, 14")
    a("s_add_u32 s39, s37, 3")
    a("s_lshl_b32 s39, s39, 14")
    a(f"v_lshl_add_u32 v{T+16}, v{V_LANE}, 4, s38")
    a(f"v_lshl_add_u32 v{T+17}, v{V_LANE}, 4, s39")
    a("s_lshl_b32 s38, s36, 5")
    a(f"v_add_u32 v{T}, s38, v{V_U}")
    a(f"v_mul_u32_u24 v{T+1}, 2731, v{T}")
    a(f"v_lshrrev_b32 v{T+1}, 16, v{T+1}")
    a(f"v_mul_u32_u24 v{T+2}, 24, v{T+1}")
    a(f"v_sub_u32 v{T+2}, v{T}, v{T+2}")
    a("s_lshl_b32 s38, s21, 5")
    a("s_lshl_b32 s39, s22, 2")
    a("s_add_u32 s38, s38, s39")
    a("s_mul_i32 s38, s38, 1920")
    a(f"s_add_u32 s38, s38, {KVP_OFF}")
    a(f"v_mul_u32_u24 v{T+3}, 1920, v{T+1}")
    a(f"v_mul_u32_u24 v{T+4}, 96, v{T+2}")
    a(f"v_add3_u32 v{T+3}, v{T+3}, v{T+4}, s38")
    a(f"v_mov_b32 v{T+4}, {hex(OOB)}")
    a(f"v_cmp_gt_u32 vcc, 20, v{T+2}")
    a(f"v_lshrrev_b32 v{T+5}, 5, v{V_LANE}")
    a(f"v_lshlrev_b32 v{T+5}, 2, v{T+5}")
    a(f"v_cndmask_b32 v{T+3}, v{T+4}, v{T+3}, vcc")
    a("s_lshl_b32 s39, s37, 5")
    a(f"v_add_u32 v{T+5}, s39, v{T+5}")
    for rq in range(4):
        a(f"v_add_u32 v{T+6}, {8 * rq}, v{T+5}")
        a(f"v_mul_u32_u24 v{T+7}, 2731, v{T+6}")
        a(f"v_lshrrev_b32 v{T+7}, 16, v{T+7}")
        a(f"v_cmp_eq_u32 vcc, v{T+7}, v{T+1}")
        a(f"v_mul_u32_u24 v{T+8}, 24, v{T+7}")
        a(f"v_sub_u32 v{T+8}, v{T+6}, v{T+8}")
        a(f"v_lshl_add_u32 v{T+8}, v{T+8}, 2, v{T+3}")
        a(f"v_cndmask_b32 v{T+10+rq}, v{T+4}, v{T+8}, vcc")
    a("s_waitcnt lgkmcnt(0)")
    a("s_barrier")
    a("s_cmp_ge_u32 s20, 7")
    a("s_cbranch_scc1 L_k1_end")
    KB, VB, AC = 56, 120, 192
    def rd(i):
        a(f"ds_read_b128 {vr(KB + 4 * i, 4)}, v{T+16} offset:{i * 1024}")
        a(f"ds_read_b128 {vr(VB + 4 * i, 4)}, v{T+17} offset:{i * 1024}")
    for i in range(7): rd(i)
    for k in range(16):
        if k + 7 < 16:
            a("s_waitcnt lgkmcnt(12)")
        else:
            a(f"s_waitcnt lgkmcnt({2 * (15 - k)})")
        src = "0" if k == 0 else vr(AC, 16)
        a(f"v_mfma_f32_32x32x16_bf16 {vr(AC, 16)}, {vr(VB + 4 * k, 4)}, {vr(KB + 4 * k, 4)}, {src}")
        if k + 7 < 16: rd(k + 7)
    a("s_nop 7")
    a("s_nop 3")
    for rq in range(4):
        a(f"buffer_store_dwordx4 {vr(AC + 4 * rq, 4)}, v{T+10+rq}, s[16:19], 0 offen")

def quad_sum(a, v, t):
    a(f"v_mov_b32 v{t}, v{v}")
    a("s_nop 1")
    a(f"v_permlane32_swap_b32 v{v}, v{t}")
    a("s_nop 1")
    a(f"v_add_f32 v{v}, v{v}, v{t}")
    a(f"v_mov_b32 v{t}, v{v}")
    a("s_nop 1")
    a(f"v_permlane16_swap_b32 v{v}, v{t}")
    a("s_nop 1")
    a(f"v_add_f32 v{v}, v{v}, v{t}")

def rbf(a, v):
    a(f"v_cvt_pk_bf16_f32 v{v}, v{v}, v{v}")
    a(f"v_and_b32 v{v}, 0xffff0000, v{v}")

def k1_spare(a):
    T = V_T
    a("s_lshl_b32 s32, s21, 1")
    a("s_add_u32 s32, s32, s22")
    a("s_lshl_b32 s52, s32, 3")
    a("s_add_u32 s52, s52, s20")
    a("s_mul_i32 s33, s52, 20480")
    a(f"v_and_b32 v{T}, 15, v{V_LANE}")
    a(f"v_mul_u32_u24 v{T+1}, 1280, v{T}")
    a(f"v_lshrrev_b32 v{T+2}, 4, v{V_LANE}")
    a(f"v_lshl_add_u32 v{T+1}, v{T+2}, 4, v{T+1}")
    XR = 160
    for i in range(20):
        a(f"buffer_load_dwordx4 {vr(XR + 4 * i, 4)}, v{T+1}, s[8:11], s33 offen offset:{64 * i}")
    a("s_load_dwordx2 s[40:41], s[0:1], 48")
    a("s_load_dwordx2 s[42:43], s[0:1], 16")
    for i in range(5):
        a(f"v_add_u32 v{T+4}, {64 * i}, v{V_LANE}")
        a(f"v_mul_u32_u24 v{T+5}, 52429, v{T+4}")
        a(f"v_lshrrev_b32 v{T+5}, 19, v{T+5}")
        a(f"v_mul_u32_u24 v{T+6}, 10, v{T+5}")
        a(f"v_sub_u32 v{T+6}, v{T+4}, v{T+6}")
        a(f"v_mul_u32_u24 v{T+7}, 1280, v{T+5}")
        a(f"v_cmp_gt_u32 vcc, 20, v{T+5}")
        a(f"v_lshl_add_u32 v{64+i}, v{T+6}, 4, v{T+7}")
        a(f"v_mov_b32 v{T+7}, {hex(OOB)}")
        a(f"v_cndmask_b32 v{72+i}, v{T+7}, v{64+i}, vcc")
    a("s_mul_i32 s53, s20, 15360")
    a(f"v_bfe_u32 v{T+5}, v{V_LANE}, 2, 2")
    a(f"v_and_b32 v{T+6}, 3, v{V_LANE}")
    a(f"v_lshlrev_b32 v{T+6}, 3, v{T+6}")
    a(f"v_add_u32 v{T+6}, s53, v{T+6}")
    a(f"v_lshrrev_b32 v{T+7}, 1, v{T+2}")
    a(f"v_lshlrev_b32 v{T+7}, 4, v{T+7}")
    a(f"v_and_b32 v{T+8}, 1, v{T+2}")
    a(f"v_lshl_add_u32 v{T+7}, v{T+8}, 2, v{T+7}")
    a(f"v_add_u32 v{T+7}, v{T+7}, v{T+5}")
    a(f"v_mul_u32_u24 v{T+7}, 160, v{T+7}")
    a(f"v_add_u32 v80, v{T+7}, v{T+6}")
    a(f"v_lshl_add_u32 v{T+7}, v{T+2}, 3, v{T+5}")
    a(f"v_mul_u32_u24 v{T+7}, 160, v{T+7}")
    a(f"v_add_u32 v81, v{T+7}, v{T+6}")
    a(f"v_lshlrev_b32 v82, 4, v{V_LANE}")
    a(f"v_add_u32 v83, 4096, v82")
    a("s_waitcnt lgkmcnt(0)")
    srd(a, 84, 40, 41, F * D * 2)
    srd(a, 88, 42, 43, D * D * 2)
    def item_setup(kind, add, slot):
        a(f"s_add_u32 s34, s52, {add}")
        a("s_lshr_b32 s35, s34, 3")
        a("s_and_b32 s36, s34, 7")
        a(f"s_mul_i32 s37, s35, {32 * 1280 if kind == 'w2' else 20 * 1280}")
        a("s_mul_i32 s38, s36, 160")
        a(f"s_add_u32 s{54 + 2 * slot}, s37, s38")
        if kind == "w2":
            a("s_mul_i32 s37, s36, 54")
            a("s_add_u32 s37, s37, s35")
            a("s_mul_i32 s37, s37, 5120")
            a(f"s_add_u32 s{55 + 2 * slot}, s37, {W2F_OFF}")
            if add == 384:
                a("s_cmp_lt_u32 s34, 432")
                a(f"s_cselect_b32 s{54 + 2 * slot}, s{54 + 2 * slot}, {OOB}")
                a(f"s_cselect_b32 s{55 + 2 * slot}, s{55 + 2 * slot}, {OOB}")
        else:
            a("s_mul_i32 s37, s34, 5120")
            a(f"s_add_u32 s{55 + 2 * slot}, s37, {WOF_OFF}")
    rounds = ([("w2", 0), ("w2", 128), ("w2", 256)], [("wo", 0), ("wo", 128), ("w2", 384)])
    def round_loads(rnd):
        for slot, (kind, add) in enumerate(rnd):
            item_setup(kind, add, slot)
            for i in range(5):
                a(f"s_add_u32 m0, s53, {slot * 5120 + i * 1024}")
                a("s_nop 0")
                if kind == "w2":
                    a(f"buffer_load_dwordx4 v{64+i}, s[84:87], s{54 + 2 * slot} offen lds")
                else:
                    a(f"buffer_load_dwordx4 v{72+i}, s[88:91], s{54 + 2 * slot} offen lds")
    def round_out(rnd):
        for slot, (kind, add) in enumerate(rnd):
            R = 96 + 20 * slot
            av = 80 if kind == "w2" else 81
            sec = 8 * 160 if kind == "w2" else 4 * 160
            for nb in range(5):
                a(f"ds_read_b64_tr_b16 {vr(R + 4 * nb, 2)}, v{av} offset:{slot * 5120 + 32 * nb}")
                a(f"ds_read_b64_tr_b16 {vr(R + 4 * nb + 2, 2)}, v{av} offset:{slot * 5120 + 32 * nb + sec}")
            a("s_waitcnt lgkmcnt(0)")
            for nb in range(5):
                if nb < 4:
                    a(f"buffer_store_dwordx4 {vr(R + 4 * nb, 4)}, v82, s[16:19], s{55 + 2 * slot} offen offset:{nb * 1024}")
                else:
                    a(f"buffer_store_dwordx4 {vr(R + 4 * nb, 4)}, v83, s[16:19], s{55 + 2 * slot} offen")
    round_loads(rounds[0])
    SM, SQ, TT = T + 10, T + 12, T + 14
    a(f"s_mov_b32 s31, {hex(ONES_BF)}")
    for r in range(4):
        a(f"v_mov_b32 v{SM + r}, 0")
    for i in range(20):
        if i % 4 == 0:
            a(f"s_waitcnt vmcnt({15 + 16 - i})")
        for r in range(4):
            a(f"v_dot2_f32_bf16 v{SM + (r & 1)}, v{XR + 4 * i + r}, s31, v{SM + (r & 1)}")
    a("s_nop 2")
    a(f"v_add_f32 v{SM}, v{SM}, v{SM+1}")
    quad_sum(a, SM, TT)
    a(f"v_mul_f32 v{SM}, {hex(INV640 | 0x80000000)}, v{SM}")
    for i in range(80):
        t = TT + 2 * (i & 3)
        a(f"v_lshlrev_b32 v{t}, 16, v{XR + i}")
        a(f"v_and_b32 v{t+1}, 0xffff0000, v{XR + i}")
        a(pk("add", t, t, SM, bc=(1,)))
        a(pk("fma", SQ, t, t, SQ))
    a(f"v_add_f32 v{SQ}, v{SQ}, v{SQ+1}")
    quad_sum(a, SQ, TT)
    a(f"v_mul_f32 v{SQ}, {hex(INV640)}, v{SQ}")
    rbf(a, SQ)
    a(f"v_add_f32 v{SQ}, {hex(EPS5)}, v{SQ}")
    rbf(a, SQ)
    a(f"v_sqrt_f32 v{SQ}, v{SQ}")
    rbf(a, SM)
    rbf(a, SQ)
    a(f"v_rcp_f32 v{SQ}, v{SQ}")
    a(f"v_lshlrev_b32 v{TT}, 2, v{T}")
    a(f"v_mov_b32 v{TT+1}, {hex(OOB)}")
    a(f"v_cmp_gt_u32 vcc, 16, v{V_LANE}")
    a("s_lshl_b32 s33, s52, 6")
    a(f"s_add_u32 s33, s33, {ST_OFF}")
    a(f"v_cndmask_b32 v{TT}, v{TT+1}, v{TT}, vcc")
    a("s_add_u32 s34, s33, 8192")
    a(f"buffer_store_dword v{SM}, v{TT}, s[16:19], s33 offen sc1")
    a(f"buffer_store_dword v{SQ}, v{TT}, s[16:19], s34 offen sc1")
    a("s_waitcnt vmcnt(0)")
    a("s_barrier")
    tick(a, 0)
    a("s_cmp_lg_u32 s20, 0")
    a("s_cbranch_scc1 L_k1_sp_nofl")
    a("s_lshl_b32 s33, s32, 2")
    a(f"v_mov_b32 v{TT}, 1")
    a(f"buffer_store_dword v{TT}, off, s[44:47], s33 sc1")
    a.label("L_k1_sp_nofl")
    a("s_cmp_lt_u32 s52, 8")
    a("s_cbranch_scc0 L_k1_sp_nozero")
    a("s_lshl_b32 s34, s52, 7")
    a(f"s_add_u32 s34, s34, {FL_OFF}")
    a(f"v_and_b32 v{TT}, 31, v{V_LANE}")
    a(f"v_lshlrev_b32 v{TT}, 2, v{TT}")
    a(f"v_mov_b32 v{TT+1}, 0")
    a(f"buffer_store_dword v{TT+1}, v{TT}, s[16:19], s34 offen")
    a.label("L_k1_sp_nozero")
    round_out(rounds[0])
    round_loads(rounds[1])
    a("s_waitcnt vmcnt(0)")
    round_out(rounds[1])

def gen_k1(a):
    T = V_T
    a.raw(".globl k1_kernel\n.p2align 8\n.type k1_kernel,@function")
    a.label("k1_kernel")
    a("s_cmp_ge_u32 s2, 256")
    a("s_cbranch_scc1 L_k1_exit")
    a("s_load_dwordx2 s[4:5], s[0:1], 0")
    a("s_load_dwordx4 s[64:67], s[0:1], 64")
    a("s_load_dwordx2 s[36:37], s[0:1], 8")
    a("s_load_dwordx4 s[40:43], s[0:1], 32")
    a(f"v_and_b32 v{V_LANE}, 63, v0")
    a(f"v_lshrrev_b32 v{T}, 6, v0")
    a("s_and_b32 s32, s2, 7")
    a(f"v_readfirstlane_b32 s20, v{T}")
    if OPT["prefetch_code"]:
        a("s_getpc_b64 s[62:63]")
        a(f"v_lshlrev_b32 v{T+1}, 7, v0")
        a(f"v_min_u32 v{T+1}, L_code_end-k1_kernel-256, v{T+1}")
        a(f"global_load_dword v{V_PRE}, v{T+1}, s[62:63]")
    a("s_lshr_b32 s33, s2, 3")
    if OPT["k1map"] == "4x8":
        a("s_and_b32 s21, s32, 1")
        a("s_lshl_b32 s21, s21, 2")
        a("s_and_b32 s34, s33, 3")
        a("s_add_u32 s21, s21, s34")
        a("s_lshr_b32 s35, s32, 1")
        a("s_lshl_b32 s35, s35, 3")
        a("s_lshr_b32 s34, s33, 2")
        a("s_add_u32 s35, s35, s34")
    elif OPT["k1map"] == "2x16":
        a("s_lshr_b32 s21, s32, 1")
        a("s_lshl_b32 s21, s21, 1")
        a("s_and_b32 s34, s33, 1")
        a("s_add_u32 s21, s21, s34")
        a("s_and_b32 s35, s32, 1")
        a("s_lshl_b32 s35, s35, 4")
        a("s_lshr_b32 s34, s33, 1")
        a("s_add_u32 s35, s35, s34")
    elif OPT["k1map"] == "8x4":
        a("s_and_b32 s21, s33, 7")
        a("s_lshl_b32 s35, s32, 2")
        a("s_lshr_b32 s34, s33, 3")
        a("s_add_u32 s35, s35, s34")
    elif OPT["k1map"] == "1x32":
        a("s_mov_b32 s21, s32")
        a("s_mov_b32 s35, s33")
    a("s_lshl_b32 s32, s21, 3")
    a("s_add_u32 s32, s32, s20")
    a("s_lshl_b32 s49, s32, 7")
    a(f"s_add_u32 s49, s49, {ST_OFF}")
    a("s_add_u32 s50, s49, 8192")
    a("s_lshr_b32 s48, s32, 2")
    a("s_lshl_b32 s48, s48, 2")
    a("s_mul_i32 s32, s32, 40960")
    a(f"v_and_b32 v{T}, 15, v{V_LANE}")
    a(f"v_mul_u32_u24 v{T}, 1280, v{T}")
    a(f"v_lshrrev_b32 v{T+1}, 4, v{V_LANE}")
    a(f"v_lshl_add_u32 v{T}, v{T+1}, 4, v{T}")
    a(f"v_add_u32 v{V_XOFF}, s32, v{T}")
    a(f"v_add_u32 v{V_XOFF2}, 20480, v{V_XOFF}")
    a(f"v_lshrrev_b32 v{T+1}, 5, v{V_LANE}")
    a(f"v_lshlrev_b32 v{T+4}, 4, v{T+1}")
    a(f"v_bfe_u32 v{T+2}, v{V_LANE}, 2, 2")
    a(f"v_add_u32 v{T+4}, v{T+4}, v{T+2}")
    a(f"v_bfe_u32 v{T+5}, v{V_LANE}, 4, 1")
    a(f"v_lshlrev_b32 v{T+5}, 2, v{T+5}")
    a(f"v_and_b32 v{T+2}, 3, v{V_LANE}")
    a(f"v_add_u32 v{T+5}, v{T+5}, v{T+2}")
    a("s_waitcnt lgkmcnt(0)")
    srd(a, 8, 4, 5, S * D * 2)
    srd(a, 16, 66, 67, WS_USED)
    srd(a, 44, 64, 65, 256)
    if OPT["stamp"]:
        srd(a, 92, 66, 67, WS_USED + 16 * 8192)
        stamp(a, 0, T + 8, T + 9)
    a("s_cmp_lt_u32 s35, 18")
    a("s_cbranch_scc1 L_k1_ffn")
    a("s_cmp_lt_u32 s35, 26")
    a("s_cbranch_scc1 L_k1_kv")
    a("s_cmp_lt_u32 s35, 30")
    a("s_cbranch_scc1 L_k1_q")
    a("s_sub_u32 s22, s35, 30")
    k1_spare(a)
    stamp(a, 1, V_U, V_U + 1)
    a("s_branch L_k1_end")

    a.label("L_k1_ffn")
    a("s_mov_b32 s22, s35")
    a("s_cmp_lt_u32 s20, 4")
    a("s_cselect_b32 s12, s40, s42")
    a("s_cselect_b32 s13, s41, s43")
    a("s_cselect_b32 s28, 0, 12288")
    a("s_and_b32 s13, s13, 0xffff")
    a(f"s_mov_b32 s14, {D * F * 2}")
    a("s_mov_b32 s15, 0x20000")
    a("s_and_b32 s32, s20, 3")
    a("s_mul_i32 s33, s32, 3072")
    a("s_add_u32 s28, s28, s33")
    a("s_add_u32 s29, s28, 1024")
    a("s_add_u32 s30, s28, 2048")
    a("s_mul_i32 s33, s32, 192")
    a("s_mul_i32 s34, s22, 192")
    for i in range(3):
        a(f"s_add_u32 s38, s33, {64 * i}")
        a(f"v_add_u32 v{T}, s38, v{V_LANE}")
        a(f"v_mul_u32_u24 v{T+1}, 43691, v{T}")
        a(f"v_lshrrev_b32 v{T+1}, 19, v{T+1}")
        a(f"v_mul_u32_u24 v{T+2}, 12, v{T+1}")
        a(f"v_sub_u32 v{T+2}, v{T}, v{T+2}")
        a(f"v_mul_u32_u24 v{T+1}, 3456, v{T+1}")
        a(f"v_lshl_add_u32 v{T+1}, v{T+2}, 4, v{T+1}")
        a(f"v_add_u32 v{V_D0+i}, s34, v{T+1}")
    a(f"v_mul_u32_u24 v{V_R0}, 192, v{T+4}")
    a(f"v_lshl_add_u32 v{V_R0}, v{T+5}, 3, v{V_R0}")
    a("s_min_u32 s32, s20, 5")
    a("s_and_b32 s33, s32, 1")
    a("s_mul_i32 s33, s33, 12288")
    a("s_lshr_b32 s32, s32, 1")
    a("s_lshl_b32 s32, s32, 6")
    a("s_add_u32 s32, s32, s33")
    a(f"v_add_u32 v{V_RC}, s32, v{V_R0}")
    k1_pre_fq(a, HB_OFF, 54, 3)
    vq = k1_mainloop(a, "ffn", "ffn")
    stamp(a, 1, V_U + 2, V_U + 3)
    k1_epi_ffn(a, vq)
    a("s_branch L_k1_end")
    k1_spin(a, "ffn")

    def qkv_common(kind):
        srd(a, 12, 36, 37, D * 1920 * 2)
        a("s_lshl_b32 s28, s20, 10")
        a("s_add_u32 s29, s28, 8192")
        a("s_add_u32 s30, s28, 16384")
        a("s_lshl_b32 s33, s20, 6")
        if kind == "q":
            a("s_mul_i32 s34, s22, 320")
        else:
            a("s_mul_i32 s34, s22, 160")
            a("s_add_u32 s34, s34, 1280")
        for i in range(3):
            a(f"s_add_u32 s38, s33, {512 * i}")
            a(f"v_add_u32 v{T}, s38, v{V_LANE}")
            a(f"v_mul_u32_u24 v{T+1}, 52429, v{T}")
            a(f"v_lshrrev_b32 v{T+1}, 20, v{T+1}")
            a(f"v_mul_u32_u24 v{T+2}, 20, v{T+1}")
            a(f"v_sub_u32 v{T+2}, v{T}, v{T+2}")
            a(f"v_mul_u32_u24 v{T+3}, 3840, v{T+1}")
            a(f"v_lshl_add_u32 v{T+3}, v{T+2}, 4, v{T+3}")
            if kind == "kv":
                a(f"v_cmp_lt_u32 vcc, 9, v{T+2}")
                a(f"v_add_u32 v{T+6}, {1280 - 160}, v{T+3}")
                a("s_nop 0")
                a(f"v_cndmask_b32 v{T+3}, v{T+3}, v{T+6}, vcc")
            a(f"v_add_u32 v{V_D0+i}, s34, v{T+3}")
            if i == 2:
                a(f"v_cmp_lt_u32 vcc, 63, v{T+1}")
                a(f"v_mov_b32 v{T+6}, {hex(OOB)}")
                a("s_nop 0")
                a(f"v_cndmask_b32 v{V_D0+i}, v{V_D0+i}, v{T+6}, vcc")

    a.label("L_k1_kv")
    a("s_sub_u32 s22, s35, 18")
    qkv_common("kv")
    def nib(l):
        v = 0
        for i, x in enumerate(l): v |= x << (4 * i)
        return v
    tabs = [(0, nib([0, 1, 2, 3, 4, 7, 5, 6])), (28, nib([0, 1, 2, 7, 3, 4, 5, 6])), (48, nib([2, 0, 3, 4, 5, 6, 7, 1]))]
    a(f"v_mul_u32_u24 v{T+6}, 320, v{T+4}")
    a(f"v_lshlrev_b32 v{T+7}, 2, v{T+5}")
    for u, (ws, tb) in enumerate(tabs):
        a(f"s_mov_b32 s32, {hex(tb)}")
        a(f"v_bfe_u32 v{T}, s32, v{T+7}, 4")
        a(f"v_lshl_add_u32 v{T}, v{T}, 3, v{T+6}")
        a(f"v_add_u32 v{V_R0+u}, {2 * ws}, v{T}")
    a(f"v_mov_b32 v{V_RC}, v{V_R0}")
    for w in (1, 2, 3, 4, 5):
        a(f"s_cmp_eq_u32 s20, {w}")
        a(f"s_cselect_b64 s[38:39], -1, 0")
        a(f"v_add_u32 v{T}, {160 * (w // 3)}, v{V_R0 + (w % 3)}")
        a(f"v_cndmask_b32 v{V_RC}, v{V_RC}, v{T}, s[38:39]")
    a(f"v_lshrrev_b32 v{V_NM}, 5, v{V_LANE}")
    a(f"v_lshlrev_b32 v{V_NM}, 4, v{V_NM}")
    vq = k1_mainloop(a, "kv", "kv")
    stamp(a, 1, V_U + 2, V_U + 3)
    k1_epi_kv(a, vq)
    a("s_branch L_k1_end")
    k1_spin(a, "kv")

    a.label("L_k1_q")
    a("s_sub_u32 s22, s35, 26")
    qkv_common("q")
    a(f"v_lshrrev_b32 v{T}, 2, v{T+5}")
    a(f"v_lshlrev_b32 v{T}, 1, v{T}")
    a(f"v_and_b32 v{T+1}, 1, v{T+5}")
    a(f"v_add_u32 v{T}, v{T}, v{T+1}")
    a(f"v_mul_u32_u24 v{T}, 80, v{T}")
    a(f"v_bfe_u32 v{T+1}, v{T+5}, 1, 1")
    a(f"v_lshl_add_u32 v{T}, v{T+1}, 3, v{T}")
    a(f"v_mul_u32_u24 v{T+6}, 320, v{T+4}")
    a(f"v_add_u32 v{V_R0}, v{T}, v{T+6}")
    a("s_min_u32 s32, s20, 4")
    a("s_lshl_b32 s32, s32, 4")
    a(f"v_add_u32 v{V_RC}, s32, v{V_R0}")
    k1_pre_fq(a, PQ_OFF, 20, 5)
    vq = k1_mainloop(a, "q", "q")
    stamp(a, 1, V_U + 2, V_U + 3)
    k1_epi_q(a, vq)
    a.label("L_k1_end")
    if OPT["stamp"]:
        tick(a, 6)
        a("s_waitcnt vmcnt(0)")
        stamp(a, 2, V_U + 2, V_U + 3)
        tick_dump(a, 3, 0, V_U + 2, V_U + 3, "k1")
    a.label("L_k1_exit")
    a("s_endpgm")
    k1_spin(a, "q")

K2_LDS = 122880
W_LANE, W_L16, W_L16B, W_T = 1, 2, 3, 4
W_PRE = 27
W_RING = 28
W_PQ = 136
W_Z = 216
W_MX = 236
W_X = 240
A_O, A_S, A_M = 0, 80, 160

def k2_producer(a):
    T = W_T
    PB = W_RING
    PW = 160
    a(f"v_and_b32 v{T}, 15, v{W_LANE}")
    a(f"v_lshrrev_b32 v{T+1}, 4, v{W_LANE}")
    a(f"v_cmp_gt_u32 vcc, 3, v{T+1}")
    a(f"v_mul_u32_u24 v{T+2}, 96, v{T}")
    a(f"v_lshl_add_u32 v{T+2}, v{T+1}, 5, v{T+2}")
    a(f"v_mov_b32 v{T+4}, {hex(OOB)}")
    a(f"v_cndmask_b32 v{T+2}, v{T+4}, v{T+2}, vcc")
    a(f"v_cmp_gt_u32 vcc, 4, v{T}")
    a(f"v_add_u32 v{T+3}, {16 * 96}, v{T+2}")
    a("s_mul_i32 s32, s21, 1920")
    a(f"s_add_u32 s32, s32, {KVP_OFF}")
    a(f"v_cndmask_b32 v{T+3}, v{T+4}, v{T+3}, vcc")
    for p in range(8):
        for tl in range(2):
            for h in range(2):
                a(f"buffer_load_dwordx4 {vr(PB + 16 * p + 8 * tl + 4 * h, 4)}, v{T+2+tl}, s[16:19], s32 offen offset:{16 * h}")
        if p < 7:
            a(f"s_add_u32 s32, s32, {32 * 1920}")
    a("s_lshl_b32 s32, s21, 3")
    a("s_add_u32 s32, s32, s22")
    a("s_mul_i32 s32, s32, 5120")
    a(f"s_add_u32 s32, s32, {WOF_OFF}")
    for nb in range(5):
        if nb < 4:
            a(f"buffer_load_dwordx4 {vr(PW + 4 * nb, 4)}, v{W_L16}, s[16:19], s32 offen offset:{nb * 1024}")
        else:
            a(f"buffer_load_dwordx4 {vr(PW + 4 * nb, 4)}, v{W_L16B}, s[16:19], s32 offen")
    a(f"v_cmp_eq_u32 vcc, 2, v{T+1}")
    a(f"v_mov_b32 v{PW+20}, 0")
    a(f"v_mov_b32 v{PW+21}, 0")
    a(f"v_mov_b32 v{PW+23}, 0")
    a(f"v_mov_b32 v{T+5}, 0x3f80")
    a(f"v_cndmask_b32 v{PW+22}, 0, v{T+5}, vcc")
    a("s_lshr_b32 s33, s21, 3")
    a("s_bfe_u32 s34, s21, 0x20001")
    a("s_and_b32 s35, s21, 1")
    a("s_mul_i32 s35, s35, 20")
    a("s_mul_i32 s38, s22, 20")
    a("s_mul_i32 s39, s33, 5")
    a("s_add_u32 s38, s38, s39")
    a("s_mul_i32 s40, s38, 5120")
    a("s_lshl_b32 s41, s34, 8")
    a("s_add_u32 s40, s40, s41")
    a(f"s_add_u32 s40, s40, {MF_OFF}")
    a("s_lshl_b32 s42, s38, 6")
    a("s_lshl_b32 s41, s34, 4")
    a("s_add_u32 s42, s42, s41")
    a(f"s_add_u32 s42, s42, {ZF_OFF}")
    for tl in range(2):
        a(f"v_lshlrev_b32 v{T+6}, 2, v{T+1}")
        a(f"v_add_u32 v{T+6}, s35, v{T+6}")
        if tl:
            a(f"v_add_u32 v{T+6}, 16, v{T+6}")
        a(f"v_lshrrev_b32 v{T+7}, 3, v{T+6}")
        a(f"v_bfe_u32 v{T+8}, v{T+6}, 2, 1")
        a(f"v_lshlrev_b32 v{T+8}, 3, v{T+8}")
        a(f"v_mul_u32_u24 v{T+9}, 5120, v{T+7}")
        a(f"v_lshl_add_u32 v{T+9}, v{T}, 4, v{T+9}")
        a(f"v_cmp_eq_u32 vcc, 0, v{T}")
        a(f"v_add3_u32 v{T+10+tl}, v{T+9}, v{T+8}, s40")
        a(f"v_lshl_add_u32 v{T+9}, v{T+7}, 6, v{T+8}")
        a(f"v_add_u32 v{T+12+tl}, s42, v{T+9}")
        a(f"v_cndmask_b32 v{T+12+tl}, v{T+4}, v{T+12+tl}, vcc")
        if tl:
            a(f"v_cmp_eq_u32 vcc, 0, v{T+1}")
            a("s_nop 1")
            a(f"v_cndmask_b32 v{T+10+tl}, v{T+4}, v{T+10+tl}, vcc")
            a(f"v_cndmask_b32 v{T+12+tl}, v{T+4}, v{T+12+tl}, vcc")
    a("s_lshl_b32 s32, s22, 7")
    a("s_lshl_b32 s33, s21, 2")
    a("s_add_u32 s32, s32, s33")
    a(f"s_add_u32 s32, s32, {FL_OFF}")
    for p in range(1, 8):
        a(f"s_waitcnt vmcnt({5 + 4 * (7 - p)})")
        for r in range(0, 16, 2):
            a(pk("add", PB + r, PB + r, PB + 16 * p + r))
    for r in range(8):
        a(f"v_cvt_pk_bf16_f32 v{PB+16+r}, v{PB+2*r}, v{PB+2*r+1}")
    a("s_waitcnt vmcnt(0)")
    a("s_nop 0")
    DD = PB + 32
    for nb in range(6):
        for tl in range(2):
            a(f"v_mfma_f32_16x16x32_bf16 {vr(DD + 8 * nb + 4 * tl, 4)}, {vr(PB + 16 + 4 * tl, 4)}, {vr(PW + 4 * nb, 4)}, 0")
    a("s_mov_b32 s43, 4096")
    a(f"v_mov_b32 v{T+5}, 1")
    for nb in range(6):
        for tl in range(2):
            d = DD + 8 * nb + 4 * tl
            if nb >= 3: a("s_nop 1" if nb < 5 else "s_nop 3")
            a(f"v_cvt_pk_bf16_f32 v{d}, v{d}, v{d+1}")
            a(f"v_cvt_pk_bf16_f32 v{d+1}, v{d+2}, v{d+3}")
            if nb < 4:
                a(f"buffer_store_dwordx2 {vr(d, 2)}, v{T+10+tl}, s[16:19], 0 offen offset:{nb * 1024} sc1")
            elif nb == 4:
                a(f"buffer_store_dwordx2 {vr(d, 2)}, v{T+10+tl}, s[16:19], s43 offen sc1")
            else:
                a(f"buffer_store_dwordx2 {vr(d, 2)}, v{T+12+tl}, s[16:19], 0 offen sc1")
    a("s_waitcnt vmcnt(0)")
    a(f"buffer_store_dword v{T+5}, off, s[16:19], s32 sc1")

def gen_k2(a):
    T = W_T
    a.raw(".globl k2_kernel\n.p2align 8\n.type k2_kernel,@function")
    a.label("k2_kernel")
    a("s_cmp_ge_u32 s2, 256")
    a("s_cbranch_scc1 L_k2_end")
    a("s_load_dwordx2 s[4:5], s[0:1], 0")
    a("s_load_dwordx2 s[6:7], s[0:1], 72")
    a("s_load_dwordx2 s[36:37], s[0:1], 56")
    a(f"v_and_b32 v{W_LANE}, 63, v0")
    a(f"v_lshrrev_b32 v{T}, 6, v0")
    a(f"v_lshlrev_b32 v{W_L16}, 4, v{W_LANE}")
    a(f"v_readfirstlane_b32 s20, v{T}")
    a(f"v_add_u32 v{W_L16B}, 4096, v{W_L16}")
    if OPT["prefetch_code"]:
        a("s_getpc_b64 s[62:63]")
        a(f"v_lshlrev_b32 v{T+1}, 7, v0")
        a(f"v_min_u32 v{T+1}, L_code_end-k2_kernel-256, v{T+1}")
        a(f"global_load_dword v{W_PRE}, v{T+1}, s[62:63]")
    a("s_and_b32 s32, s2, 7")
    a("s_lshr_b32 s33, s2, 3")
    if OPT["k2map"] == "8x4":
        a("s_lshr_b32 s21, s32, 1")
        a("s_lshl_b32 s21, s21, 3")
        a("s_and_b32 s34, s33, 7")
        a("s_add_u32 s21, s21, s34")
        a("s_and_b32 s22, s32, 1")
        a("s_lshl_b32 s22, s22, 2")
        a("s_lshr_b32 s34, s33, 3")
        a("s_add_u32 s22, s22, s34")
    elif OPT["k2map"] == "4x8":
        a("s_lshl_b32 s21, s32, 2")
        a("s_and_b32 s34, s33, 3")
        a("s_add_u32 s21, s21, s34")
        a("s_lshr_b32 s22, s33, 2")
    elif OPT["k2map"] == "16x2":
        a("s_and_b32 s21, s32, 1")
        a("s_lshl_b32 s21, s21, 4")
        a("s_and_b32 s34, s33, 15")
        a("s_add_u32 s21, s21, s34")
        a("s_lshr_b32 s22, s32, 1")
        a("s_lshl_b32 s22, s22, 1")
        a("s_lshr_b32 s34, s33, 4")
        a("s_add_u32 s22, s22, s34")
    a("s_mul_i32 s32, s20, 15")
    a("s_mul_i32 s23, s21, 54")
    a("s_add_u32 s23, s23, s32")
    a("s_lshl_b32 s23, s23, 12")
    a("s_mul_i32 s24, s22, 54")
    a("s_add_u32 s24, s24, s32")
    a("s_mul_i32 s24, s24, 5120")
    a(f"s_add_u32 s24, s24, {W2F_OFF}")
    a("s_mul_i32 s33, s20, 5")
    a("s_mul_i32 s25, s21, 20")
    a("s_add_u32 s25, s25, s33")
    a("s_lshl_b32 s25, s25, 12")
    a(f"s_add_u32 s25, s25, {PQ_OFF}")
    a("s_mul_i32 s26, s22, 20")
    a("s_add_u32 s26, s26, s33")
    a("s_lshl_b32 s28, s26, 6")
    a(f"s_add_u32 s28, s28, {ZF_OFF}")
    a("s_mul_i32 s26, s26, 5120")
    a(f"s_add_u32 s26, s26, {MF_OFF}")
    a("s_lshl_b32 s30, s22, 7")
    a(f"s_add_u32 s30, s30, {FL_OFF}")
    a("s_waitcnt lgkmcnt(0)")
    srd(a, 16, 6, 7, WS_USED)
    if OPT["stamp"]:
        srd(a, 92, 6, 7, WS_USED + 16 * 8192)
        stamp(a, 4, T + 20, T + 21)
    vq = VQ(a)
    def ring_loads(k):
        R = W_RING + 36 * (k % 3)
        for rb in range(4):
            vq.issue(f"R{k}", f"buffer_load_dwordx4 {vr(R + 4 * rb, 4)}, v{W_L16}, s[16:19], s23 offen offset:{rb * 1024}")
        for nb in range(5):
            if nb < 4:
                vq.issue(f"R{k}", f"buffer_load_dwordx4 {vr(R + 16 + 4 * nb, 4)}, v{W_L16}, s[16:19], s24 offen offset:{nb * 1024}")
            else:
                vq.issue(f"R{k}", f"buffer_load_dwordx4 {vr(R + 16 + 4 * nb, 4)}, v{W_L16B}, s[16:19], s24 offen")
        a("s_add_u32 s23, s23, 4096")
        a("s_add_u32 s24, s24, 5120")
    def setup():
        srd(a, 8, 4, 5, S * D * 2)
        srd(a, 12, 36, 37, S * D * 2)
        a(f"v_and_b32 v{T}, 31, v{W_LANE}")
        a(f"v_lshlrev_b32 v{T}, 2, v{T}")
        a(f"v_lshrrev_b32 v{T+2}, 4, v{W_LANE}")
        a(f"v_lshlrev_b32 v{T+3}, 4, v{T+2}")
        a("s_lshl_b32 s33, s21, 2")
        a("s_add_u32 s33, s33, s20")
        a("s_mul_i32 s33, s33, 20480")
        a("s_mul_i32 s34, s22, 160")
        a("s_add_u32 s33, s33, s34")
        a(f"v_and_b32 v{T+4}, 15, v{W_LANE}")
        a(f"v_mul_u32_u24 v{T+4}, 1280, v{T+4}")
        a(f"v_lshl_add_u32 v{T+4}, v{T+2}, 3, v{T+4}")
        a(f"v_add_u32 v{T+4}, s33, v{T+4}")
        for r in range(4):
            a(f"s_sub_u32 s33, s20, {r + 1}")
            a("s_and_b32 s33, s33, 3")
            a("s_mul_i32 s33, s33, 10240")
            a(f"s_add_u32 s33, s33, {r * 30720}")
            a(f"v_add_u32 v{T + 6 + r}, s33, v{W_L16}")
        a("s_mul_i32 s33, s20, 30720")
        a(f"v_add_u32 v{T+5}, s33, v{W_L16}")
    NK, SKIP = 15, 6
    a("s_cmp_lg_u32 s20, 3")
    a("s_cbranch_scc1 L_k2_w012")
    a("s_setprio 2")
    k2_producer(a)
    a("s_setprio 0")
    tick(a, 7)
    save = (list(vq.q), vq.done)
    for k in range(3): ring_loads(SKIP + k)
    early = [e for e in [("pq", OPT["k2_pq"])] if e[1] < SKIP]
    def pq_loads(u):
        for rb in range(4):
            vq.issue("pq", f"buffer_load_dwordx4 {vr(W_PQ + 20 * rb + 4 * u, 4)}, v{W_L16}, s[16:19], s25 offen offset:{rb * 1024}")
        a("s_add_u32 s25, s25, 4096")
    npre = max(0, min(5, SKIP - OPT["k2_pq"]))
    for u in range(npre): pq_loads(u)
    setup()
    for r in range(80):
        a(f"v_accvgpr_write_b32 a{A_O + r}, 0")
    a("s_waitcnt vmcnt(0)")
    a("s_branch L_k2_join")
    vq.q, vq.done = save
    a.label("L_k2_w012")
    for k in range(3): ring_loads(k)
    setup()
    def mreg(u, nb):
        i = 5 * u + nb
        return ar(A_M + 4 * i, 4) if i < 24 else vr(W_MX, 4)
    def mfmas(k, first):
        R = W_RING + 36 * (k % 3)
        L = []
        for rb in range(4):
            for nb in range(5):
                acc = ar(A_O + 20 * rb + 4 * nb, 4)
                L.append(f"v_mfma_f32_16x16x32_bf16 {acc}, {vr(R + 16 + 4 * nb, 4)}, {vr(R + 4 * rb, 4)}, {'0' if first else acc}")
        return L
    NT = T + 10
    def norm(rb):
        P = W_PQ + 20 * rb
        N = NT
        for hd in range(2):
            a(f"v_mov_b32 v{N + 2 * hd}, {hex(EPS6)}")
            a(f"v_mov_b32 v{N + 2 * hd + 1}, 0")
        for i in range(10):
            for hd in range(2):
                dn = N + 2 * hd + (i & 1)
                a(f"v_dot2_f32_bf16 v{dn}, v{P + 10 * hd + i}, v{W_Z + 10 * hd + i}, v{dn}")
        a("s_nop 2")
        for hd in range(2):
            a(f"v_add_f32 v{N + 2 * hd}, v{N + 2 * hd}, v{N + 2 * hd + 1}")
        for hd in range(2):
            a(f"v_rcp_f32 v{N + 2 * hd}, v{N + 2 * hd}")
        E = N + 4
        for i0 in range(0, 20, 4):
            for i in range(i0, i0 + 4):
                e = E + 2 * (i & 3)
                a(f"v_lshlrev_b32 v{e}, 16, v{P + i}")
                a(f"v_and_b32 v{e + 1}, 0xffff0000, v{P + i}")
            for i in range(i0, i0 + 4):
                e = E + 2 * (i & 3)
                a(pk("mul", e, e, N + 2 * (i // 10), bc=(1,)))
            for i in range(i0, i0 + 4):
                e = E + 2 * (i & 3)
                a(f"v_cvt_pk_bf16_f32 v{P + i}, v{e}, v{e + 1}")
    def dump(which, accbase, tag):
        for r in range(4):
            a(f"s_cmp_eq_u32 s20, {r}")
            a(f"s_cbranch_scc1 L_k2_skip_{tag}{r}")
            for nb in range(5):
                a(f"ds_write_b128 v{T + 6 + r}, {ar(accbase + 20 * r + 4 * nb, 4)} offset:{which * 5120 + nb * 1024}")
            a.label(f"L_k2_skip_{tag}{r}")
    KF, KS = OPT["k2_flag"], OPT["k2_s"]
    for k in range(NK):
        if k == SKIP:
            a.label("L_k2_join")
            tick(a, 0)
        vq.wait(f"R{k}")
        for l in mfmas(k, k == 0): a(l)
        if k == KF - 1:
            vq.issue("flag", f"buffer_load_dword v{T+1}, v{T}, s[16:19], s30 offen sc1")
        if k + 3 < NK:
            ring_loads(k + 3)
        if OPT["k2_pq"] <= k < OPT["k2_pq"] + 5:
            pq_loads(k - OPT["k2_pq"])
        if k == KF:
            tick(a, 1)
            vq.wait("flag")
            a(f"v_cmp_ne_u32 vcc, 1, v{T+1}")
            a("s_cbranch_vccnz L_k2_spin")
            a.label("L_k2_go")
            tick(a, 2)
            for u in range(5):
                vq.issue("z", f"buffer_load_dwordx4 {vr(W_Z + 4 * u, 4)}, v{T+3}, s[16:19], s28 offen offset:{u * 64} sc1")
        if KF <= k < KF + 2:
            for u in (range(3) if k == KF else range(3, 5)):
                for nb in range(5):
                    if nb < 4:
                        vq.issue("M", f"buffer_load_dwordx4 {mreg(u, nb)}, v{W_L16}, s[16:19], s26 offen offset:{nb * 1024} sc1")
                    else:
                        vq.issue("M", f"buffer_load_dwordx4 {mreg(u, nb)}, v{W_L16B}, s[16:19], s26 offen sc1")
                a("s_add_u32 s26, s26, 5120")
        if k == KF + 2:
            for nb in range(5):
                vq.issue("x", f"buffer_load_dwordx2 {vr(W_X + 2 * nb, 2)}, v{T+4}, s[8:11], 0 offen offset:{nb * 32}")
        if k in (KS - 2, KS - 1):
            vq.wait("pq", "z")
            norm(2 * (k - KS + 2)); norm(2 * (k - KS + 2) + 1)
        if k == KS:
            tick(a, 3)
            vq.wait("M")
            a("s_nop 0")
            for u in range(5):
                for rb in range(4):
                    for nb in range(5):
                        acc = ar(A_S + 20 * rb + 4 * nb, 4)
                        a(f"v_mfma_f32_16x16x32_bf16 {acc}, {mreg(u, nb)}, {vr(W_PQ + 20 * rb + 4 * u, 4)}, {'0' if u == 0 else acc}")
            if KS == NK - 1:
                a("s_nop 7")
        if k == min(KS + 1, NK - 1):
            dump(1, A_S, "s")
    tick(a, 4)
    a("s_nop 7")
    dump(0, A_O, "o")
    N = W_RING
    for r in range(4):
        a(f"s_cmp_lg_u32 s20, {r}")
        a(f"s_cbranch_scc1 L_k2_own{r}")
        for i in range(20):
            a(f"v_accvgpr_read_b32 v{N + i}, a{A_O + 20 * r + i}")
            a(f"v_accvgpr_read_b32 v{N + 20 + i}, a{A_S + 20 * r + i}")
        a.label(f"L_k2_own{r}")
    XE = N + 160
    vq.wait("x")
    for i in range(10):
        a(f"v_lshlrev_b32 v{XE + 2 * i}, 16, v{W_X + i}")
        a(f"v_and_b32 v{XE + 2 * i + 1}, 0xffff0000, v{W_X + i}")
    a(f"v_mov_b32 v{T+10}, {hex(LOG2E | 0x80000000)}")
    a(f"v_mov_b32 v{T+12}, 1.0")
    a("s_waitcnt lgkmcnt(0)")
    a("s_barrier")
    tick(a, 5)
    RD = N + 40
    order = [(k, i) for i0 in (0, 5) for k in range(3) for i in range(i0, i0 + 5)]
    for k, i in order[:15]:
        a(f"ds_read_b128 {vr(RD + 40 * k + 4 * i, 4)}, v{T+5} offset:{k * 10240 + i * 1024}")
    for k in range(3):
        a(f"s_waitcnt lgkmcnt({10})")
        for i in range(0, 20, 2):
            a(pk("add", N + i, N + i, RD + 40 * k + i))
        for kk, i in order[15 + 5 * k:20 + 5 * k]:
            a(f"ds_read_b128 {vr(RD + 40 * kk + 4 * i, 4)}, v{T+5} offset:{kk * 10240 + i * 1024}")
    E = RD
    for i in range(0, 20, 2):
        a(pk("mul", E + i, N + i, T + 10, bc=(1,)))
    for i in range(20):
        a(f"v_exp_f32 v{E + i}, v{E + i}")
    for k in range(3):
        a(f"s_waitcnt lgkmcnt({10 - 5 * k})")
        for i in range(20, 40, 2):
            a(pk("add", N + i, N + i, RD + 40 * k + i))
    for i in range(0, 20, 2):
        a(pk("add", E + i, E + i, T + 12, bc=(1,)))
        a(pk("mul", N + i, N + i, N + 20 + i))
    for i in range(20):
        a(f"v_rcp_f32 v{E + i}, v{E + i}")
    a("s_nop 0")
    for i in range(0, 20, 2):
        a(pk("fma", XE + i, N + i, E + i, XE + i))
    for nb in range(5):
        a(f"v_cvt_pk_bf16_f32 v{N + 2 * nb}, v{XE + 4 * nb}, v{XE + 4 * nb + 1}")
        a(f"v_cvt_pk_bf16_f32 v{N + 2 * nb + 1}, v{XE + 4 * nb + 2}, v{XE + 4 * nb + 3}")
        a(f"buffer_store_dwordx2 {vr(N + 2 * nb, 2)}, v{T+4}, s[12:15], 0 offen offset:{nb * 32}")
    if OPT["stamp"]:
        tick(a, 6)
        a("s_waitcnt vmcnt(0)")
        stamp(a, 5, T + 20, T + 21)
        tick_dump(a, 6, 0, T + 20, T + 21, "k2a")
        tick_dump(a, 7, 3, T + 20, T + 21, "k2b")
    a.label("L_k2_end")
    a("s_endpgm")
    a.label("L_k2_spin")
    a("s_mov_b32 s29, 0")
    a.label("L_k2_spin2")
    a("s_sleep 2")
    a(f"buffer_load_dword v{T+1}, v{T}, s[16:19], s30 offen sc1")
    a("s_add_u32 s29, s29, 1")
    a("s_cmp_ge_u32 s29, 200000")
    a("s_waitcnt vmcnt(0)")
    a("s_cbranch_scc1 L_k2_go")
    a(f"v_cmp_ne_u32 vcc, 1, v{T+1}")
    a("s_cbranch_vccnz L_k2_spin2")
    a("s_branch L_k2_go")

def kd(name, vgpr, accum, sgpr=102):
    return f""".amdhsa_kernel {name}
  .amdhsa_next_free_vgpr {vgpr}
  .amdhsa_next_free_sgpr {sgpr}
  .amdhsa_accum_offset {accum}
  .amdhsa_group_segment_fixed_size 0
  .amdhsa_kernarg_size 80
  .amdhsa_user_sgpr_count 2
  .amdhsa_user_sgpr_kernarg_segment_ptr 1
  .amdhsa_system_sgpr_workgroup_id_x 1
.end_amdhsa_kernel"""

def main():
    a = Asm()
    a.raw(f"; @launch kernel=k1_kernel grid=(256,1,1) block=(512,1,1) lds={K1_LDS}")
    a.raw(f"; @launch kernel=k2_kernel grid=(256,1,1) block=(256,1,1) lds={K2_LDS}")
    a.raw('.amdgcn_target "amdgcn-amd-amdhsa--gfx950"')
    a.raw(".text")
    gen_k1(a)
    gen_k2(a)
    a.label("L_code_end")
    a("s_endpgm")
    a.raw('.section .rodata,"a"')
    a.raw(".p2align 6")
    a.raw(kd("k1_kernel", 256, 256))
    a.raw(".p2align 6")
    a.raw(kd("k2_kernel", 512, 256))
    open(sys.argv[1], "w").write(a.text())

if __name__ == "__main__":
    main()
```

```python
import sys

S, D, F = 2048, 640, 1728

HB_OFF   = 0
HB_SZ    = 32 * 54 * 4096
PQ_OFF   = HB_OFF + HB_SZ
PQ_SZ    = 32 * 20 * 4096
W2F_OFF  = PQ_OFF + PQ_SZ
W2F_SZ   = 8 * 54 * 5120
WOF_OFF  = W2F_OFF + W2F_SZ
WOF_SZ   = 32 * 8 * 5120
MF_OFF   = WOF_OFF + WOF_SZ
MF_SZ    = 8 * 20 * 5120
KVP_OFF  = MF_OFF + MF_SZ
KVP_SZ   = 8 * 32 * 1920
ZF_OFF   = KVP_OFF + KVP_SZ
ZF_SZ    = 8 * 1280
FL_OFF   = ZF_OFF + ZF_SZ
FL_SZ    = 8 * 128
ST_OFF   = FL_OFF + FL_SZ
ST_SZ    = 2 * 2048 * 4
WS_USED  = ST_OFF + ST_SZ
OOB      = 0x40000000

LOG2E = 0x3fb8aa3b
EPS6  = 0x358637bd
EPS5  = 0x3727c5ac
INV640 = 0x3acccccd
ONES_BF = 0x3f803f80

OPT = dict(k1map="4x8", k2map="8x4", stamp=0, prefetch_code=1, no_fill=0, no_x=0, no_dma=0, no_rd=0, no_mfma=0,
           flag_st=6, k2_twice=0, rot=0, k2_ring=4, k2_init=4, k2_sleep=4, k2_nos=0, pro=0, k2_hold=0, k2_sprio=0, k2_pqthr=1, k2_early=0, k2_noprod=0, k2_msc1=1)
for _a in sys.argv[2:]:
    _k, _v = _a.split("=")
    assert _k in OPT, _k
    OPT[_k] = int(_v) if _v.lstrip("-").isdigit() else _v

class Asm:
    def __init__(self):
        self.L = []
    def __call__(self, s):
        for line in s.strip("\n").split("\n"):
            self.L.append("    " + line.strip())
    def label(self, l):
        self.L.append(l + ":")
    def raw(self, s):
        self.L.append(s)
    def text(self):
        return "\n".join(self.L) + "\n"

class VQ:
    def __init__(self, a):
        self.a, self.q, self.done = a, [], 0
    def issue(self, tag, text):
        self.q.append(tag)
        self.a(text)
    def need(self, *tags):
        idxs = [i for i, t in enumerate(self.q) if t in tags]
        if not idxs:
            return None
        idx = max(idxs)
        if idx < self.done:
            return None
        n = min(63, len(self.q) - 1 - idx)
        self.done = len(self.q) - n
        return n
    def wait(self, *tags, lgkm=None):
        n = self.need(*tags) if tags else None
        parts = []
        if n is not None: parts.append(f"vmcnt({n})")
        if lgkm is not None: parts.append(f"lgkmcnt({lgkm})")
        if parts: self.a("s_waitcnt " + " ".join(parts))

class LQ:
    def __init__(self, a):
        self.a, self.q, self.done = a, [], 0
    def issue(self, tag, text):
        if len(self.q) - self.done >= 15:
            self.a("s_waitcnt lgkmcnt(14)")
            self.done = len(self.q) - 14
        self.q.append(tag)
        self.a(text)
    def need(self, *tags):
        idxs = [i for i, t in enumerate(self.q) if t in tags]
        if not idxs or max(idxs) < self.done:
            return None
        n = len(self.q) - 1 - max(idxs)
        self.done = len(self.q) - n
        return n
    def wait(self, *tags):
        n = self.need(*tags)
        if n is not None: self.a(f"s_waitcnt lgkmcnt({n})")
    def drained(self):
        self.done = len(self.q)

def vr(b, n):
    return f"v[{b}:{b+n-1}]" if n > 1 else f"v{b}"
def ar(b, n):
    return f"a[{b}:{b+n-1}]" if n > 1 else f"a{b}"

def srd(a, d, lo, hi, size):
    a(f"s_mov_b32 s{d}, s{lo}")
    a(f"s_and_b32 s{d+1}, s{hi}, 0xffff")
    a(f"s_mov_b32 s{d+2}, {size}")
    a(f"s_mov_b32 s{d+3}, 0x20000")

def stamp(a, slot, va, vb):
    if not OPT["stamp"]:
        return
    a("s_memrealtime s[96:97]")
    a("s_waitcnt lgkmcnt(0)")
    a(f"v_mov_b32 v{va}, s96")
    a("s_lshl_b32 s98, s2, 5")
    a("s_lshl_b32 s99, s20, 2")
    a("s_add_u32 s98, s98, s99")
    a(f"s_add_u32 s98, s98, {WS_USED + slot * 8192}")
    a(f"v_mov_b32 v{vb}, s98")
    a(f"buffer_store_dword v{va}, v{vb}, s[92:95], 0 offen")
    a("s_memtime s[96:97]")
    a("s_waitcnt lgkmcnt(0)")
    a(f"v_mov_b32 v{va}, s96")
    a("s_mov_b32 s99, 65536")
    a(f"buffer_store_dword v{va}, v{vb}, s[92:95], s99 offen")

def tick(a, i):
    if OPT["stamp"]:
        a("s_memtime s[60:61]")
        a("s_waitcnt lgkmcnt(0)")
        a(f"s_mov_b32 s{70 + i}, s60")

def tick_dump(a, slot, wave, va, vb, tag):
    if not OPT["stamp"]:
        return
    a(f"s_cmp_lg_u32 s20, {wave}")
    a(f"s_cbranch_scc1 L_nost_{tag}")
    for i in range(8):
        a(f"v_mov_b32 v{va}, s{70+i}")
        a("s_lshl_b32 s98, s2, 5")
        a(f"s_add_u32 s98, s98, {WS_USED + slot * 8192 + 4 * i}")
        a(f"v_mov_b32 v{vb}, s98")
        a(f"buffer_store_dword v{va}, v{vb}, s[92:95], 0 offen")
    a.label(f"L_nost_{tag}")

def pk(op, d, x, y, z=None, bc=()):
    def o(v):
        return v if isinstance(v, str) else f"v[{v}:{v+1}]"
    n = 3 if z is not None else 2
    hi = [0 if i in bc else 1 for i in range(n)]
    ops = [o(x), o(y)] + ([o(z)] if z is not None else [])
    t = f"v_pk_{op}_f32 v[{d}:{d+1}], " + ", ".join(ops)
    if bc:
        t += " op_sel_hi:[" + ",".join(map(str, hi)) + "]"
    return t

K1_LDS = 163840
SLOT = 24576
XL_LDS = 98304
V_LANE, V_XD, V_D0, V_R0, V_RC, V_FL, V_XR = 1, 2, 6, 9, 12, 13, 14
V_CS = 18
V_NM, V_RS = 22, 24
V_U = 26
V_T = 30
V_KNM, V_KRS = 30, 46
V_PRE = 63
V_X = 64
V_F = [96, 124]
V_ST, V_CA = 152, 153
V_ACC = 160
V_E0 = 64

def k1_mainloop(a, kind, tag, late_setup):
    nu = 5 if kind == "q" else 6
    pitch = 192 if kind == "ffn" else 320
    wpitch = 3456 if kind == "ffn" else 3840
    NST = 10
    vq, lq = VQ(a), LQ(a)
    def rd_addr(u):
        if kind == "ffn":
            return V_R0, (u & 1) * 12288 + 64 * (u >> 1)
        if kind == "q":
            return V_R0, 16 * u
        return V_R0 + (u % 3), 160 * (u // 3)
    naddr = [V_R0, V_RC] if kind != "kv" else [V_R0, V_R0 + 1, V_R0 + 2, V_RC]
    def reads(u, n):
        if OPT["no_rd"] and n > 0: return
        fb = V_F[n & 1]
        s_, j = divmod(n, 4)
        stoff = (s_ & 1) * SLOT
        if u < nu:
            av, off = rd_addr(u)
            dst = fb + 4 * u
        else:
            av, off = V_RC, 0
            dst = fb + 24
        for sec in range(2):
            o = stoff + off + (16 * j + 4 * sec) * pitch
            assert o < 65536
            lq.issue(f"f{n}_{u}", f"ds_read_b64_tr_b16 {vr(dst + 2 * sec, 2)}, v{av} offset:{o}")
    def xreg(stage, j):
        return V_X + 16 * (stage & 1) + 4 * j
    def xread(stage, j):
        lq.issue(f"xf{stage}_{j}", f"ds_read_b128 {vr(xreg(stage, j), 4)}, v{V_XR + j} offset:{(stage & 1) * 4096}")
    def dma(stage, i):
        if OPT["no_dma"] and stage > 2: return
        a(f"s_add_u32 m0, s{28+i}, {(stage % 4) * SLOT}")
        a("s_nop 0")
        vq.issue(f"D{stage}", f"buffer_load_dwordx4 v{V_D0+i}, s[12:15], s24 offen lds")
        if i == 2:
            a(f"s_add_u32 s24, s24, {64 * wpitch}")
            a(f"s_cmp_eq_u32 s24, {640 * wpitch}")
            a(f"s_cselect_b32 s24, 0, s24")
    def xl(stage, i):
        if OPT["no_x"] and stage >= 2: return
        a(f"s_add_u32 m0, s26, {(stage & 1) * 4096 + i * 1024}")
        a("s_nop 0")
        vq.issue(f"x{stage}", f"buffer_load_dwordx4 v{V_XD + i}, s[8:11], s23 offen lds")
        if i == 3:
            a("s_add_u32 s23, s23, 128")
            a("s_cmp_eq_u32 s23, 1280")
            a("s_cselect_b32 s23, 0, s23")

    a(f"s_mul_i32 s24, s25, {64 * wpitch}")
    for i in range(3): dma(0, i)
    for i in range(4): xl(0, i)
    late_setup()
    for r in range(4):
        a(f"v_mov_b32 v{V_CS + r}, 0")
    def rest(lvl):
        if lvl == 0:
            for i in range(3): dma(1, i)
            for i in range(4): xl(1, i)
        else:
            for i in range(3): dma(2, i)
    if OPT["pro"] < 2: rest(0)
    if OPT["pro"] < 1: rest(1)
    vq.wait("D0", "x0")
    a("s_barrier")
    xread(0, 0)
    for u in [6] + list(range(nu)): reads(u, 0)
    for j in range(1, 4): xread(0, j)
    if OPT["pro"] >= 2: rest(0)
    if OPT["pro"] >= 1: rest(1)
    for n in range(4 * NST):
        s_, j = divmod(n, 4)
        cur = V_F[n & 1]
        xf = xreg(s_, j)
        last = n == 4 * NST - 1
        if j == 0 and s_ % 2 == 0 and OPT["stamp"]:
            tick(a, s_ // 2); lq.drained()
        extra = []
        if j == 3 and not last:
            vq.wait(f"D{s_ + 1}", f"x{s_ + 1}")
            a("s_barrier")
            if s_ + 3 < NST:
                extra = [lambda i=i: dma(s_ + 3, i) for i in range(3)]
            if s_ & 1:
                for av in naddr:
                    if (s_ & 2) == 0: a(f"v_add_u32 v{av}, {2 * SLOT}, v{av}")
                    else: a(f"v_subrev_u32 v{av}, {2 * SLOT}, v{av}")
        if j == 1 and s_ + 2 < NST:
            def xl_first():
                lq.wait(*[f"xf{s_}_{q}" for q in range(4)])
                xl(s_ + 2, 0)
            extra += [xl_first] + [lambda i=i: xl(s_ + 2, i) for i in range(1, 4)]
        if j == 0 and s_ == OPT["flag_st"]:
            extra.append(lambda: vq.issue("flag", f"buffer_load_dword v{V_FL}, off, s[44:47], s48 sc1"))
        if j == 0 and s_ == OPT["flag_st"] + 2:
            vq.wait("flag")
            a(f"v_cmp_ne_u32 vcc, 1, v{V_FL}")
            a(f"s_cbranch_vccnz L_k1_{tag}_spin")
            a.label(f"L_k1_{tag}_go")
            if kind == "kv":
                for g in range(4):
                    extra.append(lambda g=g: vq.issue("stat", f"buffer_load_dwordx4 {vr(V_KNM + 4 * g, 4)}, v{V_NM}, s[16:19], s49 offen offset:{32 * g} sc1"))
                    extra.append(lambda g=g: vq.issue("stat", f"buffer_load_dwordx4 {vr(V_KRS + 4 * g, 4)}, v{V_NM}, s[16:19], s50 offen offset:{32 * g} sc1"))
            else:
                extra.append(lambda: vq.issue("stat", f"buffer_load_dword v{V_RS}, v{V_NM}, s[16:19], s50 offen sc1"))
                extra.append(lambda: vq.issue("stat", f"buffer_load_dword v{V_NM}, v{V_NM}, s[16:19], s49 offen sc1"))
        fill = []
        for r in range(4):
            t = V_U + 2 * (r & 1)
            c = V_CS + 2 * (r & 1)
            fill.append(f"v_lshlrev_b32 v{t}, 16, v{cur + 24 + r}")
            fill.append(f"v_and_b32 v{t + 1}, 0xffff0000, v{cur + 24 + r}")
            fill.append(f"v_add_f32 v{c}, v{c}, v{t}")
            fill.append(f"v_add_f32 v{c + 1}, v{c + 1}, v{t + 1}")
        if OPT["no_fill"]: fill = []
        per = -(-len(fill) // nu)
        for u in range(nu):
            acc = vr(V_ACC + 16 * u, 16)
            w, x = vr(cur + 4 * u, 4), vr(xf, 4)
            c = "0" if n == 0 else acc
            lq.wait(f"f{n}_{u}", f"f{n}_6", f"xf{s_}_{j}")
            if not OPT["no_mfma"]:
                if kind == "kv":
                    a(f"v_mfma_f32_32x32x16_bf16 {acc}, {x}, {w}, {c}")
                else:
                    a(f"v_mfma_f32_32x32x16_bf16 {acc}, {w}, {x}, {c}")
            if not last:
                if u == 0:
                    if j == 3: xread(s_ + 1, 0)
                    reads(6, n + 1)
                reads(u, n + 1)
                if j == 3 and 1 <= u <= 3: pass
                if j == 0 and s_ > 0 and u < 3: xread(s_, u + 1)
            for l in fill[:per]: a(l)
            fill = fill[per:]
            for _ in range(2 if len(extra) > nu - u else 1):
                if extra: extra.pop(0)()
        while extra: extra.pop(0)()
    tick(a, 5)
    a(f"v_add_f32 v{V_CS}, v{V_CS}, v{V_CS+1}")
    a(f"v_add_f32 v{V_CS+2}, v{V_CS+2}, v{V_CS+3}")
    a(f"v_add_f32 v{V_CS}, v{V_CS}, v{V_CS+2}")
    a(f"v_and_b32 v{V_U}, 31, v{V_LANE}")
    a(f"v_mov_b32 v{V_CS+1}, v{V_CS}")
    a(f"v_lshl_add_u32 v{V_U+1}, v{V_U}, 2, s26")
    a("s_nop 0")
    a(f"v_permlane32_swap_b32 v{V_CS}, v{V_CS+1}")
    a("s_nop 1")
    a(f"v_add_f32 v{V_CS}, v{V_CS}, v{V_CS+1}")
    a(f"ds_write_b32 v{V_U+1}, v{V_CS}")
    return vq

def k1_spin(a, tag):
    a.label(f"L_k1_{tag}_spin")
    a("s_mov_b32 s51, 0")
    a.label(f"L_k1_{tag}_spin2")
    a("s_sleep 4")
    a(f"buffer_load_dword v{V_FL}, off, s[44:47], s48 sc1")
    a("s_add_u32 s51, s51, 1")
    a("s_cmp_ge_u32 s51, 200000")
    a("s_waitcnt vmcnt(0)")
    a(f"s_cbranch_scc1 L_k1_{tag}_go")
    a(f"v_cmp_ne_u32 vcc, 1, v{V_FL}")
    a(f"s_cbranch_vccnz L_k1_{tag}_spin2")
    a(f"s_branch L_k1_{tag}_go")

def k1_store_base(a, vdst, region, nt, tbase_mul, T):
    a(f"s_lshl_b32 s32, s21, 2")
    a(f"s_lshr_b32 s35, s20, 1")
    a(f"s_add_u32 s32, s32, s35")
    a(f"s_mul_i32 s32, s32, {nt}")
    a(f"s_mul_i32 s35, s22, {tbase_mul}")
    a(f"s_add_u32 s32, s32, s35")
    a(f"s_lshl_b32 s32, s32, 2")
    a(f"s_and_b32 s35, s20, 1")
    a(f"s_lshl_b32 s35, s35, 1")
    a(f"s_add_u32 s32, s32, s35")
    a(f"s_lshl_b32 s32, s32, 10")
    a(f"s_add_u32 s32, s32, {region}")
    a(f"v_bfe_u32 v{T}, v{V_LANE}, 4, 1")
    a(f"v_lshlrev_b32 v{T}, 10, v{T}")
    a(f"v_lshrrev_b32 v{T+1}, 5, v{V_LANE}")
    a(f"v_lshl_add_u32 v{T}, v{T+1}, 8, v{T}")
    a(f"v_and_b32 v{T+1}, 15, v{V_LANE}")
    a(f"v_lshl_add_u32 v{T}, v{T+1}, 4, v{T}")
    a(f"v_add_u32 v{vdst}, s32, v{T}")

def k1_pre_fq(a, region, nt, mul):
    k1_store_base(a, V_ST, region, nt, mul, V_T)
    a(f"v_lshrrev_b32 v{V_CA}, 5, v{V_LANE}")
    a(f"v_lshlrev_b32 v{V_CA}, 4, v{V_CA}")
    a(f"v_add_u32 v{V_CA}, {XL_LDS}, v{V_CA}")
    a(f"v_and_b32 v{V_NM}, 31, v{V_LANE}")
    a(f"v_lshlrev_b32 v{V_NM}, 2, v{V_NM}")

def k1_epi_ffn(a, vq):
    T = V_T
    C1, V2 = T, T + 2
    vq.wait("stat", lgkm=0)
    a("s_barrier")
    CB = V_E0
    def rd(p):
        for h in range(2):
            for g in range(4):
                a(f"ds_read_b128 {vr(CB + 32 * (p & 1) + 16 * h + 4 * g, 4)}, v{V_CA} offset:{(2 * p + h) * 8192 + g * 32}")
    rd(0)
    a(f"v_mul_f32 v{V2}, v{V_RS}, v{V_RS}")
    a(f"v_mul_f32 v{C1}, {hex(LOG2E | 0x80000000)}, v{V_RS}")
    a(f"v_rcp_f32 v{V2}, v{V2}")
    rd(1)
    E = T + 4
    for p in range(3):
        a(f"s_waitcnt lgkmcnt({[8, 8, 0][p]})")
        G, U = V_ACC + 32 * p, V_ACC + 32 * p + 16
        CG, CU = CB + 32 * (p & 1), CB + 32 * (p & 1) + 16
        for r in range(0, 16, 2):
            a(pk("fma", G + r, V_NM, CG + r, G + r, bc=(0,)))
        for r in range(0, 16, 2):
            a(pk("mul", E + r, G + r, C1, bc=(1,)))
            a(pk("fma", U + r, V_NM, CU + r, U + r, bc=(0,)))
        if p == 0: rd(2)
        for r in range(16):
            a(f"v_exp_f32 v{E+r}, v{E+r}")
        for r in range(0, 16, 2):
            a(pk("mul", G + r, G + r, U + r))
            a(pk("fma", E + r, E + r, V2, V2, bc=(1, 2)))
        for r in range(16):
            a(f"v_rcp_f32 v{E+r}, v{E+r}")
        a("s_nop 0")
        for r in range(0, 16, 2):
            a(pk("mul", G + r, G + r, E + r))
        for r in range(8):
            a(f"v_cvt_pk_bf16_f32 v{U+r}, v{G+2*r}, v{G+2*r+1}")
        a(f"s_mov_b32 s32, {p * 4096}")
        a(f"buffer_store_dwordx4 {vr(U, 4)}, v{V_ST}, s[16:19], s32 offen")
        a(f"buffer_store_dwordx4 {vr(U + 4, 4)}, v{V_ST}, s[16:19], s32 offen offset:512")

def phi16(a, G, E, rl, rs, bc):
    b1 = (1,) if bc else ()
    for r in range(0, 16, 2):
        a(pk("mul", E + r, G + r, rl(r), bc=b1))
    for r in range(16):
        a(f"v_max_f32 v{G+r}, 0, v{G+r}")
    for r in range(16):
        a(f"v_exp_f32_e64 v{E+r}, v{E+r} clamp")
    a("s_nop 0")
    for r in range(0, 16, 2):
        a(pk("add", E + r, E + r, V_EPS, bc=(1,)))
    for r in range(0, 16, 2):
        a(pk("fma", G + r, G + r, rs(r), E + r, bc=b1))

V_EPS = 18

def k1_epi_q(a, vq):
    T = V_T
    RL = T
    vq.wait("stat", lgkm=0)
    a("s_barrier")
    CB = V_E0
    for u in range(5):
        for g in range(4):
            a(f"ds_read_b128 {vr(CB + 16 * u + 4 * g, 4)}, v{V_CA} offset:{u * 8192 + g * 32}")
    a(f"v_mul_f32 v{RL}, {hex(LOG2E)}, v{V_RS}")
    a(f"v_mov_b32 v{V_EPS}, {hex(EPS6)}")
    E = T + 4
    for u in range(5):
        a(f"s_waitcnt lgkmcnt({min(15, 16 - 4 * u)})")
        G, C = V_ACC + 16 * u, CB + 16 * u
        for r in range(0, 16, 2):
            a(pk("fma", G + r, V_NM, C + r, G + r, bc=(0,)))
        phi16(a, G, E, lambda r: RL, lambda r: V_RS, True)
        for r in range(8):
            a(f"v_cvt_pk_bf16_f32 v{C+r}, v{G+2*r}, v{G+2*r+1}")
        a(f"s_mov_b32 s32, {u * 4096}")
        a(f"buffer_store_dwordx4 {vr(C, 4)}, v{V_ST}, s[16:19], s32 offen")
        a(f"buffer_store_dwordx4 {vr(C + 4, 4)}, v{V_ST}, s[16:19], s32 offen offset:512")

def k1_epi_kv(a, vq):
    T = 64
    a(f"v_lshlrev_b32 v{T+3}, 2, v{V_U}")
    a(f"v_add_u32 v{T+3}, {XL_LDS}, v{T+3}")
    vq.wait("stat", lgkm=0)
    a("s_barrier")
    RL, CSV, E, P = 72, 88, 104, 120
    for u in range(6):
        a(f"ds_read_b32 v{CSV + 2 * u}, v{T+3} offset:{u * 8192}")
    a(f"s_lshl_b32 s32, s20, 11")
    a(f"v_lshl_add_u32 v{T+4}, v{V_LANE}, 4, s32")
    a(f"v_add_u32 v{T+6}, 65536, v{T+4}")
    a(f"v_mov_b32 v{T+5}, {hex(ONES_BF)}")
    a(f"v_mov_b32 v{V_EPS}, {hex(EPS6)}")
    for r in range(16):
        a(f"v_mul_f32 v{RL+r}, {hex(LOG2E)}, v{V_KRS+r}")
    a("s_waitcnt lgkmcnt(0)")
    padmask = {0: 0x00f00000, 1: 0x0000f000, 2: 0xf00000f0}
    for u in range(6):
        G = V_ACC + 16 * u
        PK = P + 8 * (u & 1)
        for r in range(0, 16, 2):
            a(pk("fma", G + r, V_KNM + r, CSV + 2 * u, G + r, bc=(1,)))
        if u < 3:
            phi16(a, G, E, lambda r: RL + r, lambda r: V_KRS + r, False)
        else:
            for r in range(0, 16, 2):
                a(pk("mul", G + r, G + r, V_KRS + r))
        for r in range(8):
            a(f"v_cvt_pk_bf16_f32 v{PK+r}, v{G+2*r}, v{G+2*r+1}")
        if u >= 3:
            m = padmask[u - 3]
            a(f"s_mov_b32 s36, {hex(m)}")
            a(f"s_mov_b32 s37, {hex(m)}")
            for r in range(8):
                a(f"v_cndmask_b32 v{PK+r}, v{PK+r}, v{T+5}, s[36:37]")
        off = u * 16384
        av = T + 4 if off < 65536 else T + 6
        off &= 65535
        a(f"ds_write_b128 v{av}, {vr(PK, 4)} offset:{off}")
        a(f"ds_write_b128 v{av}, {vr(PK + 4, 4)} offset:{off + 1024}")
    T = V_T
    a("s_lshl_b32 s32, s20, 2")
    a("s_lshr_b32 s36, 0x2211100, s32")
    a("s_and_b32 s36, s36, 3")
    a("s_lshr_b32 s37, 0x2121010, s32")
    a("s_and_b32 s37, s37, 3")
    a("s_lshl_b32 s38, s36, 14")
    a("s_add_u32 s39, s37, 3")
    a("s_lshl_b32 s39, s39, 14")
    a(f"v_lshl_add_u32 v{T+16}, v{V_LANE}, 4, s38")
    a(f"v_lshl_add_u32 v{T+17}, v{V_LANE}, 4, s39")
    a("s_lshl_b32 s38, s36, 5")
    a(f"v_add_u32 v{T}, s38, v{V_U}")
    a(f"v_mul_u32_u24 v{T+1}, 2731, v{T}")
    a(f"v_lshrrev_b32 v{T+1}, 16, v{T+1}")
    a(f"v_mul_u32_u24 v{T+2}, 24, v{T+1}")
    a(f"v_sub_u32 v{T+2}, v{T}, v{T+2}")
    a("s_lshl_b32 s38, s21, 5")
    a("s_lshl_b32 s39, s22, 2")
    a("s_add_u32 s38, s38, s39")
    a("s_mul_i32 s38, s38, 1920")
    a(f"s_add_u32 s38, s38, {KVP_OFF}")
    a(f"v_mul_u32_u24 v{T+3}, 1920, v{T+1}")
    a(f"v_lshlrev_b32 v{T+4}, 4, v{T+2}")
    a(f"v_add3_u32 v{T+3}, v{T+3}, v{T+4}, s38")
    a(f"v_mov_b32 v{T+4}, {hex(OOB)}")
    a(f"v_cmp_gt_u32 vcc, 20, v{T+2}")
    a(f"v_lshrrev_b32 v{T+5}, 5, v{V_LANE}")
    a(f"v_lshlrev_b32 v{T+5}, 2, v{T+5}")
    a(f"v_cndmask_b32 v{T+3}, v{T+4}, v{T+3}, vcc")
    a("s_lshl_b32 s39, s37, 5")
    a(f"v_add_u32 v{T+5}, s39, v{T+5}")
    for rq in range(4):
        a(f"v_add_u32 v{T+6}, {8 * rq}, v{T+5}")
        a(f"v_mul_u32_u24 v{T+7}, 2731, v{T+6}")
        a(f"v_lshrrev_b32 v{T+7}, 16, v{T+7}")
        a(f"v_cmp_eq_u32 vcc, v{T+7}, v{T+1}")
        a(f"v_mul_u32_u24 v{T+8}, 24, v{T+7}")
        a(f"v_sub_u32 v{T+8}, v{T+6}, v{T+8}")
        a(f"v_mul_u32_u24 v{T+8}, 80, v{T+8}")
        a(f"v_add_u32 v{T+8}, v{T+8}, v{T+3}")
        a(f"v_cndmask_b32 v{T+10+rq}, v{T+4}, v{T+8}, vcc")
    a("s_waitcnt lgkmcnt(0)")
    a("s_barrier")
    a("s_cmp_ge_u32 s20, 7")
    a("s_cbranch_scc1 L_k1_end")
    KB, VB, AC = 64, 128, 192
    def rd(i):
        a(f"ds_read_b128 {vr(KB + 4 * i, 4)}, v{T+16} offset:{i * 1024}")
        a(f"ds_read_b128 {vr(VB + 4 * i, 4)}, v{T+17} offset:{i * 1024}")
    for i in range(7): rd(i)
    for k in range(16):
        if k + 7 < 16:
            a("s_waitcnt lgkmcnt(12)")
        else:
            a(f"s_waitcnt lgkmcnt({2 * (15 - k)})")
        src = "0" if k == 0 else vr(AC, 16)
        a(f"v_mfma_f32_32x32x16_bf16 {vr(AC, 16)}, {vr(VB + 4 * k, 4)}, {vr(KB + 4 * k, 4)}, {src}")
        if k + 7 < 16: rd(k + 7)
    a("s_nop 7")
    a("s_nop 3")
    for rq in range(4):
        a(f"buffer_store_dwordx4 {vr(AC + 4 * rq, 4)}, v{T+10+rq}, s[16:19], 0 offen")

def quad_sum(a, v, t):
    a("s_nop 1")
    a(f"v_add_f32_dpp v{t}, v{v}, v{v} quad_perm:[1,0,3,2] row_mask:0xf bank_mask:0xf")
    a("s_nop 1")
    a(f"v_add_f32_dpp v{v}, v{t}, v{t} quad_perm:[2,3,0,1] row_mask:0xf bank_mask:0xf")

def rbf(a, v):
    a(f"v_cvt_pk_bf16_f32 v{v}, v{v}, v{v}")
    a(f"v_and_b32 v{v}, 0xffff0000, v{v}")

def k1_spare(a):
    T = V_T
    a("s_lshl_b32 s32, s21, 1")
    a("s_add_u32 s32, s32, s22")
    a("s_lshl_b32 s52, s32, 3")
    a("s_add_u32 s52, s52, s20")
    a("s_mul_i32 s33, s52, 20480")
    a(f"v_lshrrev_b32 v{T}, 2, v{V_LANE}")
    a(f"v_mul_u32_u24 v{T+1}, 1280, v{T}")
    a(f"v_and_b32 v{T+3}, 3, v{V_LANE}")
    a(f"v_lshl_add_u32 v{T+1}, v{T+3}, 4, v{T+1}")
    a(f"v_lshrrev_b32 v{T+2}, 4, v{V_LANE}")
    XR = 160
    for i in range(20):
        a(f"buffer_load_dwordx4 {vr(XR + 4 * i, 4)}, v{T+1}, s[8:11], s33 offen offset:{64 * i}")
    a("s_load_dwordx2 s[40:41], s[0:1], 48")
    a("s_load_dwordx2 s[42:43], s[0:1], 16")
    for i in range(5):
        a(f"v_add_u32 v{T+4}, {64 * i}, v{V_LANE}")
        a(f"v_mul_u32_u24 v{T+5}, 52429, v{T+4}")
        a(f"v_lshrrev_b32 v{T+5}, 19, v{T+5}")
        a(f"v_mul_u32_u24 v{T+6}, 10, v{T+5}")
        a(f"v_sub_u32 v{T+6}, v{T+4}, v{T+6}")
        a(f"v_mul_u32_u24 v{T+7}, 1280, v{T+5}")
        a(f"v_cmp_gt_u32 vcc, 20, v{T+5}")
        a(f"v_lshl_add_u32 v{64+i}, v{T+6}, 4, v{T+7}")
        a(f"v_mov_b32 v{T+7}, {hex(OOB)}")
        a(f"v_cndmask_b32 v{72+i}, v{T+7}, v{64+i}, vcc")
    a("s_mul_i32 s53, s20, 15360")
    a(f"v_bfe_u32 v{T+5}, v{V_LANE}, 2, 2")
    a(f"v_and_b32 v{T+6}, 3, v{V_LANE}")
    a(f"v_lshlrev_b32 v{T+6}, 3, v{T+6}")
    a(f"v_add_u32 v{T+6}, s53, v{T+6}")
    a(f"v_lshrrev_b32 v{T+7}, 1, v{T+2}")
    a(f"v_lshlrev_b32 v{T+7}, 4, v{T+7}")
    a(f"v_and_b32 v{T+8}, 1, v{T+2}")
    a(f"v_lshl_add_u32 v{T+7}, v{T+8}, 2, v{T+7}")
    a(f"v_add_u32 v{T+7}, v{T+7}, v{T+5}")
    a(f"v_mul_u32_u24 v{T+7}, 160, v{T+7}")
    a(f"v_add_u32 v80, v{T+7}, v{T+6}")
    a(f"v_lshl_add_u32 v{T+7}, v{T+2}, 3, v{T+5}")
    a(f"v_mul_u32_u24 v{T+7}, 160, v{T+7}")
    a(f"v_add_u32 v81, v{T+7}, v{T+6}")
    a(f"v_lshlrev_b32 v82, 4, v{V_LANE}")
    a(f"v_add_u32 v83, 4096, v82")
    a("s_waitcnt lgkmcnt(0)")
    srd(a, 84, 40, 41, F * D * 2)
    srd(a, 88, 42, 43, D * D * 2)
    def item_setup(kind, add, slot):
        a(f"s_add_u32 s34, s52, {add}")
        a("s_lshr_b32 s35, s34, 3")
        a("s_and_b32 s36, s34, 7")
        a(f"s_mul_i32 s37, s35, {32 * 1280 if kind == 'w2' else 20 * 1280}")
        a("s_mul_i32 s38, s36, 160")
        a(f"s_add_u32 s{54 + 2 * slot}, s37, s38")
        if kind == "w2":
            a("s_mul_i32 s37, s36, 54")
            a("s_add_u32 s37, s37, s35")
            a("s_mul_i32 s37, s37, 5120")
            a(f"s_add_u32 s{55 + 2 * slot}, s37, {W2F_OFF}")
            if add == 384:
                a("s_cmp_lt_u32 s34, 432")
                a(f"s_cselect_b32 s{54 + 2 * slot}, s{54 + 2 * slot}, {OOB}")
                a(f"s_cselect_b32 s{55 + 2 * slot}, s{55 + 2 * slot}, {OOB}")
        else:
            a("s_mul_i32 s37, s34, 5120")
            a(f"s_add_u32 s{55 + 2 * slot}, s37, {WOF_OFF}")
    rounds = ([("w2", 0), ("w2", 128), ("w2", 256)], [("wo", 0), ("wo", 128), ("w2", 384)])
    def round_loads(rnd):
        for slot, (kind, add) in enumerate(rnd):
            item_setup(kind, add, slot)
            for i in range(5):
                a(f"s_add_u32 m0, s53, {slot * 5120 + i * 1024}")
                a("s_nop 0")
                if kind == "w2":
                    a(f"buffer_load_dwordx4 v{64+i}, s[84:87], s{54 + 2 * slot} offen lds")
                else:
                    a(f"buffer_load_dwordx4 v{72+i}, s[88:91], s{54 + 2 * slot} offen lds")
    def round_out(rnd):
        for slot, (kind, add) in enumerate(rnd):
            R = 96 + 20 * slot
            av = 80 if kind == "w2" else 81
            sec = 8 * 160 if kind == "w2" else 4 * 160
            for nb in range(5):
                a(f"ds_read_b64_tr_b16 {vr(R + 4 * nb, 2)}, v{av} offset:{slot * 5120 + 32 * nb}")
                a(f"ds_read_b64_tr_b16 {vr(R + 4 * nb + 2, 2)}, v{av} offset:{slot * 5120 + 32 * nb + sec}")
            a("s_waitcnt lgkmcnt(0)")
            for nb in range(5):
                if nb < 4:
                    a(f"buffer_store_dwordx4 {vr(R + 4 * nb, 4)}, v82, s[16:19], s{55 + 2 * slot} offen offset:{nb * 1024}")
                else:
                    a(f"buffer_store_dwordx4 {vr(R + 4 * nb, 4)}, v83, s[16:19], s{55 + 2 * slot} offen")
    SM, SQ, TT = T + 10, T + 12, T + 14
    a(f"s_mov_b32 s31, {hex(ONES_BF)}")
    for r in range(4):
        a(f"v_mov_b32 v{SM + r}, 0")
    for i in range(20):
        if i % 2 == 0:
            a(f"s_waitcnt vmcnt({18 - i})")
        for r in range(4):
            a(f"v_dot2_f32_bf16 v{SM + (r & 1)}, v{XR + 4 * i + r}, s31, v{SM + (r & 1)}")
            a(f"v_dot2_f32_bf16 v{SQ + (r & 1)}, v{XR + 4 * i + r}, v{XR + 4 * i + r}, v{SQ + (r & 1)}")
    a("s_nop 2")
    a(f"v_add_f32 v{SM}, v{SM}, v{SM+1}")
    a(f"v_add_f32 v{SQ}, v{SQ}, v{SQ+1}")
    quad_sum(a, SM, TT)
    quad_sum(a, SQ, TT)
    a(f"v_mul_f32 v{SM}, {hex(INV640 | 0x80000000)}, v{SM}")
    a(f"v_mul_f32 v{SQ}, {hex(INV640)}, v{SQ}")
    a(f"v_fma_f32 v{SQ}, -v{SM}, v{SM}, v{SQ}")
    a(f"v_max_f32 v{SQ}, 0, v{SQ}")
    rbf(a, SQ)
    a(f"v_add_f32 v{SQ}, {hex(EPS5)}, v{SQ}")
    rbf(a, SQ)
    a(f"v_sqrt_f32 v{SQ}, v{SQ}")
    rbf(a, SM)
    rbf(a, SQ)
    a(f"v_rcp_f32 v{SQ}, v{SQ}")
    a(f"v_lshlrev_b32 v{TT}, 2, v{T}")
    a(f"v_mov_b32 v{TT+1}, {hex(OOB)}")
    a(f"v_cmp_eq_u32 vcc, 0, v{T+3}")
    a("s_lshl_b32 s33, s52, 6")
    a(f"s_add_u32 s33, s33, {ST_OFF}")
    a(f"v_cndmask_b32 v{TT}, v{TT+1}, v{TT}, vcc")
    a("s_add_u32 s34, s33, 8192")
    a(f"buffer_store_dword v{SM}, v{TT}, s[16:19], s33 offen sc1")
    a(f"buffer_store_dword v{SQ}, v{TT}, s[16:19], s34 offen sc1")
    a("s_waitcnt vmcnt(0)")
    a("s_barrier")
    tick(a, 0)
    a("s_cmp_lg_u32 s20, 0")
    a("s_cbranch_scc1 L_k1_sp_nofl")
    a("s_lshl_b32 s33, s32, 2")
    a(f"v_mov_b32 v{TT}, 1")
    a(f"buffer_store_dword v{TT}, off, s[44:47], s33 sc1")
    a.label("L_k1_sp_nofl")
    a("s_cmp_lt_u32 s52, 8")
    a("s_cbranch_scc0 L_k1_sp_nozero")
    a("s_lshl_b32 s34, s52, 7")
    a(f"s_add_u32 s34, s34, {FL_OFF}")
    a(f"v_and_b32 v{TT}, 31, v{V_LANE}")
    a(f"v_lshlrev_b32 v{TT}, 2, v{TT}")
    a(f"v_mov_b32 v{TT+1}, 0")
    a(f"buffer_store_dword v{TT+1}, v{TT}, s[16:19], s34 offen")
    a.label("L_k1_sp_nozero")
    round_loads(rounds[0])
    a("s_waitcnt vmcnt(0)")
    round_out(rounds[0])
    round_loads(rounds[1])
    a("s_waitcnt vmcnt(0)")
    round_out(rounds[1])

def gen_k1(a):
    T = V_T
    a.raw(".globl k1_kernel\n.p2align 8\n.type k1_kernel,@function")
    a.label("k1_kernel")
    a("s_cmp_ge_u32 s2, 256")
    a("s_cbranch_scc1 L_k1_exit")
    a("s_load_dwordx2 s[4:5], s[0:1], 0")
    a("s_load_dwordx4 s[64:67], s[0:1], 64")
    a("s_load_dwordx2 s[36:37], s[0:1], 8")
    a("s_load_dwordx4 s[40:43], s[0:1], 32")
    a(f"v_and_b32 v{V_LANE}, 63, v0")
    a(f"v_lshrrev_b32 v{T}, 6, v0")
    a("s_and_b32 s32, s2, 7")
    a(f"v_readfirstlane_b32 s20, v{T}")
    if OPT["prefetch_code"]:
        a("s_getpc_b64 s[62:63]")
        a(f"v_lshlrev_b32 v{T+1}, 7, v0")
        a(f"v_min_u32 v{T+1}, L_code_end-k1_kernel-256, v{T+1}")
        a(f"global_load_dword v{V_PRE}, v{T+1}, s[62:63]")
    a("s_lshr_b32 s33, s2, 3")
    if OPT["k1map"] == "4x8":
        a("s_and_b32 s21, s32, 1")
        a("s_lshl_b32 s21, s21, 2")
        a("s_and_b32 s34, s33, 3")
        a("s_add_u32 s21, s21, s34")
        a("s_lshr_b32 s35, s32, 1")
        a("s_lshl_b32 s35, s35, 3")
        a("s_lshr_b32 s34, s33, 2")
        a("s_add_u32 s35, s35, s34")
    elif OPT["k1map"] == "2x16":
        a("s_lshr_b32 s21, s32, 1")
        a("s_lshl_b32 s21, s21, 1")
        a("s_and_b32 s34, s33, 1")
        a("s_add_u32 s21, s21, s34")
        a("s_and_b32 s35, s32, 1")
        a("s_lshl_b32 s35, s35, 4")
        a("s_lshr_b32 s34, s33, 1")
        a("s_add_u32 s35, s35, s34")
    elif OPT["k1map"] == "8x4":
        a("s_and_b32 s21, s33, 7")
        a("s_lshl_b32 s35, s32, 2")
        a("s_lshr_b32 s34, s33, 3")
        a("s_add_u32 s35, s35, s34")
    elif OPT["k1map"] == "1x32":
        a("s_mov_b32 s21, s32")
        a("s_mov_b32 s35, s33")
    if OPT["rot"]:
        a("s_mul_i32 s25, s21, 3")
        a("s_add_u32 s25, s25, s35")
        a("s_mul_i32 s23, s25, 6554")
        a("s_lshr_b32 s23, s23, 16")
        a("s_mul_i32 s23, s23, 10")
        a("s_sub_u32 s25, s25, s23")
    else:
        a("s_mov_b32 s25, 0")
    a("s_lshl_b32 s23, s25, 7")
    a("s_lshl_b32 s32, s21, 3")
    a("s_add_u32 s32, s32, s20")
    a("s_lshl_b32 s49, s32, 7")
    a(f"s_add_u32 s49, s49, {ST_OFF}")
    a("s_add_u32 s50, s49, 8192")
    a("s_lshr_b32 s48, s32, 2")
    a("s_lshl_b32 s48, s48, 2")
    a("s_mul_i32 s32, s32, 40960")
    a("s_lshl_b32 s26, s20, 13")
    a(f"s_add_u32 s26, s26, {XL_LDS}")
    a(f"v_lshrrev_b32 v{T}, 3, v{V_LANE}")
    a(f"v_mul_u32_u24 v{T}, 1280, v{T}")
    a(f"v_add_u32 v{T}, s32, v{T}")
    a(f"v_lshrrev_b32 v{T+1}, 4, v{V_LANE}")
    a(f"v_and_b32 v{T+2}, 7, v{V_LANE}")
    a(f"v_xor_b32 v{T+1}, v{T+1}, v{T+2}")
    a(f"v_lshl_add_u32 v{V_XD}, v{T+1}, 4, v{T}")
    a(f"v_xor_b32 v{T+1}, 4, v{T+1}")
    a(f"v_lshl_add_u32 v{V_XD+1}, v{T+1}, 4, v{T}")
    a(f"v_add_u32 v{V_XD+1}, 10240, v{V_XD+1}")
    a(f"v_add_u32 v{V_XD+2}, 20480, v{V_XD}")
    a(f"v_add_u32 v{V_XD+3}, 20480, v{V_XD+1}")
    a(f"v_lshrrev_b32 v{T+1}, 5, v{V_LANE}")
    a(f"v_bfe_u32 v{T+2}, v{V_LANE}, 1, 3")
    a(f"v_xor_b32 v{T+2}, v{T+2}, v{T+1}")
    a(f"v_and_b32 v{T+3}, 31, v{V_LANE}")
    a(f"v_lshlrev_b32 v{T+3}, 7, v{T+3}")
    a(f"v_lshl_add_u32 v{T+3}, v{T+2}, 4, v{T+3}")
    for j in range(4):
        if j: a(f"v_xor_b32 v{V_XR+j}, {32 * j}, v{T+3}")
    a(f"v_add_u32 v{V_XR}, s26, v{T+3}")
    for j in range(1, 4):
        a(f"v_add_u32 v{V_XR+j}, s26, v{V_XR+j}")
    a(f"v_lshlrev_b32 v{T+4}, 3, v{T+1}")
    a(f"v_bfe_u32 v{T+2}, v{V_LANE}, 2, 2")
    a(f"v_add_u32 v{T+4}, v{T+4}, v{T+2}")
    a(f"v_bfe_u32 v{T+5}, v{V_LANE}, 4, 1")
    a(f"v_lshlrev_b32 v{T+5}, 2, v{T+5}")
    a(f"v_and_b32 v{T+2}, 3, v{V_LANE}")
    a(f"v_add_u32 v{T+5}, v{T+5}, v{T+2}")
    a("s_waitcnt lgkmcnt(0)")
    srd(a, 8, 4, 5, S * D * 2)
    srd(a, 16, 66, 67, WS_USED)
    srd(a, 44, 64, 65, 256)
    if OPT["stamp"]:
        srd(a, 92, 66, 67, WS_USED + 16 * 8192)
        stamp(a, 0, T + 8, T + 9)
    a("s_cmp_lt_u32 s35, 18")
    a("s_cbranch_scc1 L_k1_ffn")
    a("s_cmp_lt_u32 s35, 26")
    a("s_cbranch_scc1 L_k1_kv")
    a("s_cmp_lt_u32 s35, 30")
    a("s_cbranch_scc1 L_k1_q")
    a("s_sub_u32 s22, s35, 30")
    k1_spare(a)
    stamp(a, 1, V_U, V_U + 1)
    a("s_branch L_k1_end")

    a.label("L_k1_ffn")
    a("s_mov_b32 s22, s35")
    a("s_cmp_lt_u32 s20, 4")
    a("s_cselect_b32 s12, s40, s42")
    a("s_cselect_b32 s13, s41, s43")
    a("s_cselect_b32 s28, 0, 12288")
    a("s_and_b32 s13, s13, 0xffff")
    a(f"s_mov_b32 s14, {D * F * 2}")
    a("s_mov_b32 s15, 0x20000")
    a("s_and_b32 s32, s20, 3")
    a("s_mul_i32 s33, s32, 3072")
    a("s_add_u32 s28, s28, s33")
    a("s_add_u32 s29, s28, 1024")
    a("s_add_u32 s30, s28, 2048")
    a("s_mul_i32 s33, s32, 192")
    a("s_mul_i32 s34, s22, 192")
    for i in range(3):
        a(f"s_add_u32 s38, s33, {64 * i}")
        a(f"v_add_u32 v{T}, s38, v{V_LANE}")
        a(f"v_mul_u32_u24 v{T+1}, 43691, v{T}")
        a(f"v_lshrrev_b32 v{T+1}, 19, v{T+1}")
        a(f"v_mul_u32_u24 v{T+2}, 12, v{T+1}")
        a(f"v_sub_u32 v{T+2}, v{T}, v{T+2}")
        a(f"v_mul_u32_u24 v{T+1}, 3456, v{T+1}")
        a(f"v_lshl_add_u32 v{T+1}, v{T+2}, 4, v{T+1}")
        a(f"v_add_u32 v{V_D0+i}, s34, v{T+1}")
    def late_ffn():
        a(f"v_mul_u32_u24 v{V_R0}, 192, v{T+4}")
        a(f"v_lshl_add_u32 v{V_R0}, v{T+5}, 3, v{V_R0}")
        a("s_min_u32 s32, s20, 5")
        a("s_and_b32 s33, s32, 1")
        a("s_mul_i32 s33, s33, 12288")
        a("s_lshr_b32 s32, s32, 1")
        a("s_lshl_b32 s32, s32, 6")
        a("s_add_u32 s32, s32, s33")
        a(f"v_add_u32 v{V_RC}, s32, v{V_R0}")
        k1_pre_fq(a, HB_OFF, 54, 3)
    vq = k1_mainloop(a, "ffn", "ffn", late_ffn)
    stamp(a, 1, V_U + 2, V_U + 3)
    k1_epi_ffn(a, vq)
    a("s_branch L_k1_end")
    k1_spin(a, "ffn")

    def qkv_common(kind):
        srd(a, 12, 36, 37, D * 1920 * 2)
        a("s_lshl_b32 s28, s20, 10")
        a("s_add_u32 s29, s28, 8192")
        a("s_add_u32 s30, s28, 16384")
        a("s_lshl_b32 s33, s20, 6")
        if kind == "q":
            a("s_mul_i32 s34, s22, 320")
        else:
            a("s_mul_i32 s34, s22, 160")
            a("s_add_u32 s34, s34, 1280")
        for i in range(3):
            a(f"s_add_u32 s38, s33, {512 * i}")
            a(f"v_add_u32 v{T}, s38, v{V_LANE}")
            a(f"v_mul_u32_u24 v{T+1}, 52429, v{T}")
            a(f"v_lshrrev_b32 v{T+1}, 20, v{T+1}")
            a(f"v_mul_u32_u24 v{T+2}, 20, v{T+1}")
            a(f"v_sub_u32 v{T+2}, v{T}, v{T+2}")
            a(f"v_mul_u32_u24 v{T+3}, 3840, v{T+1}")
            a(f"v_lshl_add_u32 v{T+3}, v{T+2}, 4, v{T+3}")
            if kind == "kv":
                a(f"v_cmp_lt_u32 vcc, 9, v{T+2}")
                a(f"v_add_u32 v{T+6}, {1280 - 160}, v{T+3}")
                a("s_nop 0")
                a(f"v_cndmask_b32 v{T+3}, v{T+3}, v{T+6}, vcc")
            a(f"v_add_u32 v{V_D0+i}, s34, v{T+3}")
            if i == 2:
                a(f"v_cmp_lt_u32 vcc, 63, v{T+1}")
                a(f"v_mov_b32 v{T+6}, {hex(OOB)}")
                a("s_nop 0")
                a(f"v_cndmask_b32 v{V_D0+i}, v{V_D0+i}, v{T+6}, vcc")

    a.label("L_k1_kv")
    a("s_sub_u32 s22, s35, 18")
    qkv_common("kv")
    def nib(l):
        v = 0
        for i, x in enumerate(l): v |= x << (4 * i)
        return v
    tabs = [(0, nib([0, 1, 2, 3, 4, 7, 5, 6])), (28, nib([0, 1, 2, 7, 3, 4, 5, 6])), (48, nib([2, 0, 3, 4, 5, 6, 7, 1]))]
    def late_kv():
        a(f"v_mul_u32_u24 v{T+6}, 320, v{T+4}")
        a(f"v_lshlrev_b32 v{T+7}, 2, v{T+5}")
        for u, (ws, tb) in enumerate(tabs):
            a(f"s_mov_b32 s32, {hex(tb)}")
            a(f"v_bfe_u32 v{T}, s32, v{T+7}, 4")
            a(f"v_lshl_add_u32 v{T}, v{T}, 3, v{T+6}")
            a(f"v_add_u32 v{V_R0+u}, {2 * ws}, v{T}")
        a(f"v_mov_b32 v{V_RC}, v{V_R0}")
        for w in (1, 2, 3, 4, 5):
            a(f"s_cmp_eq_u32 s20, {w}")
            a(f"s_cselect_b64 s[38:39], -1, 0")
            a(f"v_add_u32 v{T}, {160 * (w // 3)}, v{V_R0 + (w % 3)}")
            a(f"v_cndmask_b32 v{V_RC}, v{V_RC}, v{T}, s[38:39]")
        a(f"v_lshrrev_b32 v{V_NM}, 5, v{V_LANE}")
        a(f"v_lshlrev_b32 v{V_NM}, 4, v{V_NM}")
    vq = k1_mainloop(a, "kv", "kv", late_kv)
    stamp(a, 1, V_U + 2, V_U + 3)
    k1_epi_kv(a, vq)
    a("s_branch L_k1_end")
    k1_spin(a, "kv")

    a.label("L_k1_q")
    a("s_sub_u32 s22, s35, 26")
    qkv_common("q")
    def late_q():
        a(f"v_lshrrev_b32 v{T}, 2, v{T+5}")
        a(f"v_lshlrev_b32 v{T}, 1, v{T}")
        a(f"v_and_b32 v{T+1}, 1, v{T+5}")
        a(f"v_add_u32 v{T}, v{T}, v{T+1}")
        a(f"v_mul_u32_u24 v{T}, 80, v{T}")
        a(f"v_bfe_u32 v{T+1}, v{T+5}, 1, 1")
        a(f"v_lshl_add_u32 v{T}, v{T+1}, 3, v{T}")
        a(f"v_mul_u32_u24 v{T+6}, 320, v{T+4}")
        a(f"v_add_u32 v{V_R0}, v{T}, v{T+6}")
        a("s_min_u32 s32, s20, 4")
        a("s_lshl_b32 s32, s32, 4")
        a(f"v_add_u32 v{V_RC}, s32, v{V_R0}")
        k1_pre_fq(a, PQ_OFF, 20, 5)
    vq = k1_mainloop(a, "q", "q", late_q)
    stamp(a, 1, V_U + 2, V_U + 3)
    k1_epi_q(a, vq)
    a.label("L_k1_end")
    if OPT["stamp"]:
        tick(a, 6)
        a("s_waitcnt vmcnt(0)")
        stamp(a, 2, V_U + 2, V_U + 3)
        tick_dump(a, 3, 0, V_U + 2, V_U + 3, "k1")
    a.label("L_k1_exit")
    a("s_endpgm")
    k1_spin(a, "q")

K2_LDS = 163840
W_LANE, W_L16, W_L16B, W_T = 1, 2, 3, 4
W_PRE = 23
W_X = 24
H_ACC = 176
H_RING = 32
S_PQ, S_M, S_Z, S_ACC = 32, 112, 212, 232
FLAG_LDS = 163840 - 16

def k2_producer(a):
    T = W_T
    PB, PW = 112, 180
    SCR = 81920
    a(f"v_cmp_gt_u32 vcc, 56, v{W_LANE}")
    a(f"v_add_u32 v{T+3}, 1024, v{W_L16}")
    a(f"v_mov_b32 v{T+4}, {hex(OOB)}")
    a("s_mul_i32 s32, s21, 1920")
    a(f"s_add_u32 s32, s32, {KVP_OFF}")
    a(f"v_cndmask_b32 v{T+3}, v{T+4}, v{T+3}, vcc")
    for p in range(8):
        a(f"buffer_load_dwordx4 {vr(PB + 8 * p, 4)}, v{W_L16}, s[16:19], s32 offen")
        a(f"buffer_load_dwordx4 {vr(PB + 8 * p + 4, 4)}, v{T+3}, s[16:19], s32 offen")
        if p < 7:
            a(f"s_add_u32 s32, s32, {32 * 1920}")
    a("s_lshl_b32 s32, s21, 3")
    a("s_add_u32 s32, s32, s22")
    a("s_mul_i32 s32, s32, 5120")
    a(f"s_add_u32 s32, s32, {WOF_OFF}")
    for nb in range(5):
        if nb < 4:
            a(f"buffer_load_dwordx4 {vr(PW + 4 * nb, 4)}, v{W_L16}, s[16:19], s32 offen offset:{nb * 1024}")
        else:
            a(f"buffer_load_dwordx4 {vr(PW + 4 * nb, 4)}, v{W_L16B}, s[16:19], s32 offen")

def k2_producer2(a):
    T = W_T
    PB, PW = 112, 180
    SCR = 81920
    a(f"v_and_b32 v{T}, 15, v{W_LANE}")
    a(f"v_lshrrev_b32 v{T+1}, 4, v{W_LANE}")
    a(f"v_cmp_eq_u32 vcc, 2, v{T+1}")
    a(f"v_mov_b32 v{PW+20}, 0")
    a(f"v_mov_b32 v{PW+21}, 0")
    a(f"v_mov_b32 v{PW+23}, 0")
    a(f"v_mov_b32 v{T+5}, 0x3f80")
    a(f"v_cndmask_b32 v{PW+22}, 0, v{T+5}, vcc")
    a("s_lshr_b32 s33, s21, 3")
    a("s_bfe_u32 s34, s21, 0x20001")
    a("s_and_b32 s35, s21, 1")
    a("s_mul_i32 s35, s35, 20")
    a("s_mul_i32 s38, s22, 20")
    a("s_mul_i32 s39, s33, 5")
    a("s_add_u32 s38, s38, s39")
    a("s_mul_i32 s40, s38, 5120")
    a("s_lshl_b32 s41, s34, 8")
    a("s_add_u32 s40, s40, s41")
    a(f"s_add_u32 s40, s40, {MF_OFF}")
    a("s_lshl_b32 s42, s38, 6")
    a("s_lshl_b32 s41, s34, 4")
    a("s_add_u32 s42, s42, s41")
    a(f"s_add_u32 s42, s42, {ZF_OFF}")
    for tl in range(2):
        a(f"v_lshlrev_b32 v{T+6}, 2, v{T+1}")
        a(f"v_add_u32 v{T+6}, s35, v{T+6}")
        if tl:
            a(f"v_add_u32 v{T+6}, 16, v{T+6}")
        a(f"v_lshrrev_b32 v{T+7}, 3, v{T+6}")
        a(f"v_bfe_u32 v{T+8}, v{T+6}, 2, 1")
        a(f"v_lshlrev_b32 v{T+8}, 3, v{T+8}")
        a(f"v_mul_u32_u24 v{T+9}, 5120, v{T+7}")
        a(f"v_lshl_add_u32 v{T+9}, v{T}, 4, v{T+9}")
        a(f"v_cmp_eq_u32 vcc, 0, v{T}")
        a(f"v_add3_u32 v{T+10+tl}, v{T+9}, v{T+8}, s40")
        a(f"v_lshl_add_u32 v{T+9}, v{T+7}, 6, v{T+8}")
        a(f"v_add_u32 v{T+12+tl}, s42, v{T+9}")
        a(f"v_cndmask_b32 v{T+12+tl}, v{T+4}, v{T+12+tl}, vcc")
        if tl:
            a(f"v_cmp_eq_u32 vcc, 0, v{T+1}")
            a("s_nop 1")
            a(f"v_cndmask_b32 v{T+10+tl}, v{T+4}, v{T+10+tl}, vcc")
            a(f"v_cndmask_b32 v{T+12+tl}, v{T+4}, v{T+12+tl}, vcc")
    a(f"v_lshlrev_b32 v{T+14}, 3, v{W_LANE}")
    a(f"v_add_u32 v{T+14}, {SCR}, v{T+14}")
    a(f"v_mul_u32_u24 v{T+15}, 40, v{T+1}")
    a(f"v_add_u32 v{T+15}, v{T+15}, v{T}")
    a(f"v_add_u32 v{T+16}, 16, v{T+15}")
    a(f"v_mov_b32 v{T+17}, 120")
    a(f"v_cmp_gt_u32 vcc, 3, v{T+1}")
    a("s_lshl_b32 s32, s22, 7")
    a("s_lshl_b32 s33, s21, 2")
    a(f"v_cndmask_b32 v{T+15}, v{T+17}, v{T+15}, vcc")
    a(f"v_cndmask_b32 v{T+16}, v{T+17}, v{T+16}, vcc")
    a(f"v_cndmask_b32 v{T+18}, 0, 20, vcc")
    a(f"v_cmp_gt_u32 vcc, 4, v{T}")
    a("s_add_u32 s32, s32, s33")
    a(f"s_add_u32 s32, s32, {FL_OFF}")
    a(f"v_cndmask_b32 v{T+16}, v{T+17}, v{T+16}, vcc")
    a(f"v_cndmask_b32 v{T+17}, 0, v{T+18}, vcc")
    a(f"v_add_u32 v{T+18}, v{T+18}, v{T+15}")
    a(f"v_add_u32 v{T+17}, v{T+17}, v{T+16}")
    for r in (15, 16, 17, 18):
        a(f"v_lshlrev_b32 v{T+r}, 3, v{T+r}")
        a(f"v_add_u32 v{T+r}, {SCR}, v{T+r}")
    for p in range(1, 8):
        a(f"s_waitcnt vmcnt({5 + 2 * (7 - p) + NPRE_S})")
        for r in range(0, 8, 2):
            a(pk("add", PB + r, PB + r, PB + 8 * p + r))
    for r in range(4):
        a(f"v_cvt_pk_bf16_f32 v{PB+8+r}, v{PB+2*r}, v{PB+2*r+1}")
    a(f"ds_write_b64 v{T+14}, {vr(PB + 8, 2)}")
    a(f"ds_write_b64 v{T+14}, {vr(PB + 10, 2)} offset:512")
    a("s_waitcnt lgkmcnt(0)")
    AF = PB + 16
    a(f"ds_read_b64 {vr(AF, 2)}, v{T+15}")
    a(f"ds_read_b64 {vr(AF + 2, 2)}, v{T+18}")
    a(f"ds_read_b64 {vr(AF + 4, 2)}, v{T+16}")
    a(f"ds_read_b64 {vr(AF + 6, 2)}, v{T+17}")
    a(f"s_waitcnt vmcnt({NPRE_S}) lgkmcnt(0)")
    DD = 204 - 48 + 48
    for nb in range(6):
        for tl in range(2):
            a(f"v_mfma_f32_16x16x32_bf16 {vr(DD + 8 * nb + 4 * tl, 4)}, {vr(AF + 4 * tl, 4)}, {vr(PW + 4 * nb, 4)}, 0")
    a("s_mov_b32 s43, 4096")
    a(f"v_mov_b32 v{T+5}, 1")
    for nb in range(6):
        for tl in range(2):
            d = DD + 8 * nb + 4 * tl
            a(f"v_cvt_pk_bf16_f32 v{d}, v{d}, v{d+1}")
            a(f"v_cvt_pk_bf16_f32 v{d+1}, v{d+2}, v{d+3}")
            if nb < 4:
                a(f"buffer_store_dwordx2 {vr(d, 2)}, v{T+10+tl}, s[16:19], 0 offen offset:{nb * 1024} sc1")
            elif nb == 4:
                a(f"buffer_store_dwordx2 {vr(d, 2)}, v{T+10+tl}, s[16:19], s43 offen sc1")
            else:
                a(f"buffer_store_dwordx2 {vr(d, 2)}, v{T+12+tl}, s[16:19], 0 offen sc1")
    if OPT["k2_hold"] and OPT["k2_early"]: a("s_barrier")
    tick(a, 7)
    a("s_waitcnt vmcnt(0)")
    a(f"buffer_store_dword v{T+5}, off, s[16:19], s32 sc1")

NPRE_S = 20

def gen_k2(a):
    T = W_T
    a.raw(".globl k2_kernel\n.p2align 8\n.type k2_kernel,@function")
    a.label("k2_kernel")
    a("s_cmp_ge_u32 s2, 256")
    a("s_cbranch_scc1 L_k2_end")
    a("s_load_dwordx2 s[4:5], s[0:1], 0")
    a("s_load_dwordx2 s[6:7], s[0:1], 72")
    a("s_load_dwordx2 s[36:37], s[0:1], 56")
    a(f"v_and_b32 v{W_LANE}, 63, v0")
    a(f"v_lshrrev_b32 v{T}, 6, v0")
    a(f"v_lshlrev_b32 v{W_L16}, 4, v{W_LANE}")
    a(f"v_readfirstlane_b32 s20, v{T}")
    a(f"v_add_u32 v{W_L16B}, 4096, v{W_L16}")
    if OPT["prefetch_code"]:
        a("s_getpc_b64 s[62:63]")
        a(f"v_lshlrev_b32 v{T+1}, 7, v0")
        a(f"v_min_u32 v{T+1}, L_code_end-k2_kernel-256, v{T+1}")
        a(f"global_load_dword v{W_PRE}, v{T+1}, s[62:63]")
    a("s_and_b32 s32, s2, 7")
    a("s_lshr_b32 s33, s2, 3")
    if OPT["k2map"] == "8x4":
        a("s_lshr_b32 s21, s32, 1")
        a("s_lshl_b32 s21, s21, 3")
        a("s_and_b32 s34, s33, 7")
        a("s_add_u32 s21, s21, s34")
        a("s_and_b32 s22, s32, 1")
        a("s_lshl_b32 s22, s22, 2")
        a("s_lshr_b32 s34, s33, 3")
        a("s_add_u32 s22, s22, s34")
    elif OPT["k2map"] == "4x8":
        a("s_lshl_b32 s21, s32, 2")
        a("s_and_b32 s34, s33, 3")
        a("s_add_u32 s21, s21, s34")
        a("s_lshr_b32 s22, s33, 2")
    a("s_and_b32 s27, s20, 3")
    a("s_waitcnt lgkmcnt(0)")
    srd(a, 16, 6, 7, WS_USED)
    if OPT["stamp"]:
        srd(a, 92, 6, 7, WS_USED + 16 * 8192)
        stamp(a, 4, T + 16, T + 17)
    def setup(ntile, tile0):
        srd(a, 8, 4, 5, S * D * 2)
        srd(a, 12, 36, 37, S * D * 2)
        a("s_lshl_b32 s33, s21, 2")
        a("s_add_u32 s33, s33, s27")
        a("s_mul_i32 s33, s33, 20480")
        a("s_mul_i32 s34, s22, 160")
        a("s_add_u32 s33, s33, s34")
        a(f"s_add_u32 s33, s33, {32 * tile0}")
        a(f"v_lshrrev_b32 v{T+3}, 2, v{W_LANE}")
        a(f"v_and_b32 v{T+4}, 3, v{W_LANE}")
        a(f"v_mul_u32_u24 v{T}, 1280, v{T+3}")
        a(f"v_lshl_add_u32 v{T}, v{T+4}, 3, v{T}")
        a(f"v_add_u32 v{T}, s33, v{T}")
        a(f"v_bfe_u32 v{T+5}, v{T+3}, 1, 2")
        a(f"v_xor_b32 v{T+5}, v{T+5}, v{T+4}")
        a(f"v_lshl_add_u32 v{T+5}, v{T+3}, 2, v{T+5}")
        a("s_mul_i32 s33, s27, 5120")
        a(f"s_add_u32 s33, s33, {1024 * tile0}")
        a(f"v_lshl_add_u32 v{T+2}, v{T+5}, 4, s33")
        a(f"v_and_b32 v{T+3}, 15, v{W_LANE}")
        a(f"v_lshrrev_b32 v{T+4}, 4, v{W_LANE}")
        a(f"v_bfe_u32 v{T+5}, v{T+3}, 1, 2")
        a(f"v_xor_b32 v{T+5}, v{T+5}, v{T+4}")
        a(f"v_lshl_add_u32 v{T+5}, v{T+3}, 2, v{T+5}")
        a("s_mul_i32 s33, s20, 20480")
        a(f"v_lshl_add_u32 v{T+1}, v{T+5}, 4, s33")
    def final(ntile, vq, tag):
        N = 32
        RD = 64
        XE = 140
        nv = 4 * ntile
        vq.wait("x")
        for i in range(2 * ntile):
            a(f"v_lshlrev_b32 v{XE + 2 * i}, 16, v{W_X + i}")
            a(f"v_and_b32 v{XE + 2 * i + 1}, 0xffff0000, v{W_X + i}")
        a(f"v_mov_b32 v{T+10}, {hex(LOG2E | 0x80000000)}")
        a(f"v_mov_b32 v{T+12}, 1.0")
        a(f"v_add_u32 v{T+3}, 61440, v{T+2}")
        a(f"v_add_u32 v{T+4}, 122880, v{T+2}")
        a("s_waitcnt lgkmcnt(0)")
        a("s_barrier")
        tick(a, 5)
        lq = LQ(a)
        def dst(src, t):
            if src == 0: return N + 4 * t
            if src == 4: return N + nv + 4 * t
            return RD + (src - 1 - (src > 4)) * nv + 4 * t
        for src in range(8):
            av, off = [(T + 2, 0), (T + 3, 61440), (T + 4, 122880)][src // 3]
            for t in range(ntile):
                lq.issue(f"p{src}", f"ds_read_b128 {vr(dst(src, t), 4)}, v{av} offset:{src * 20480 - off + t * 1024}")
        E = 176
        for src in (1, 2, 3):
            lq.wait("p0", f"p{src}")
            for i in range(0, nv, 2):
                a(pk("add", N + i, N + i, dst(src, 0) + i))
        for i in range(0, nv, 2):
            a(pk("mul", E + i, N + i, T + 10, bc=(1,)))
        for i in range(nv):
            a(f"v_exp_f32 v{E + i}, v{E + i}")
        for src in (5, 6, 7):
            lq.wait("p4", f"p{src}")
            for i in range(0, nv, 2):
                a(pk("add", N + nv + i, N + nv + i, dst(src, 0) + i))
        for i in range(0, nv, 2):
            a(pk("add", E + i, E + i, T + 12, bc=(1,)))
            a(pk("mul", N + i, N + i, N + nv + i))
        for i in range(nv):
            a(f"v_rcp_f32 v{E + i}, v{E + i}")
        a("s_nop 0")
        for i in range(0, nv, 2):
            a(pk("fma", XE + i, N + i, E + i, XE + i))
        for t in range(ntile):
            a(f"v_cvt_pk_bf16_f32 v{N + 2 * t}, v{XE + 4 * t}, v{XE + 4 * t + 1}")
            a(f"v_cvt_pk_bf16_f32 v{N + 2 * t + 1}, v{XE + 4 * t + 2}, v{XE + 4 * t + 3}")
            a(f"buffer_store_dwordx2 {vr(N + 2 * t, 2)}, v{T}, s[12:15], 0 offen offset:{t * 32}")
        if OPT["stamp"]:
            tick(a, 6)
            a("s_waitcnt vmcnt(0)")
            stamp(a, 5, T + 16, T + 17)
            tick_dump(a, 6 if tag == "h" else 7, 0 if tag == "h" else 4, T + 16, T + 17, "k2" + tag)
    def xloads(vq, ntile):
        for t in range(ntile):
            vq.issue("x", f"buffer_load_dwordx2 {vr(W_X + 2 * t, 2)}, v{T}, s[8:11], 0 offen offset:{t * 32}")

    a("s_cmp_ge_u32 s20, 4")
    a("s_cbranch_scc1 L_k2_s")
    vq = VQ(a)
    RH, NK = OPT["k2_ring"], 14
    a("s_mul_i32 s32, s27, 14")
    a("s_cmp_eq_u32 s27, 3")
    a("s_cselect_b32 s32, 41, s32")
    a("s_mul_i32 s23, s21, 54")
    a("s_add_u32 s23, s23, s32")
    a("s_lshl_b32 s23, s23, 12")
    a("s_mul_i32 s24, s22, 54")
    a("s_add_u32 s24, s24, s32")
    a("s_mul_i32 s24, s24, 5120")
    a(f"s_add_u32 s24, s24, {W2F_OFF}")
    def ring_loads(k):
        R = H_RING + 36 * (k % RH)
        if k == NK - 1:
            a("s_cmp_ge_u32 s27, 2")
            a(f"s_cselect_b32 s23, {OOB}, s23")
            a(f"s_cselect_b32 s24, {OOB}, s24")
        for rb in range(4):
            vq.issue(f"R{k}", f"buffer_load_dwordx4 {vr(R + 4 * rb, 4)}, v{W_L16}, s[16:19], s23 offen offset:{rb * 1024}")
        for nb in range(5):
            if nb < 4:
                vq.issue(f"R{k}", f"buffer_load_dwordx4 {vr(R + 16 + 4 * nb, 4)}, v{W_L16}, s[16:19], s24 offen offset:{nb * 1024}")
            else:
                vq.issue(f"R{k}", f"buffer_load_dwordx4 {vr(R + 16 + 4 * nb, 4)}, v{W_L16B}, s[16:19], s24 offen")
        a("s_add_u32 s23, s23, 4096")
        a("s_add_u32 s24, s24, 5120")
    init = min(OPT["k2_init"], RH)
    ring_loads(0)
    setup(3, 0)
    a("s_barrier")
    for k in range(1, init): ring_loads(k)
    issued = init
    HK = OPT["k2_hold"]
    for k in range(NK):
        if HK and k == HK - 1 + 1 - 1 and HK == 1: pass
        if k in (0, 4, 8, 12): tick(a, k // 4)
        vq.wait(f"R{k}")
        R = H_RING + 36 * (k % RH)
        for rb in range(4):
            for nb in range(5):
                acc = vr(H_ACC + 20 * rb + 4 * nb, 4)
                a(f"v_mfma_f32_16x16x32_bf16 {acc}, {vr(R + 16 + 4 * nb, 4)}, {vr(R + 4 * rb, 4)}, {'0' if k == 0 else acc}")
            if k == NK - 1 and rb > 0:
                for nb in range(5):
                    a(f"ds_write_b128 v{T+1}, {vr(H_ACC + 20 * (rb - 1) + 4 * nb, 4)} offset:{(rb - 1) * 5120 + nb * 1024}")
        n = 0
        if HK and k == HK - 1:
            a("s_barrier")
        depth = init if (HK and k < HK - 1) else RH
        while issued < NK and issued <= k + depth and n < (RH if HK and k == HK - 1 else 2):
            ring_loads(issued); issued += 1; n += 1
        if k == 8: xloads(vq, 3)
    tick(a, 4)
    a("s_nop 3")
    for nb in range(5):
        a(f"ds_write_b128 v{T+1}, {vr(H_ACC + 60 + 4 * nb, 4)} offset:{3 * 5120 + nb * 1024}")
    final(3, vq, "h")
    a.label("L_k2_end")
    a("s_endpgm")

    def s_offsets():
        a("s_mul_i32 s33, s27, 5")
        a("s_mul_i32 s25, s21, 20")
        a("s_add_u32 s25, s25, s33")
        a("s_lshl_b32 s25, s25, 12")
        a(f"s_add_u32 s25, s25, {PQ_OFF}")
        a("s_mul_i32 s26, s22, 20")
        a("s_add_u32 s26, s26, s33")
        a("s_lshl_b32 s28, s26, 6")
        a(f"s_add_u32 s28, s28, {ZF_OFF}")
        a("s_mul_i32 s26, s26, 5120")
        a(f"s_add_u32 s26, s26, {MF_OFF}")
        a("s_lshl_b32 s30, s22, 7")
        a(f"s_add_u32 s30, s30, {FL_OFF}")
    def pq_loads(vq):
        for u in range(5):
            for rb in range(4):
                vq.issue("pq", f"buffer_load_dwordx4 {vr(S_PQ + 20 * rb + 4 * u, 4)}, v{W_L16}, s[16:19], s25 offen offset:{rb * 1024}")
            a("s_add_u32 s25, s25, 4096")
    a.label("L_k2_s")
    vq = VQ(a)
    a("s_cmp_lg_u32 s20, 4")
    a("s_cbranch_scc1 L_k2_s1")
    if OPT["k2_noprod"]: a("s_branch L_k2_s1")
    a("s_setprio 3")
    k2_producer(a)
    s_offsets()
    pq_loads(VQ(a))
    a(f"v_mov_b32 v{T+6}, {FLAG_LDS}")
    a(f"v_mov_b32 v{T+7}, 0")
    a(f"ds_write_b32 v{T+6}, v{T+7}")
    a("s_waitcnt lgkmcnt(0)")
    a("s_barrier")
    k2_producer2(a)
    tick(a, 0)
    a("s_branch L_k2_s2")
    a.label("L_k2_s1")
    a("s_barrier")
    s_offsets()
    if OPT["k2_hold"] and OPT["k2_early"]: a("s_barrier")
    pq_loads(vq)
    a.label("L_k2_s2")
    if OPT["k2_hold"] and not OPT["k2_early"]: a("s_barrier")
    if OPT["k2_sprio"]: a(f"s_setprio {OPT['k2_sprio']}")
    setup(2, 3)
    xloads(vq, 2)
    a(f"v_lshrrev_b32 v{T+8}, 4, v{W_LANE}")
    a(f"v_lshlrev_b32 v{T+8}, 4, v{T+8}")
    a(f"v_mov_b32 v{T+6}, {FLAG_LDS}")
    a("s_mov_b32 s29, 0")
    if OPT["k2_noprod"]: a("s_branch L_k2_go")
    a("s_cmp_lg_u32 s20, 4")
    a("s_cbranch_scc1 L_k2_wl")
    a(f"v_and_b32 v{T+9}, 31, v{W_LANE}")
    a(f"v_lshlrev_b32 v{T+9}, 2, v{T+9}")
    a.label("L_k2_poll")
    a(f"buffer_load_dword v{T+7}, v{T+9}, s[16:19], s30 offen sc1")
    a("s_add_u32 s29, s29, 1")
    a("s_cmp_ge_u32 s29, 200000")
    a("s_waitcnt vmcnt(0)")
    a("s_cbranch_scc1 L_k2_rel")
    a(f"v_cmp_ne_u32 vcc, 1, v{T+7}")
    a("s_cbranch_vccz L_k2_rel")
    a(f"s_sleep {OPT['k2_sleep']}")
    a("s_branch L_k2_poll")
    a.label("L_k2_rel")
    a(f"v_mov_b32 v{T+7}, 1")
    a(f"ds_write_b32 v{T+6}, v{T+7}")
    a(f"s_setprio {OPT['k2_sprio']}")
    a("s_branch L_k2_go")
    a.label("L_k2_wl")
    a("s_sleep 2")
    a(f"ds_read_b32 v{T+7}, v{T+6}")
    a("s_add_u32 s29, s29, 1")
    a("s_cmp_ge_u32 s29, 400000")
    a("s_waitcnt lgkmcnt(0)")
    a("s_cbranch_scc1 L_k2_go")
    a(f"v_cmp_ne_u32 vcc, 1, v{T+7}")
    a("s_cbranch_vccnz L_k2_wl")
    a.label("L_k2_go")
    tick(a, 1)
    for u in range(5):
        vq.issue("z", f"buffer_load_dwordx4 {vr(S_Z + 4 * u, 4)}, v{T+8}, s[16:19], s28 offen offset:{u * 64} sc1")
    for u in range(5):
        for nb in range(5):
            if nb < 4:
                vq.issue(f"M{u}", f"buffer_load_dwordx4 {vr(S_M + 20 * u + 4 * nb, 4)}, v{W_L16}, s[16:19], s26 offen offset:{nb * 1024} sc1")
            else:
                vq.issue(f"M{u}", f"buffer_load_dwordx4 {vr(S_M + 20 * u + 4 * nb, 4)}, v{W_L16B}, s[16:19], s26 offen sc1")
        a("s_add_u32 s26, s26, 5120")
    N = T + 10
    def norm(rb):
        P = S_PQ + 20 * rb
        for hd in range(2):
            a(f"v_mov_b32 v{N + 2 * hd}, {hex(EPS6)}")
            a(f"v_mov_b32 v{N + 2 * hd + 1}, 0")
        for i in range(10):
            for hd in range(2):
                dn = N + 2 * hd + (i & 1)
                a(f"v_dot2_f32_bf16 v{dn}, v{P + 10 * hd + i}, v{S_Z + 10 * hd + i}, v{dn}")
        a("s_nop 2")
        for hd in range(2):
            a(f"v_add_f32 v{N + 2 * hd}, v{N + 2 * hd}, v{N + 2 * hd + 1}")
        for hd in range(2):
            a(f"v_rcp_f32 v{N + 2 * hd}, v{N + 2 * hd}")
        E = S_ACC
        for i0 in range(0, 20, 10):
            for i in range(i0, i0 + 10):
                e = E + 2 * (i % 10)
                a(f"v_lshlrev_b32 v{e}, 16, v{P + i}")
                a(f"v_and_b32 v{e + 1}, 0xffff0000, v{P + i}")
            for i in range(i0, i0 + 10):
                e = E + 2 * (i % 10)
                a(pk("mul", e, e, N + 2 * (i // 10), bc=(1,)))
            for i in range(i0, i0 + 10):
                e = E + 2 * (i % 10)
                a(f"v_cvt_pk_bf16_f32 v{P + i}, v{e}, v{e + 1}")
    vq.wait("pq", "z")
    tick(a, 2)
    for rb in range(4): norm(rb)
    tick(a, 3)
    for rb in range(4):
        AC = S_ACC if rb % 2 == 0 else S_Z
        for u in range(5):
            vq.wait(f"M{u}")
            if rb == 0 and u == 0: a("s_nop 0")
            if rb >= 2 and u == 0: a("s_waitcnt lgkmcnt(0)")
            for nb in range(5):
                acc = vr(AC + 4 * nb, 4)
                a(f"v_mfma_f32_16x16x32_bf16 {acc}, {vr(S_M + 20 * u + 4 * nb, 4)}, {vr(S_PQ + 20 * rb + 4 * u, 4)}, {'0' if u == 0 else acc}")
            if rb > 0 and u == 1:
                PA = S_ACC if (rb - 1) % 2 == 0 else S_Z
                for nb in range(5):
                    a(f"ds_write_b128 v{T+1}, {vr(PA + 4 * nb, 4)} offset:{(rb - 1) * 5120 + nb * 1024}")
    a("s_nop 7")
    for nb in range(5):
        a(f"ds_write_b128 v{T+1}, {vr(S_Z + 4 * nb, 4)} offset:{3 * 5120 + nb * 1024}")
    tick(a, 4)
    final(2, vq, "s")
    a("s_endpgm")

def kd(name, vgpr, accum, sgpr=102):
    return f""".amdhsa_kernel {name}
  .amdhsa_next_free_vgpr {vgpr}
  .amdhsa_next_free_sgpr {sgpr}
  .amdhsa_accum_offset {accum}
  .amdhsa_group_segment_fixed_size 0
  .amdhsa_kernarg_size 80
  .amdhsa_user_sgpr_count 2
  .amdhsa_user_sgpr_kernarg_segment_ptr 1
  .amdhsa_system_sgpr_workgroup_id_x 1
.end_amdhsa_kernel"""

def main():
    a = Asm()
    a.raw(f"; @launch kernel=k1_kernel grid=(256,1,1) block=(512,1,1) lds={K1_LDS}")
    a.raw(f"; @launch kernel=k2_kernel grid=(256,1,1) block=(512,1,1) lds={K2_LDS}")
    if OPT["k2_twice"]:
        a.raw(f"; @launch kernel=k2_kernel grid=(256,1,1) block=(512,1,1) lds={K2_LDS}")
    a.raw('.amdgcn_target "amdgcn-amd-amdhsa--gfx950"')
    a.raw(".text")
    gen_k1(a)
    gen_k2(a)
    a.label("L_code_end")
    a("s_endpgm")
    a.raw('.section .rodata,"a"')
    a.raw(".p2align 6")
    a.raw(kd("k1_kernel", 256, 256))
    a.raw(".p2align 6")
    a.raw(kd("k2_kernel", 256, 256))
    open(sys.argv[1], "w").write(a.text())

if __name__ == "__main__":
    main()
```

```python
import sys

S, D, F = 2048, 640, 1728

HB_OFF   = 0
HB_SZ    = 32 * 54 * 4096
PQ_OFF   = HB_OFF + HB_SZ
PQ_SZ    = 32 * 20 * 4096
W2F_OFF  = PQ_OFF + PQ_SZ
W2F_SZ   = 8 * 54 * 5120
WOF_OFF  = W2F_OFF + W2F_SZ
WOF_SZ   = 32 * 8 * 5120
MF_OFF   = WOF_OFF + WOF_SZ
MF_SZ    = 8 * 20 * 5120
KVP_OFF  = MF_OFF + MF_SZ
KVP_SZ   = 8 * 32 * 1920
ZF_OFF   = KVP_OFF + KVP_SZ
ZF_SZ    = 8 * 1280
FL_OFF   = ZF_OFF + ZF_SZ
FL_SZ    = 8 * 128
ST_OFF   = FL_OFF + FL_SZ
ST_SZ    = 2 * 2048 * 4
WS_USED  = ST_OFF + ST_SZ
OOB      = 0x40000000

LOG2E = 0x3fb8aa3b
EPS6  = 0x358637bd
EPS5  = 0x3727c5ac
INV640 = 0x3acccccd
ONES_BF = 0x3f803f80

OPT = dict(k1map="4x8", k2map="8x4", stamp=0, prefetch_code=0, no_fill=0, no_x=0, no_dma=0, no_rd=0, no_mfma=0,
           flag_st=6, k2_twice=0, rot=0, k2_ring=3, k2_init=2, k2_sleep=4, k2_nos=0, pro=0, k2_hold=1, k2_sprio=1, k2_pqthr=1, k2_early=1, k2_noprod=0, k2_msc1=1, dbgout=0)
for _a in sys.argv[2:]:
    _k, _v = _a.split("=")
    assert _k in OPT, _k
    OPT[_k] = int(_v) if _v.lstrip("-").isdigit() else _v

class Asm:
    def __init__(self):
        self.L = []
    def __call__(self, s):
        for line in s.strip("\n").split("\n"):
            self.L.append("    " + line.strip())
    def label(self, l):
        self.L.append(l + ":")
    def raw(self, s):
        self.L.append(s)
    def text(self):
        return "\n".join(self.L) + "\n"

class VQ:
    def __init__(self, a):
        self.a, self.q, self.done = a, [], 0
    def issue(self, tag, text):
        self.q.append(tag)
        self.a(text)
    def need(self, *tags):
        idxs = [i for i, t in enumerate(self.q) if t in tags]
        if not idxs:
            return None
        idx = max(idxs)
        if idx < self.done:
            return None
        n = min(63, len(self.q) - 1 - idx)
        self.done = len(self.q) - n
        return n
    def wait(self, *tags, lgkm=None):
        n = self.need(*tags) if tags else None
        parts = []
        if n is not None: parts.append(f"vmcnt({n})")
        if lgkm is not None: parts.append(f"lgkmcnt({lgkm})")
        if parts: self.a("s_waitcnt " + " ".join(parts))

class LQ:
    def __init__(self, a):
        self.a, self.q, self.done = a, [], 0
    def issue(self, tag, text):
        if len(self.q) - self.done >= 15:
            self.a("s_waitcnt lgkmcnt(14)")
            self.done = len(self.q) - 14
        self.q.append(tag)
        self.a(text)
    def need(self, *tags):
        idxs = [i for i, t in enumerate(self.q) if t in tags]
        if not idxs or max(idxs) < self.done:
            return None
        n = len(self.q) - 1 - max(idxs)
        self.done = len(self.q) - n
        return n
    def wait(self, *tags):
        n = self.need(*tags)
        if n is not None: self.a(f"s_waitcnt lgkmcnt({n})")
    def drained(self):
        self.done = len(self.q)

def vr(b, n):
    return f"v[{b}:{b+n-1}]" if n > 1 else f"v{b}"
def ar(b, n):
    return f"a[{b}:{b+n-1}]" if n > 1 else f"a{b}"

def srd(a, d, lo, hi, size):
    a(f"s_mov_b32 s{d}, s{lo}")
    a(f"s_and_b32 s{d+1}, s{hi}, 0xffff")
    a(f"s_mov_b32 s{d+2}, {size}")
    a(f"s_mov_b32 s{d+3}, 0x20000")

def stamp(a, slot, va, vb):
    if not OPT["stamp"]:
        return
    a("s_memrealtime s[96:97]")
    a("s_waitcnt lgkmcnt(0)")
    a(f"v_mov_b32 v{va}, s96")
    a("s_lshl_b32 s98, s2, 5")
    a("s_lshl_b32 s99, s20, 2")
    a("s_add_u32 s98, s98, s99")
    a(f"s_add_u32 s98, s98, {WS_USED + slot * 8192}")
    a(f"v_mov_b32 v{vb}, s98")
    a(f"buffer_store_dword v{va}, v{vb}, s[92:95], 0 offen")
    a("s_memtime s[96:97]")
    a("s_waitcnt lgkmcnt(0)")
    a(f"v_mov_b32 v{va}, s96")
    a("s_mov_b32 s99, 65536")
    a(f"buffer_store_dword v{va}, v{vb}, s[92:95], s99 offen")

def tick(a, i):
    if OPT["stamp"]:
        a("s_memtime s[60:61]")
        a("s_waitcnt lgkmcnt(0)")
        a(f"s_mov_b32 s{70 + i}, s60")

def tick_dump(a, slot, wave, va, vb, tag):
    if not OPT["stamp"]:
        return
    a(f"s_cmp_lg_u32 s20, {wave}")
    a(f"s_cbranch_scc1 L_nost_{tag}")
    for i in range(8):
        a(f"v_mov_b32 v{va}, s{70+i}")
        a("s_lshl_b32 s98, s2, 5")
        a(f"s_add_u32 s98, s98, {WS_USED + slot * 8192 + 4 * i}")
        a(f"v_mov_b32 v{vb}, s98")
        a(f"buffer_store_dword v{va}, v{vb}, s[92:95], 0 offen")
    a.label(f"L_nost_{tag}")

def pk(op, d, x, y, z=None, bc=()):
    def o(v):
        return v if isinstance(v, str) else f"v[{v}:{v+1}]"
    n = 3 if z is not None else 2
    hi = [0 if i in bc else 1 for i in range(n)]
    ops = [o(x), o(y)] + ([o(z)] if z is not None else [])
    t = f"v_pk_{op}_f32 v[{d}:{d+1}], " + ", ".join(ops)
    if bc:
        t += " op_sel_hi:[" + ",".join(map(str, hi)) + "]"
    return t

K1_LDS = 163840
SLOT = 24576
XL_LDS = 98304
V_LANE, V_XD, V_D0, V_R0, V_RC, V_FL, V_XR = 1, 2, 6, 9, 12, 13, 14
V_CS = 18
V_NM, V_RS = 22, 24
V_U = 26
V_T = 30
V_KNM, V_KRS = 30, 46
V_PRE = 63
V_X = 64
V_F = [96, 124]
V_ST, V_CA = 152, 153
V_ACC = 160
V_E0 = 64

def k1_mainloop(a, kind, tag, late_setup):
    nu = 5 if kind == "q" else 6
    pitch = 192 if kind == "ffn" else 320
    wpitch = 3456 if kind == "ffn" else 3840
    NST = 10
    vq, lq = VQ(a), LQ(a)
    def rd_addr(u):
        if kind == "ffn":
            return V_R0, (u & 1) * 12288 + 64 * (u >> 1)
        if kind == "q":
            return V_R0, 16 * u
        return V_R0 + (u % 3), 160 * (u // 3)
    naddr = [V_R0, V_RC] if kind != "kv" else [V_R0, V_R0 + 1, V_R0 + 2, V_RC]
    def reads(u, n):
        if OPT["no_rd"] and n > 0: return
        fb = V_F[n & 1]
        s_, j = divmod(n, 4)
        stoff = (s_ & 1) * SLOT
        if u < nu:
            av, off = rd_addr(u)
            dst = fb + 4 * u
        else:
            av, off = V_RC, 0
            dst = fb + 24
        for sec in range(2):
            o = stoff + off + (16 * j + 4 * sec) * pitch
            assert o < 65536
            lq.issue(f"f{n}_{u}", f"ds_read_b64_tr_b16 {vr(dst + 2 * sec, 2)}, v{av} offset:{o}")
    def xreg(stage, j):
        return V_X + 16 * (stage & 1) + 4 * j
    def xread(stage, j):
        lq.issue(f"xf{stage}_{j}", f"ds_read_b128 {vr(xreg(stage, j), 4)}, v{V_XR + j} offset:{(stage & 1) * 4096}")
    def dma(stage, i):
        if OPT["no_dma"] and stage > 2: return
        a(f"s_add_u32 m0, s{28+i}, {(stage % 4) * SLOT}")
        a("s_nop 0")
        vq.issue(f"D{stage}", f"buffer_load_dwordx4 v{V_D0+i}, s[12:15], s24 offen lds")
        if i == 2:
            a(f"s_add_u32 s24, s24, {64 * wpitch}")
            a(f"s_cmp_eq_u32 s24, {640 * wpitch}")
            a(f"s_cselect_b32 s24, 0, s24")
    def xl(stage, i):
        if OPT["no_x"] and stage >= 2: return
        a(f"s_add_u32 m0, s26, {(stage & 1) * 4096 + i * 1024}")
        a("s_nop 0")
        vq.issue(f"x{stage}", f"buffer_load_dwordx4 v{V_XD + i}, s[8:11], s23 offen lds")
        if i == 3:
            a("s_add_u32 s23, s23, 128")
            a("s_cmp_eq_u32 s23, 1280")
            a("s_cselect_b32 s23, 0, s23")

    a(f"s_mul_i32 s24, s25, {64 * wpitch}")
    for i in range(3): dma(0, i)
    for i in range(4): xl(0, i)
    late_setup()
    for r in range(4):
        a(f"v_mov_b32 v{V_CS + r}, 0")
    def rest(lvl):
        if lvl == 0:
            for i in range(3): dma(1, i)
            for i in range(4): xl(1, i)
        else:
            for i in range(3): dma(2, i)
    if OPT["pro"] < 2: rest(0)
    if OPT["pro"] < 1: rest(1)
    vq.wait("D0", "x0")
    a("s_barrier")
    xread(0, 0)
    for u in [6] + list(range(nu)): reads(u, 0)
    for j in range(1, 4): xread(0, j)
    if OPT["pro"] >= 2: rest(0)
    if OPT["pro"] >= 1: rest(1)
    for n in range(4 * NST):
        s_, j = divmod(n, 4)
        cur = V_F[n & 1]
        xf = xreg(s_, j)
        last = n == 4 * NST - 1
        if j == 0 and s_ % 2 == 0 and OPT["stamp"]:
            tick(a, s_ // 2); lq.drained()
        extra = []
        if j == 3 and not last:
            vq.wait(f"D{s_ + 1}", f"x{s_ + 1}")
            a("s_barrier")
            if s_ + 3 < NST:
                extra = [lambda i=i: dma(s_ + 3, i) for i in range(3)]
            if s_ & 1:
                for av in naddr:
                    if (s_ & 2) == 0: a(f"v_add_u32 v{av}, {2 * SLOT}, v{av}")
                    else: a(f"v_subrev_u32 v{av}, {2 * SLOT}, v{av}")
        if j == 1 and s_ + 2 < NST:
            def xl_first():
                lq.wait(*[f"xf{s_}_{q}" for q in range(4)])
                xl(s_ + 2, 0)
            extra += [xl_first] + [lambda i=i: xl(s_ + 2, i) for i in range(1, 4)]
        if j == 0 and s_ == OPT["flag_st"]:
            extra.append(lambda: vq.issue("flag", f"buffer_load_dword v{V_FL}, off, s[44:47], s48 sc1"))
        if j == 0 and s_ == OPT["flag_st"] + 2:
            vq.wait("flag")
            a(f"v_cmp_ne_u32 vcc, 1, v{V_FL}")
            a(f"s_cbranch_vccnz L_k1_{tag}_spin")
            a.label(f"L_k1_{tag}_go")
            if kind == "kv":
                for g in range(4):
                    extra.append(lambda g=g: vq.issue("stat", f"buffer_load_dwordx4 {vr(V_KNM + 4 * g, 4)}, v{V_NM}, s[16:19], s49 offen offset:{32 * g} sc1"))
                    extra.append(lambda g=g: vq.issue("stat", f"buffer_load_dwordx4 {vr(V_KRS + 4 * g, 4)}, v{V_NM}, s[16:19], s50 offen offset:{32 * g} sc1"))
            else:
                extra.append(lambda: vq.issue("stat", f"buffer_load_dword v{V_RS}, v{V_NM}, s[16:19], s50 offen sc1"))
                extra.append(lambda: vq.issue("stat", f"buffer_load_dword v{V_NM}, v{V_NM}, s[16:19], s49 offen sc1"))
        fill = []
        for r in range(4):
            t = V_U + 2 * (r & 1)
            c = V_CS + 2 * (r & 1)
            fill.append(f"v_lshlrev_b32 v{t}, 16, v{cur + 24 + r}")
            fill.append(f"v_and_b32 v{t + 1}, 0xffff0000, v{cur + 24 + r}")
            fill.append(f"v_add_f32 v{c}, v{c}, v{t}")
            fill.append(f"v_add_f32 v{c + 1}, v{c + 1}, v{t + 1}")
        if OPT["no_fill"]: fill = []
        per = -(-len(fill) // nu)
        for u in range(nu):
            acc = vr(V_ACC + 16 * u, 16)
            w, x = vr(cur + 4 * u, 4), vr(xf, 4)
            c = "0" if n == 0 else acc
            lq.wait(f"f{n}_{u}", f"f{n}_6", f"xf{s_}_{j}")
            if not OPT["no_mfma"]:
                if kind == "kv":
                    a(f"v_mfma_f32_32x32x16_bf16 {acc}, {x}, {w}, {c}")
                else:
                    a(f"v_mfma_f32_32x32x16_bf16 {acc}, {w}, {x}, {c}")
            if not last:
                if u == 0:
                    if j == 3: xread(s_ + 1, 0)
                    reads(6, n + 1)
                reads(u, n + 1)
                if j == 3 and 1 <= u <= 3: pass
                if j == 0 and s_ > 0 and u < 3: xread(s_, u + 1)
            for l in fill[:per]: a(l)
            fill = fill[per:]
            for _ in range(2 if len(extra) > nu - u else 1):
                if extra: extra.pop(0)()
        while extra: extra.pop(0)()
    tick(a, 5)
    a(f"v_add_f32 v{V_CS}, v{V_CS}, v{V_CS+1}")
    a(f"v_add_f32 v{V_CS+2}, v{V_CS+2}, v{V_CS+3}")
    a(f"v_add_f32 v{V_CS}, v{V_CS}, v{V_CS+2}")
    a(f"v_and_b32 v{V_U}, 31, v{V_LANE}")
    a(f"v_mov_b32 v{V_CS+1}, v{V_CS}")
    a(f"v_lshl_add_u32 v{V_U+1}, v{V_U}, 2, s26")
    a("s_nop 0")
    a(f"v_permlane32_swap_b32 v{V_CS}, v{V_CS+1}")
    a("s_nop 1")
    a(f"v_add_f32 v{V_CS}, v{V_CS}, v{V_CS+1}")
    a(f"ds_write_b32 v{V_U+1}, v{V_CS}")
    return vq

def k1_spin(a, tag):
    a.label(f"L_k1_{tag}_spin")
    a("s_mov_b32 s51, 0")
    a.label(f"L_k1_{tag}_spin2")
    a("s_sleep 4")
    a(f"buffer_load_dword v{V_FL}, off, s[44:47], s48 sc1")
    a("s_add_u32 s51, s51, 1")
    a("s_cmp_ge_u32 s51, 200000")
    a("s_waitcnt vmcnt(0)")
    a(f"s_cbranch_scc1 L_k1_{tag}_go")
    a(f"v_cmp_ne_u32 vcc, 1, v{V_FL}")
    a(f"s_cbranch_vccnz L_k1_{tag}_spin2")
    a(f"s_branch L_k1_{tag}_go")

def k1_store_base(a, vdst, region, nt, tbase_mul, T):
    a(f"s_lshl_b32 s32, s21, 2")
    a(f"s_lshr_b32 s35, s20, 1")
    a(f"s_add_u32 s32, s32, s35")
    a(f"s_mul_i32 s32, s32, {nt}")
    a(f"s_mul_i32 s35, s22, {tbase_mul}")
    a(f"s_add_u32 s32, s32, s35")
    a(f"s_lshl_b32 s32, s32, 2")
    a(f"s_and_b32 s35, s20, 1")
    a(f"s_lshl_b32 s35, s35, 1")
    a(f"s_add_u32 s32, s32, s35")
    a(f"s_lshl_b32 s32, s32, 10")
    a(f"s_add_u32 s32, s32, {region}")
    a(f"v_bfe_u32 v{T}, v{V_LANE}, 4, 1")
    a(f"v_lshlrev_b32 v{T}, 10, v{T}")
    a(f"v_lshrrev_b32 v{T+1}, 5, v{V_LANE}")
    a(f"v_lshl_add_u32 v{T}, v{T+1}, 8, v{T}")
    a(f"v_and_b32 v{T+1}, 15, v{V_LANE}")
    a(f"v_lshl_add_u32 v{T}, v{T+1}, 4, v{T}")
    a(f"v_add_u32 v{vdst}, s32, v{T}")

def k1_pre_fq(a, region, nt, mul):
    k1_store_base(a, V_ST, region, nt, mul, V_T)
    a(f"v_lshrrev_b32 v{V_CA}, 5, v{V_LANE}")
    a(f"v_lshlrev_b32 v{V_CA}, 4, v{V_CA}")
    a(f"v_add_u32 v{V_CA}, {XL_LDS}, v{V_CA}")
    a(f"v_and_b32 v{V_NM}, 31, v{V_LANE}")
    a(f"v_lshlrev_b32 v{V_NM}, 2, v{V_NM}")

def k1_epi_ffn(a, vq):
    T = V_T
    C1, V2 = T, T + 2
    vq.wait("stat", lgkm=0)
    a("s_barrier")
    CB = V_E0
    def rd(p):
        for h in range(2):
            for g in range(4):
                a(f"ds_read_b128 {vr(CB + 32 * (p & 1) + 16 * h + 4 * g, 4)}, v{V_CA} offset:{(2 * p + h) * 8192 + g * 32}")
    rd(0)
    a(f"v_mul_f32 v{V2}, v{V_RS}, v{V_RS}")
    a(f"v_mul_f32 v{C1}, {hex(LOG2E | 0x80000000)}, v{V_RS}")
    a(f"v_rcp_f32 v{V2}, v{V2}")
    rd(1)
    E = T + 4
    for p in range(3):
        a(f"s_waitcnt lgkmcnt({[8, 8, 0][p]})")
        G, U = V_ACC + 32 * p, V_ACC + 32 * p + 16
        CG, CU = CB + 32 * (p & 1), CB + 32 * (p & 1) + 16
        for r in range(0, 16, 2):
            a(pk("fma", G + r, V_NM, CG + r, G + r, bc=(0,)))
        for r in range(0, 16, 2):
            a(pk("mul", E + r, G + r, C1, bc=(1,)))
            a(pk("fma", U + r, V_NM, CU + r, U + r, bc=(0,)))
        if p == 0: rd(2)
        for r in range(16):
            a(f"v_exp_f32 v{E+r}, v{E+r}")
        for r in range(0, 16, 2):
            a(pk("mul", G + r, G + r, U + r))
            a(pk("fma", E + r, E + r, V2, V2, bc=(1, 2)))
        for r in range(16):
            a(f"v_rcp_f32 v{E+r}, v{E+r}")
        a("s_nop 0")
        for r in range(0, 16, 2):
            a(pk("mul", G + r, G + r, E + r))
        for r in range(8):
            a(f"v_cvt_pk_bf16_f32 v{U+r}, v{G+2*r}, v{G+2*r+1}")
        a(f"s_mov_b32 s32, {p * 4096}")
        a(f"buffer_store_dwordx4 {vr(U, 4)}, v{V_ST}, s[16:19], s32 offen")
        a(f"buffer_store_dwordx4 {vr(U + 4, 4)}, v{V_ST}, s[16:19], s32 offen offset:512")

def phi16(a, G, E, rl, rs, bc):
    b1 = (1,) if bc else ()
    for r in range(0, 16, 2):
        a(pk("mul", E + r, G + r, rl(r), bc=b1))
    for r in range(16):
        a(f"v_max_f32 v{G+r}, 0, v{G+r}")
    for r in range(16):
        a(f"v_exp_f32_e64 v{E+r}, v{E+r} clamp")
    a("s_nop 0")
    for r in range(0, 16, 2):
        a(pk("add", E + r, E + r, V_EPS, bc=(1,)))
    for r in range(0, 16, 2):
        a(pk("fma", G + r, G + r, rs(r), E + r, bc=b1))

V_EPS = 18

def k1_epi_q(a, vq):
    T = V_T
    RL = T
    vq.wait("stat", lgkm=0)
    a("s_barrier")
    CB = V_E0
    for u in range(5):
        for g in range(4):
            a(f"ds_read_b128 {vr(CB + 16 * u + 4 * g, 4)}, v{V_CA} offset:{u * 8192 + g * 32}")
    a(f"v_mul_f32 v{RL}, {hex(LOG2E)}, v{V_RS}")
    a(f"v_mov_b32 v{V_EPS}, {hex(EPS6)}")
    E = T + 4
    for u in range(5):
        a(f"s_waitcnt lgkmcnt({min(15, 16 - 4 * u)})")
        G, C = V_ACC + 16 * u, CB + 16 * u
        for r in range(0, 16, 2):
            a(pk("fma", G + r, V_NM, C + r, G + r, bc=(0,)))
        phi16(a, G, E, lambda r: RL, lambda r: V_RS, True)
        for r in range(8):
            a(f"v_cvt_pk_bf16_f32 v{C+r}, v{G+2*r}, v{G+2*r+1}")
        a(f"s_mov_b32 s32, {u * 4096}")
        a(f"buffer_store_dwordx4 {vr(C, 4)}, v{V_ST}, s[16:19], s32 offen")
        a(f"buffer_store_dwordx4 {vr(C + 4, 4)}, v{V_ST}, s[16:19], s32 offen offset:512")

def k1_epi_kv(a, vq):
    T = 64
    a(f"v_lshlrev_b32 v{T+3}, 2, v{V_U}")
    a(f"v_add_u32 v{T+3}, {XL_LDS}, v{T+3}")
    vq.wait("stat", lgkm=0)
    a("s_barrier")
    RL, CSV, E, P = 72, 88, 104, 120
    for u in range(6):
        a(f"ds_read_b32 v{CSV + 2 * u}, v{T+3} offset:{u * 8192}")
    a(f"s_lshl_b32 s32, s20, 11")
    a(f"v_lshl_add_u32 v{T+4}, v{V_LANE}, 4, s32")
    a(f"v_add_u32 v{T+6}, 65536, v{T+4}")
    a(f"v_mov_b32 v{T+5}, {hex(ONES_BF)}")
    a(f"v_mov_b32 v{V_EPS}, {hex(EPS6)}")
    for r in range(16):
        a(f"v_mul_f32 v{RL+r}, {hex(LOG2E)}, v{V_KRS+r}")
    a("s_waitcnt lgkmcnt(0)")
    padmask = {0: 0x00f00000, 1: 0x0000f000, 2: 0xf00000f0}
    for u in range(6):
        G = V_ACC + 16 * u
        PK = P + 8 * (u & 1)
        for r in range(0, 16, 2):
            a(pk("fma", G + r, V_KNM + r, CSV + 2 * u, G + r, bc=(1,)))
        if u < 3:
            phi16(a, G, E, lambda r: RL + r, lambda r: V_KRS + r, False)
        else:
            for r in range(0, 16, 2):
                a(pk("mul", G + r, G + r, V_KRS + r))
        for r in range(8):
            a(f"v_cvt_pk_bf16_f32 v{PK+r}, v{G+2*r}, v{G+2*r+1}")
        if u >= 3:
            m = padmask[u - 3]
            a(f"s_mov_b32 s36, {hex(m)}")
            a(f"s_mov_b32 s37, {hex(m)}")
            for r in range(8):
                a(f"v_cndmask_b32 v{PK+r}, v{PK+r}, v{T+5}, s[36:37]")
        off = u * 16384
        av = T + 4 if off < 65536 else T + 6
        off &= 65535
        a(f"ds_write_b128 v{av}, {vr(PK, 4)} offset:{off}")
        a(f"ds_write_b128 v{av}, {vr(PK + 4, 4)} offset:{off + 1024}")
    T = V_T
    a("s_lshl_b32 s32, s20, 2")
    a("s_lshr_b32 s36, 0x2211100, s32")
    a("s_and_b32 s36, s36, 3")
    a("s_lshr_b32 s37, 0x2121010, s32")
    a("s_and_b32 s37, s37, 3")
    a("s_lshl_b32 s38, s36, 14")
    a("s_add_u32 s39, s37, 3")
    a("s_lshl_b32 s39, s39, 14")
    a(f"v_lshl_add_u32 v{T+16}, v{V_LANE}, 4, s38")
    a(f"v_lshl_add_u32 v{T+17}, v{V_LANE}, 4, s39")
    a("s_lshl_b32 s38, s36, 5")
    a(f"v_add_u32 v{T}, s38, v{V_U}")
    a(f"v_mul_u32_u24 v{T+1}, 2731, v{T}")
    a(f"v_lshrrev_b32 v{T+1}, 16, v{T+1}")
    a(f"v_mul_u32_u24 v{T+2}, 24, v{T+1}")
    a(f"v_sub_u32 v{T+2}, v{T}, v{T+2}")
    a("s_lshl_b32 s38, s21, 5")
    a("s_lshl_b32 s39, s22, 2")
    a("s_add_u32 s38, s38, s39")
    a("s_mul_i32 s38, s38, 1920")
    a(f"s_add_u32 s38, s38, {KVP_OFF}")
    a(f"v_mul_u32_u24 v{T+3}, 1920, v{T+1}")
    a(f"v_lshlrev_b32 v{T+4}, 4, v{T+2}")
    a(f"v_add3_u32 v{T+3}, v{T+3}, v{T+4}, s38")
    a(f"v_mov_b32 v{T+4}, {hex(OOB)}")
    a(f"v_cmp_gt_u32 vcc, 20, v{T+2}")
    a(f"v_lshrrev_b32 v{T+5}, 5, v{V_LANE}")
    a(f"v_lshlrev_b32 v{T+5}, 2, v{T+5}")
    a(f"v_cndmask_b32 v{T+3}, v{T+4}, v{T+3}, vcc")
    a("s_lshl_b32 s39, s37, 5")
    a(f"v_add_u32 v{T+5}, s39, v{T+5}")
    for rq in range(4):
        a(f"v_add_u32 v{T+6}, {8 * rq}, v{T+5}")
        a(f"v_mul_u32_u24 v{T+7}, 2731, v{T+6}")
        a(f"v_lshrrev_b32 v{T+7}, 16, v{T+7}")
        a(f"v_cmp_eq_u32 vcc, v{T+7}, v{T+1}")
        a(f"v_mul_u32_u24 v{T+8}, 24, v{T+7}")
        a(f"v_sub_u32 v{T+8}, v{T+6}, v{T+8}")
        a(f"v_mul_u32_u24 v{T+8}, 80, v{T+8}")
        a(f"v_add_u32 v{T+8}, v{T+8}, v{T+3}")
        a(f"v_cndmask_b32 v{T+10+rq}, v{T+4}, v{T+8}, vcc")
    a("s_waitcnt lgkmcnt(0)")
    a("s_barrier")
    a("s_cmp_ge_u32 s20, 7")
    a("s_cbranch_scc1 L_k1_end")
    KB, VB, AC = 64, 128, 192
    def rd(i):
        a(f"ds_read_b128 {vr(KB + 4 * i, 4)}, v{T+16} offset:{i * 1024}")
        a(f"ds_read_b128 {vr(VB + 4 * i, 4)}, v{T+17} offset:{i * 1024}")
    for i in range(7): rd(i)
    for k in range(16):
        if k + 7 < 16:
            a("s_waitcnt lgkmcnt(12)")
        else:
            a(f"s_waitcnt lgkmcnt({2 * (15 - k)})")
        src = "0" if k == 0 else vr(AC, 16)
        a(f"v_mfma_f32_32x32x16_bf16 {vr(AC, 16)}, {vr(VB + 4 * k, 4)}, {vr(KB + 4 * k, 4)}, {src}")
        if k + 7 < 16: rd(k + 7)
    a("s_nop 7")
    a("s_nop 3")
    for rq in range(4):
        a(f"buffer_store_dwordx4 {vr(AC + 4 * rq, 4)}, v{T+10+rq}, s[16:19], 0 offen")

def quad_sum(a, v, t):
    a("s_nop 1")
    a(f"v_add_f32_dpp v{t}, v{v}, v{v} quad_perm:[1,0,3,2] row_mask:0xf bank_mask:0xf")
    a("s_nop 1")
    a(f"v_add_f32_dpp v{v}, v{t}, v{t} quad_perm:[2,3,0,1] row_mask:0xf bank_mask:0xf")

def rbf(a, v):
    a(f"v_cvt_pk_bf16_f32 v{v}, v{v}, v{v}")
    a(f"v_and_b32 v{v}, 0xffff0000, v{v}")

def k1_spare(a):
    T = V_T
    a("s_lshl_b32 s32, s21, 1")
    a("s_add_u32 s32, s32, s22")
    a("s_lshl_b32 s52, s32, 3")
    a("s_add_u32 s52, s52, s20")
    a("s_mul_i32 s33, s52, 20480")
    a(f"v_lshrrev_b32 v{T}, 2, v{V_LANE}")
    a(f"v_mul_u32_u24 v{T+1}, 1280, v{T}")
    a(f"v_and_b32 v{T+3}, 3, v{V_LANE}")
    a(f"v_lshl_add_u32 v{T+1}, v{T+3}, 4, v{T+1}")
    a(f"v_lshrrev_b32 v{T+2}, 4, v{V_LANE}")
    XR = 160
    for i in range(20):
        a(f"buffer_load_dwordx4 {vr(XR + 4 * i, 4)}, v{T+1}, s[8:11], s33 offen offset:{64 * i}")
    a("s_load_dwordx2 s[40:41], s[0:1], 48")
    a("s_load_dwordx2 s[42:43], s[0:1], 16")
    for i in range(5):
        a(f"v_add_u32 v{T+4}, {64 * i}, v{V_LANE}")
        a(f"v_mul_u32_u24 v{T+5}, 52429, v{T+4}")
        a(f"v_lshrrev_b32 v{T+5}, 19, v{T+5}")
        a(f"v_mul_u32_u24 v{T+6}, 10, v{T+5}")
        a(f"v_sub_u32 v{T+6}, v{T+4}, v{T+6}")
        a(f"v_mul_u32_u24 v{T+7}, 1280, v{T+5}")
        a(f"v_cmp_gt_u32 vcc, 20, v{T+5}")
        a(f"v_lshl_add_u32 v{64+i}, v{T+6}, 4, v{T+7}")
        a(f"v_mov_b32 v{T+7}, {hex(OOB)}")
        a(f"v_cndmask_b32 v{72+i}, v{T+7}, v{64+i}, vcc")
    a("s_mul_i32 s53, s20, 15360")
    a(f"v_bfe_u32 v{T+5}, v{V_LANE}, 2, 2")
    a(f"v_and_b32 v{T+6}, 3, v{V_LANE}")
    a(f"v_lshlrev_b32 v{T+6}, 3, v{T+6}")
    a(f"v_add_u32 v{T+6}, s53, v{T+6}")
    a(f"v_lshrrev_b32 v{T+7}, 1, v{T+2}")
    a(f"v_lshlrev_b32 v{T+7}, 4, v{T+7}")
    a(f"v_and_b32 v{T+8}, 1, v{T+2}")
    a(f"v_lshl_add_u32 v{T+7}, v{T+8}, 2, v{T+7}")
    a(f"v_add_u32 v{T+7}, v{T+7}, v{T+5}")
    a(f"v_mul_u32_u24 v{T+7}, 160, v{T+7}")
    a(f"v_add_u32 v80, v{T+7}, v{T+6}")
    a(f"v_lshl_add_u32 v{T+7}, v{T+2}, 3, v{T+5}")
    a(f"v_mul_u32_u24 v{T+7}, 160, v{T+7}")
    a(f"v_add_u32 v81, v{T+7}, v{T+6}")
    a(f"v_lshlrev_b32 v82, 4, v{V_LANE}")
    a(f"v_add_u32 v83, 4096, v82")
    a("s_waitcnt lgkmcnt(0)")
    srd(a, 84, 40, 41, F * D * 2)
    srd(a, 88, 42, 43, D * D * 2)
    def item_setup(kind, add, slot):
        a(f"s_add_u32 s34, s52, {add}")
        a("s_lshr_b32 s35, s34, 3")
        a("s_and_b32 s36, s34, 7")
        a(f"s_mul_i32 s37, s35, {32 * 1280 if kind == 'w2' else 20 * 1280}")
        a("s_mul_i32 s38, s36, 160")
        a(f"s_add_u32 s{54 + 2 * slot}, s37, s38")
        if kind == "w2":
            a("s_mul_i32 s37, s36, 54")
            a("s_add_u32 s37, s37, s35")
            a("s_mul_i32 s37, s37, 5120")
            a(f"s_add_u32 s{55 + 2 * slot}, s37, {W2F_OFF}")
            if add == 384:
                a("s_cmp_lt_u32 s34, 432")
                a(f"s_cselect_b32 s{54 + 2 * slot}, s{54 + 2 * slot}, {OOB}")
                a(f"s_cselect_b32 s{55 + 2 * slot}, s{55 + 2 * slot}, {OOB}")
        else:
            a("s_mul_i32 s37, s34, 5120")
            a(f"s_add_u32 s{55 + 2 * slot}, s37, {WOF_OFF}")
    rounds = ([("w2", 0), ("w2", 128), ("w2", 256)], [("wo", 0), ("wo", 128), ("w2", 384)])
    def round_loads(rnd):
        for slot, (kind, add) in enumerate(rnd):
            item_setup(kind, add, slot)
            for i in range(5):
                a(f"s_add_u32 m0, s53, {slot * 5120 + i * 1024}")
                a("s_nop 0")
                if kind == "w2":
                    a(f"buffer_load_dwordx4 v{64+i}, s[84:87], s{54 + 2 * slot} offen lds")
                else:
                    a(f"buffer_load_dwordx4 v{72+i}, s[88:91], s{54 + 2 * slot} offen lds")
    def round_out(rnd):
        for slot, (kind, add) in enumerate(rnd):
            R = 96 + 20 * slot
            av = 80 if kind == "w2" else 81
            sec = 8 * 160 if kind == "w2" else 4 * 160
            for nb in range(5):
                a(f"ds_read_b64_tr_b16 {vr(R + 4 * nb, 2)}, v{av} offset:{slot * 5120 + 32 * nb}")
                a(f"ds_read_b64_tr_b16 {vr(R + 4 * nb + 2, 2)}, v{av} offset:{slot * 5120 + 32 * nb + sec}")
            a("s_waitcnt lgkmcnt(0)")
            for nb in range(5):
                if nb < 4:
                    a(f"buffer_store_dwordx4 {vr(R + 4 * nb, 4)}, v82, s[16:19], s{55 + 2 * slot} offen offset:{nb * 1024}")
                else:
                    a(f"buffer_store_dwordx4 {vr(R + 4 * nb, 4)}, v83, s[16:19], s{55 + 2 * slot} offen")
    SM, SQ, TT = T + 10, T + 12, T + 14
    a(f"s_mov_b32 s31, {hex(ONES_BF)}")
    for r in range(4):
        a(f"v_mov_b32 v{SM + r}, 0")
    for i in range(20):
        if i % 2 == 0:
            a(f"s_waitcnt vmcnt({18 - i})")
        for r in range(4):
            a(f"v_dot2_f32_bf16 v{SM + (r & 1)}, v{XR + 4 * i + r}, s31, v{SM + (r & 1)}")
            a(f"v_dot2_f32_bf16 v{SQ + (r & 1)}, v{XR + 4 * i + r}, v{XR + 4 * i + r}, v{SQ + (r & 1)}")
    a("s_nop 2")
    a(f"v_add_f32 v{SM}, v{SM}, v{SM+1}")
    a(f"v_add_f32 v{SQ}, v{SQ}, v{SQ+1}")
    quad_sum(a, SM, TT)
    quad_sum(a, SQ, TT)
    a(f"v_mul_f32 v{SM}, {hex(INV640 | 0x80000000)}, v{SM}")
    a(f"v_mul_f32 v{SQ}, {hex(INV640)}, v{SQ}")
    a(f"v_fma_f32 v{SQ}, -v{SM}, v{SM}, v{SQ}")
    a(f"v_max_f32 v{SQ}, 0, v{SQ}")
    rbf(a, SQ)
    a(f"v_add_f32 v{SQ}, {hex(EPS5)}, v{SQ}")
    rbf(a, SQ)
    a(f"v_sqrt_f32 v{SQ}, v{SQ}")
    rbf(a, SM)
    rbf(a, SQ)
    a(f"v_rcp_f32 v{SQ}, v{SQ}")
    a(f"v_lshlrev_b32 v{TT}, 2, v{T}")
    a(f"v_mov_b32 v{TT+1}, {hex(OOB)}")
    a(f"v_cmp_eq_u32 vcc, 0, v{T+3}")
    a("s_lshl_b32 s33, s52, 6")
    a(f"s_add_u32 s33, s33, {ST_OFF}")
    a(f"v_cndmask_b32 v{TT}, v{TT+1}, v{TT}, vcc")
    a("s_add_u32 s34, s33, 8192")
    a(f"buffer_store_dword v{SM}, v{TT}, s[16:19], s33 offen sc1")
    a(f"buffer_store_dword v{SQ}, v{TT}, s[16:19], s34 offen sc1")
    a("s_waitcnt vmcnt(0)")
    a("s_barrier")
    tick(a, 0)
    a("s_cmp_lg_u32 s20, 0")
    a("s_cbranch_scc1 L_k1_sp_nofl")
    a("s_lshl_b32 s33, s32, 2")
    a(f"v_mov_b32 v{TT}, 1")
    a(f"buffer_store_dword v{TT}, off, s[44:47], s33 sc1")
    a.label("L_k1_sp_nofl")
    a("s_cmp_lt_u32 s52, 8")
    a("s_cbranch_scc0 L_k1_sp_nozero")
    a("s_lshl_b32 s34, s52, 7")
    a(f"s_add_u32 s34, s34, {FL_OFF}")
    a(f"v_and_b32 v{TT}, 31, v{V_LANE}")
    a(f"v_lshlrev_b32 v{TT}, 2, v{TT}")
    a(f"v_mov_b32 v{TT+1}, 0")
    a(f"buffer_store_dword v{TT+1}, v{TT}, s[16:19], s34 offen")
    a.label("L_k1_sp_nozero")
    round_loads(rounds[0])
    a("s_waitcnt vmcnt(0)")
    round_out(rounds[0])
    round_loads(rounds[1])
    a("s_waitcnt vmcnt(0)")
    round_out(rounds[1])

def gen_k1(a):
    T = V_T
    a.raw(".globl k1_kernel\n.p2align 8\n.type k1_kernel,@function")
    a.label("k1_kernel")
    a("s_cmp_ge_u32 s2, 256")
    a("s_cbranch_scc1 L_k1_exit")
    a("s_load_dwordx2 s[4:5], s[0:1], 0")
    a("s_load_dwordx4 s[64:67], s[0:1], 64")
    a("s_load_dwordx2 s[36:37], s[0:1], 8")
    a("s_load_dwordx4 s[40:43], s[0:1], 32")
    a(f"v_and_b32 v{V_LANE}, 63, v0")
    a(f"v_lshrrev_b32 v{T}, 6, v0")
    a("s_and_b32 s32, s2, 7")
    a(f"v_readfirstlane_b32 s20, v{T}")
    if OPT["prefetch_code"]:
        a("s_getpc_b64 s[62:63]")
        a(f"v_lshlrev_b32 v{T+1}, 7, v0")
        a(f"v_min_u32 v{T+1}, L_code_end-k1_kernel-256, v{T+1}")
        a(f"global_load_dword v{V_PRE}, v{T+1}, s[62:63]")
    a("s_lshr_b32 s33, s2, 3")
    if OPT["k1map"] == "4x8":
        a("s_and_b32 s21, s32, 1")
        a("s_lshl_b32 s21, s21, 2")
        a("s_and_b32 s34, s33, 3")
        a("s_add_u32 s21, s21, s34")
        a("s_lshr_b32 s35, s32, 1")
        a("s_lshl_b32 s35, s35, 3")
        a("s_lshr_b32 s34, s33, 2")
        a("s_add_u32 s35, s35, s34")
    elif OPT["k1map"] == "2x16":
        a("s_lshr_b32 s21, s32, 1")
        a("s_lshl_b32 s21, s21, 1")
        a("s_and_b32 s34, s33, 1")
        a("s_add_u32 s21, s21, s34")
        a("s_and_b32 s35, s32, 1")
        a("s_lshl_b32 s35, s35, 4")
        a("s_lshr_b32 s34, s33, 1")
        a("s_add_u32 s35, s35, s34")
    elif OPT["k1map"] == "8x4":
        a("s_and_b32 s21, s33, 7")
        a("s_lshl_b32 s35, s32, 2")
        a("s_lshr_b32 s34, s33, 3")
        a("s_add_u32 s35, s35, s34")
    elif OPT["k1map"] == "1x32":
        a("s_mov_b32 s21, s32")
        a("s_mov_b32 s35, s33")
    if OPT["rot"]:
        a("s_mul_i32 s25, s21, 3")
        a("s_add_u32 s25, s25, s35")
        a("s_mul_i32 s23, s25, 6554")
        a("s_lshr_b32 s23, s23, 16")
        a("s_mul_i32 s23, s23, 10")
        a("s_sub_u32 s25, s25, s23")
    else:
        a("s_mov_b32 s25, 0")
    a("s_lshl_b32 s23, s25, 7")
    a("s_lshl_b32 s32, s21, 3")
    a("s_add_u32 s32, s32, s20")
    a("s_lshl_b32 s49, s32, 7")
    a(f"s_add_u32 s49, s49, {ST_OFF}")
    a("s_add_u32 s50, s49, 8192")
    a("s_lshr_b32 s48, s32, 2")
    a("s_lshl_b32 s48, s48, 2")
    a("s_mul_i32 s32, s32, 40960")
    a("s_lshl_b32 s26, s20, 13")
    a(f"s_add_u32 s26, s26, {XL_LDS}")
    a(f"v_lshrrev_b32 v{T}, 3, v{V_LANE}")
    a(f"v_mul_u32_u24 v{T}, 1280, v{T}")
    a(f"v_add_u32 v{T}, s32, v{T}")
    a(f"v_lshrrev_b32 v{T+1}, 4, v{V_LANE}")
    a(f"v_and_b32 v{T+2}, 7, v{V_LANE}")
    a(f"v_xor_b32 v{T+1}, v{T+1}, v{T+2}")
    a(f"v_lshl_add_u32 v{V_XD}, v{T+1}, 4, v{T}")
    a(f"v_xor_b32 v{T+1}, 4, v{T+1}")
    a(f"v_lshl_add_u32 v{V_XD+1}, v{T+1}, 4, v{T}")
    a(f"v_add_u32 v{V_XD+1}, 10240, v{V_XD+1}")
    a(f"v_add_u32 v{V_XD+2}, 20480, v{V_XD}")
    a(f"v_add_u32 v{V_XD+3}, 20480, v{V_XD+1}")
    a(f"v_lshrrev_b32 v{T+1}, 5, v{V_LANE}")
    a(f"v_bfe_u32 v{T+2}, v{V_LANE}, 1, 3")
    a(f"v_xor_b32 v{T+2}, v{T+2}, v{T+1}")
    a(f"v_and_b32 v{T+3}, 31, v{V_LANE}")
    a(f"v_lshlrev_b32 v{T+3}, 7, v{T+3}")
    a(f"v_lshl_add_u32 v{T+3}, v{T+2}, 4, v{T+3}")
    for j in range(4):
        if j: a(f"v_xor_b32 v{V_XR+j}, {32 * j}, v{T+3}")
    a(f"v_add_u32 v{V_XR}, s26, v{T+3}")
    for j in range(1, 4):
        a(f"v_add_u32 v{V_XR+j}, s26, v{V_XR+j}")
    a(f"v_lshlrev_b32 v{T+4}, 3, v{T+1}")
    a(f"v_bfe_u32 v{T+2}, v{V_LANE}, 2, 2")
    a(f"v_add_u32 v{T+4}, v{T+4}, v{T+2}")
    a(f"v_bfe_u32 v{T+5}, v{V_LANE}, 4, 1")
    a(f"v_lshlrev_b32 v{T+5}, 2, v{T+5}")
    a(f"v_and_b32 v{T+2}, 3, v{V_LANE}")
    a(f"v_add_u32 v{T+5}, v{T+5}, v{T+2}")
    a("s_waitcnt lgkmcnt(0)")
    srd(a, 8, 4, 5, S * D * 2)
    srd(a, 16, 66, 67, WS_USED)
    srd(a, 44, 64, 65, 256)
    if OPT["stamp"]:
        srd(a, 92, 66, 67, WS_USED + 16 * 8192)
        stamp(a, 0, T + 8, T + 9)
    a("s_cmp_lt_u32 s35, 18")
    a("s_cbranch_scc1 L_k1_ffn")
    a("s_cmp_lt_u32 s35, 26")
    a("s_cbranch_scc1 L_k1_kv")
    a("s_cmp_lt_u32 s35, 30")
    a("s_cbranch_scc1 L_k1_q")
    a("s_sub_u32 s22, s35, 30")
    k1_spare(a)
    stamp(a, 1, V_U, V_U + 1)
    a("s_branch L_k1_end")

    a.label("L_k1_ffn")
    a("s_mov_b32 s22, s35")
    a("s_cmp_lt_u32 s20, 4")
    a("s_cselect_b32 s12, s40, s42")
    a("s_cselect_b32 s13, s41, s43")
    a("s_cselect_b32 s28, 0, 12288")
    a("s_and_b32 s13, s13, 0xffff")
    a(f"s_mov_b32 s14, {D * F * 2}")
    a("s_mov_b32 s15, 0x20000")
    a("s_and_b32 s32, s20, 3")
    a("s_mul_i32 s33, s32, 3072")
    a("s_add_u32 s28, s28, s33")
    a("s_add_u32 s29, s28, 1024")
    a("s_add_u32 s30, s28, 2048")
    a("s_mul_i32 s33, s32, 192")
    a("s_mul_i32 s34, s22, 192")
    for i in range(3):
        a(f"s_add_u32 s38, s33, {64 * i}")
        a(f"v_add_u32 v{T}, s38, v{V_LANE}")
        a(f"v_mul_u32_u24 v{T+1}, 43691, v{T}")
        a(f"v_lshrrev_b32 v{T+1}, 19, v{T+1}")
        a(f"v_mul_u32_u24 v{T+2}, 12, v{T+1}")
        a(f"v_sub_u32 v{T+2}, v{T}, v{T+2}")
        a(f"v_mul_u32_u24 v{T+1}, 3456, v{T+1}")
        a(f"v_lshl_add_u32 v{T+1}, v{T+2}, 4, v{T+1}")
        a(f"v_add_u32 v{V_D0+i}, s34, v{T+1}")
    def late_ffn():
        a(f"v_mul_u32_u24 v{V_R0}, 192, v{T+4}")
        a(f"v_lshl_add_u32 v{V_R0}, v{T+5}, 3, v{V_R0}")
        a("s_min_u32 s32, s20, 5")
        a("s_and_b32 s33, s32, 1")
        a("s_mul_i32 s33, s33, 12288")
        a("s_lshr_b32 s32, s32, 1")
        a("s_lshl_b32 s32, s32, 6")
        a("s_add_u32 s32, s32, s33")
        a(f"v_add_u32 v{V_RC}, s32, v{V_R0}")
        k1_pre_fq(a, HB_OFF, 54, 3)
    vq = k1_mainloop(a, "ffn", "ffn", late_ffn)
    stamp(a, 1, V_U + 2, V_U + 3)
    k1_epi_ffn(a, vq)
    a("s_branch L_k1_end")
    k1_spin(a, "ffn")

    def qkv_common(kind):
        srd(a, 12, 36, 37, D * 1920 * 2)
        a("s_lshl_b32 s28, s20, 10")
        a("s_add_u32 s29, s28, 8192")
        a("s_add_u32 s30, s28, 16384")
        a("s_lshl_b32 s33, s20, 6")
        if kind == "q":
            a("s_mul_i32 s34, s22, 320")
        else:
            a("s_mul_i32 s34, s22, 160")
            a("s_add_u32 s34, s34, 1280")
        for i in range(3):
            a(f"s_add_u32 s38, s33, {512 * i}")
            a(f"v_add_u32 v{T}, s38, v{V_LANE}")
            a(f"v_mul_u32_u24 v{T+1}, 52429, v{T}")
            a(f"v_lshrrev_b32 v{T+1}, 20, v{T+1}")
            a(f"v_mul_u32_u24 v{T+2}, 20, v{T+1}")
            a(f"v_sub_u32 v{T+2}, v{T}, v{T+2}")
            a(f"v_mul_u32_u24 v{T+3}, 3840, v{T+1}")
            a(f"v_lshl_add_u32 v{T+3}, v{T+2}, 4, v{T+3}")
            if kind == "kv":
                a(f"v_cmp_lt_u32 vcc, 9, v{T+2}")
                a(f"v_add_u32 v{T+6}, {1280 - 160}, v{T+3}")
                a("s_nop 0")
                a(f"v_cndmask_b32 v{T+3}, v{T+3}, v{T+6}, vcc")
            a(f"v_add_u32 v{V_D0+i}, s34, v{T+3}")
            if i == 2:
                a(f"v_cmp_lt_u32 vcc, 63, v{T+1}")
                a(f"v_mov_b32 v{T+6}, {hex(OOB)}")
                a("s_nop 0")
                a(f"v_cndmask_b32 v{V_D0+i}, v{V_D0+i}, v{T+6}, vcc")

    a.label("L_k1_kv")
    a("s_sub_u32 s22, s35, 18")
    qkv_common("kv")
    def nib(l):
        v = 0
        for i, x in enumerate(l): v |= x << (4 * i)
        return v
    tabs = [(0, nib([0, 1, 2, 3, 4, 7, 5, 6])), (28, nib([0, 1, 2, 7, 3, 4, 5, 6])), (48, nib([2, 0, 3, 4, 5, 6, 7, 1]))]
    def late_kv():
        a(f"v_mul_u32_u24 v{T+6}, 320, v{T+4}")
        a(f"v_lshlrev_b32 v{T+7}, 2, v{T+5}")
        for u, (ws, tb) in enumerate(tabs):
            a(f"s_mov_b32 s32, {hex(tb)}")
            a(f"v_bfe_u32 v{T}, s32, v{T+7}, 4")
            a(f"v_lshl_add_u32 v{T}, v{T}, 3, v{T+6}")
            a(f"v_add_u32 v{V_R0+u}, {2 * ws}, v{T}")
        a(f"v_mov_b32 v{V_RC}, v{V_R0}")
        for w in (1, 2, 3, 4, 5):
            a(f"s_cmp_eq_u32 s20, {w}")
            a(f"s_cselect_b64 s[38:39], -1, 0")
            a(f"v_add_u32 v{T}, {160 * (w // 3)}, v{V_R0 + (w % 3)}")
            a(f"v_cndmask_b32 v{V_RC}, v{V_RC}, v{T}, s[38:39]")
        a(f"v_lshrrev_b32 v{V_NM}, 5, v{V_LANE}")
        a(f"v_lshlrev_b32 v{V_NM}, 4, v{V_NM}")
    vq = k1_mainloop(a, "kv", "kv", late_kv)
    stamp(a, 1, V_U + 2, V_U + 3)
    k1_epi_kv(a, vq)
    a("s_branch L_k1_end")
    k1_spin(a, "kv")

    a.label("L_k1_q")
    a("s_sub_u32 s22, s35, 26")
    qkv_common("q")
    def late_q():
        a(f"v_lshrrev_b32 v{T}, 2, v{T+5}")
        a(f"v_lshlrev_b32 v{T}, 1, v{T}")
        a(f"v_and_b32 v{T+1}, 1, v{T+5}")
        a(f"v_add_u32 v{T}, v{T}, v{T+1}")
        a(f"v_mul_u32_u24 v{T}, 80, v{T}")
        a(f"v_bfe_u32 v{T+1}, v{T+5}, 1, 1")
        a(f"v_lshl_add_u32 v{T}, v{T+1}, 3, v{T}")
        a(f"v_mul_u32_u24 v{T+6}, 320, v{T+4}")
        a(f"v_add_u32 v{V_R0}, v{T}, v{T+6}")
        a("s_min_u32 s32, s20, 4")
        a("s_lshl_b32 s32, s32, 4")
        a(f"v_add_u32 v{V_RC}, s32, v{V_R0}")
        k1_pre_fq(a, PQ_OFF, 20, 5)
    vq = k1_mainloop(a, "q", "q", late_q)
    stamp(a, 1, V_U + 2, V_U + 3)
    k1_epi_q(a, vq)
    a.label("L_k1_end")
    if OPT["stamp"]:
        tick(a, 6)
        a("s_waitcnt vmcnt(0)")
        stamp(a, 2, V_U + 2, V_U + 3)
        tick_dump(a, 3, 0, V_U + 2, V_U + 3, "k1")
    a.label("L_k1_exit")
    a("s_endpgm")
    k1_spin(a, "q")

K2_LDS = 163840
W_LANE, W_L16, W_L16B, W_T = 1, 2, 3, 4
W_PRE = 23
W_X = 24
H_ACC = 176
H_RING = 32
S_PQ, S_M, S_Z, S_ACC = 32, 112, 212, 232
FLAG_LDS = 163840 - 16

def k2_producer(a):
    T = W_T
    PB, PW = 112, 180
    SCR = 81920
    a(f"v_cmp_gt_u32 vcc, 56, v{W_LANE}")
    a(f"v_add_u32 v{T+3}, 1024, v{W_L16}")
    a(f"v_mov_b32 v{T+4}, {hex(OOB)}")
    a("s_mul_i32 s32, s21, 1920")
    a(f"s_add_u32 s32, s32, {KVP_OFF}")
    a(f"v_cndmask_b32 v{T+3}, v{T+4}, v{T+3}, vcc")
    for p in range(8):
        a(f"buffer_load_dwordx4 {vr(PB + 8 * p, 4)}, v{W_L16}, s[16:19], s32 offen")
        a(f"buffer_load_dwordx4 {vr(PB + 8 * p + 4, 4)}, v{T+3}, s[16:19], s32 offen")
        if p < 7:
            a(f"s_add_u32 s32, s32, {32 * 1920}")
    a("s_lshl_b32 s32, s21, 3")
    a("s_add_u32 s32, s32, s22")
    a("s_mul_i32 s32, s32, 5120")
    a(f"s_add_u32 s32, s32, {WOF_OFF}")
    for nb in range(5):
        if nb < 4:
            a(f"buffer_load_dwordx4 {vr(PW + 4 * nb, 4)}, v{W_L16}, s[16:19], s32 offen offset:{nb * 1024}")
        else:
            a(f"buffer_load_dwordx4 {vr(PW + 4 * nb, 4)}, v{W_L16B}, s[16:19], s32 offen")

def k2_producer2(a):
    T = W_T
    PB, PW = 112, 180
    SCR = 81920
    a(f"v_and_b32 v{T}, 15, v{W_LANE}")
    a(f"v_lshrrev_b32 v{T+1}, 4, v{W_LANE}")
    a(f"v_cmp_eq_u32 vcc, 2, v{T+1}")
    a(f"v_mov_b32 v{PW+20}, 0")
    a(f"v_mov_b32 v{PW+21}, 0")
    a(f"v_mov_b32 v{PW+23}, 0")
    a(f"v_mov_b32 v{T+5}, 0x3f80")
    a(f"v_cndmask_b32 v{PW+22}, 0, v{T+5}, vcc")
    a("s_lshr_b32 s33, s21, 3")
    a("s_bfe_u32 s34, s21, 0x20001")
    a("s_and_b32 s35, s21, 1")
    a("s_mul_i32 s35, s35, 20")
    a("s_mul_i32 s38, s22, 20")
    a("s_mul_i32 s39, s33, 5")
    a("s_add_u32 s38, s38, s39")
    a("s_mul_i32 s40, s38, 5120")
    a("s_lshl_b32 s41, s34, 8")
    a("s_add_u32 s40, s40, s41")
    a(f"s_add_u32 s40, s40, {MF_OFF}")
    a("s_lshl_b32 s42, s38, 6")
    a("s_lshl_b32 s41, s34, 4")
    a("s_add_u32 s42, s42, s41")
    a(f"s_add_u32 s42, s42, {ZF_OFF}")
    for tl in range(2):
        a(f"v_lshlrev_b32 v{T+6}, 2, v{T+1}")
        a(f"v_add_u32 v{T+6}, s35, v{T+6}")
        if tl:
            a(f"v_add_u32 v{T+6}, 16, v{T+6}")
        a(f"v_lshrrev_b32 v{T+7}, 3, v{T+6}")
        a(f"v_bfe_u32 v{T+8}, v{T+6}, 2, 1")
        a(f"v_lshlrev_b32 v{T+8}, 3, v{T+8}")
        a(f"v_mul_u32_u24 v{T+9}, 5120, v{T+7}")
        a(f"v_lshl_add_u32 v{T+9}, v{T}, 4, v{T+9}")
        a(f"v_cmp_eq_u32 vcc, 0, v{T}")
        a(f"v_add3_u32 v{T+10+tl}, v{T+9}, v{T+8}, s40")
        a(f"v_lshl_add_u32 v{T+9}, v{T+7}, 6, v{T+8}")
        a(f"v_add_u32 v{T+12+tl}, s42, v{T+9}")
        a(f"v_cndmask_b32 v{T+12+tl}, v{T+4}, v{T+12+tl}, vcc")
        if tl:
            a(f"v_cmp_eq_u32 vcc, 0, v{T+1}")
            a("s_nop 1")
            a(f"v_cndmask_b32 v{T+10+tl}, v{T+4}, v{T+10+tl}, vcc")
            a(f"v_cndmask_b32 v{T+12+tl}, v{T+4}, v{T+12+tl}, vcc")
    a(f"v_lshlrev_b32 v{T+14}, 3, v{W_LANE}")
    a(f"v_add_u32 v{T+14}, {SCR}, v{T+14}")
    a(f"v_mul_u32_u24 v{T+15}, 40, v{T+1}")
    a(f"v_add_u32 v{T+15}, v{T+15}, v{T}")
    a(f"v_add_u32 v{T+16}, 16, v{T+15}")
    a(f"v_mov_b32 v{T+17}, 120")
    a(f"v_cmp_gt_u32 vcc, 3, v{T+1}")
    a("s_lshl_b32 s32, s22, 7")
    a("s_lshl_b32 s33, s21, 2")
    a(f"v_cndmask_b32 v{T+15}, v{T+17}, v{T+15}, vcc")
    a(f"v_cndmask_b32 v{T+16}, v{T+17}, v{T+16}, vcc")
    a(f"v_cndmask_b32 v{T+18}, 0, 20, vcc")
    a(f"v_cmp_gt_u32 vcc, 4, v{T}")
    a("s_add_u32 s32, s32, s33")
    a(f"s_add_u32 s32, s32, {FL_OFF}")
    a(f"v_cndmask_b32 v{T+16}, v{T+17}, v{T+16}, vcc")
    a(f"v_cndmask_b32 v{T+17}, 0, v{T+18}, vcc")
    a(f"v_add_u32 v{T+18}, v{T+18}, v{T+15}")
    a(f"v_add_u32 v{T+17}, v{T+17}, v{T+16}")
    for r in (15, 16, 17, 18):
        a(f"v_lshlrev_b32 v{T+r}, 3, v{T+r}")
        a(f"v_add_u32 v{T+r}, {SCR}, v{T+r}")
    for p in range(1, 8):
        a(f"s_waitcnt vmcnt({5 + 2 * (7 - p) + NPRE_S})")
        for r in range(0, 8, 2):
            a(pk("add", PB + r, PB + r, PB + 8 * p + r))
    for r in range(4):
        a(f"v_cvt_pk_bf16_f32 v{PB+8+r}, v{PB+2*r}, v{PB+2*r+1}")
    a(f"ds_write_b64 v{T+14}, {vr(PB + 8, 2)}")
    a(f"ds_write_b64 v{T+14}, {vr(PB + 10, 2)} offset:512")
    a("s_waitcnt lgkmcnt(0)")
    AF = PB + 16
    a(f"ds_read_b64 {vr(AF, 2)}, v{T+15}")
    a(f"ds_read_b64 {vr(AF + 2, 2)}, v{T+18}")
    a(f"ds_read_b64 {vr(AF + 4, 2)}, v{T+16}")
    a(f"ds_read_b64 {vr(AF + 6, 2)}, v{T+17}")
    a(f"s_waitcnt vmcnt({NPRE_S}) lgkmcnt(0)")
    DD = 204 - 48 + 48
    for nb in range(6):
        for tl in range(2):
            a(f"v_mfma_f32_16x16x32_bf16 {vr(DD + 8 * nb + 4 * tl, 4)}, {vr(AF + 4 * tl, 4)}, {vr(PW + 4 * nb, 4)}, 0")
    a("s_mov_b32 s43, 4096")
    a(f"v_mov_b32 v{T+5}, 1")
    for nb in range(6):
        for tl in range(2):
            d = DD + 8 * nb + 4 * tl
            a(f"v_cvt_pk_bf16_f32 v{d}, v{d}, v{d+1}")
            a(f"v_cvt_pk_bf16_f32 v{d+1}, v{d+2}, v{d+3}")
            if nb < 4:
                a(f"buffer_store_dwordx2 {vr(d, 2)}, v{T+10+tl}, s[16:19], 0 offen offset:{nb * 1024} sc1")
            elif nb == 4:
                a(f"buffer_store_dwordx2 {vr(d, 2)}, v{T+10+tl}, s[16:19], s43 offen sc1")
            else:
                a(f"buffer_store_dwordx2 {vr(d, 2)}, v{T+12+tl}, s[16:19], 0 offen sc1")
    if OPT["k2_hold"] and OPT["k2_early"]: a("s_barrier")
    tick(a, 7)
    a("s_waitcnt vmcnt(0)")
    a(f"buffer_store_dword v{T+5}, off, s[16:19], s32 sc1")

NPRE_S = 20

def gen_k2(a):
    T = W_T
    a.raw(".globl k2_kernel\n.p2align 8\n.type k2_kernel,@function")
    a.label("k2_kernel")
    a("s_cmp_ge_u32 s2, 256")
    a("s_cbranch_scc1 L_k2_end")
    a("s_load_dwordx2 s[4:5], s[0:1], 0")
    a("s_load_dwordx2 s[6:7], s[0:1], 72")
    a("s_load_dwordx2 s[36:37], s[0:1], 56")
    a(f"v_and_b32 v{W_LANE}, 63, v0")
    a(f"v_lshrrev_b32 v{T}, 6, v0")
    a(f"v_lshlrev_b32 v{W_L16}, 4, v{W_LANE}")
    a(f"v_readfirstlane_b32 s20, v{T}")
    a(f"v_add_u32 v{W_L16B}, 4096, v{W_L16}")
    if OPT["prefetch_code"]:
        a("s_getpc_b64 s[62:63]")
        a(f"v_lshlrev_b32 v{T+1}, 7, v0")
        a(f"v_min_u32 v{T+1}, L_code_end-k2_kernel-256, v{T+1}")
        a(f"global_load_dword v{W_PRE}, v{T+1}, s[62:63]")
    a("s_and_b32 s32, s2, 7")
    a("s_lshr_b32 s33, s2, 3")
    if OPT["k2map"] == "8x4":
        a("s_lshr_b32 s21, s32, 1")
        a("s_lshl_b32 s21, s21, 3")
        a("s_and_b32 s34, s33, 7")
        a("s_add_u32 s21, s21, s34")
        a("s_and_b32 s22, s32, 1")
        a("s_lshl_b32 s22, s22, 2")
        a("s_lshr_b32 s34, s33, 3")
        a("s_add_u32 s22, s22, s34")
    elif OPT["k2map"] == "4x8":
        a("s_lshl_b32 s21, s32, 2")
        a("s_and_b32 s34, s33, 3")
        a("s_add_u32 s21, s21, s34")
        a("s_lshr_b32 s22, s33, 2")
    a("s_and_b32 s27, s20, 3")
    a("s_waitcnt lgkmcnt(0)")
    srd(a, 16, 6, 7, WS_USED)
    if OPT["stamp"]:
        srd(a, 92, 6, 7, WS_USED + 16 * 8192)
        stamp(a, 4, T + 16, T + 17)
    def setup(ntile, tile0):
        srd(a, 8, 4, 5, S * D * 2)
        srd(a, 12, 36, 37, S * D * 2)
        a("s_lshl_b32 s33, s21, 2")
        a("s_add_u32 s33, s33, s27")
        a("s_mul_i32 s33, s33, 20480")
        a("s_mul_i32 s34, s22, 160")
        a("s_add_u32 s33, s33, s34")
        a(f"s_add_u32 s33, s33, {32 * tile0}")
        a(f"v_lshrrev_b32 v{T+3}, 2, v{W_LANE}")
        a(f"v_and_b32 v{T+4}, 3, v{W_LANE}")
        a(f"v_mul_u32_u24 v{T}, 1280, v{T+3}")
        a(f"v_lshl_add_u32 v{T}, v{T+4}, 3, v{T}")
        a(f"v_add_u32 v{T}, s33, v{T}")
        a(f"v_bfe_u32 v{T+5}, v{T+3}, 1, 2")
        a(f"v_xor_b32 v{T+5}, v{T+5}, v{T+4}")
        a(f"v_lshl_add_u32 v{T+5}, v{T+3}, 2, v{T+5}")
        a("s_mul_i32 s33, s27, 5120")
        a(f"s_add_u32 s33, s33, {1024 * tile0}")
        a(f"v_lshl_add_u32 v{T+2}, v{T+5}, 4, s33")
        a(f"v_and_b32 v{T+3}, 15, v{W_LANE}")
        a(f"v_lshrrev_b32 v{T+4}, 4, v{W_LANE}")
        a(f"v_bfe_u32 v{T+5}, v{T+3}, 1, 2")
        a(f"v_xor_b32 v{T+5}, v{T+5}, v{T+4}")
        a(f"v_lshl_add_u32 v{T+5}, v{T+3}, 2, v{T+5}")
        a("s_mul_i32 s33, s20, 20480")
        a(f"v_lshl_add_u32 v{T+1}, v{T+5}, 4, s33")
    def final(ntile, vq, tag):
        N = 32
        RD = 64
        XE = 140
        nv = 4 * ntile
        vq.wait("x")
        for i in range(2 * ntile):
            a(f"v_lshlrev_b32 v{XE + 2 * i}, 16, v{W_X + i}")
            a(f"v_and_b32 v{XE + 2 * i + 1}, 0xffff0000, v{W_X + i}")
        a(f"v_mov_b32 v{T+10}, {hex(LOG2E | 0x80000000)}")
        a(f"v_mov_b32 v{T+12}, 1.0")
        a(f"v_add_u32 v{T+3}, 61440, v{T+2}")
        a(f"v_add_u32 v{T+4}, 122880, v{T+2}")
        a("s_waitcnt lgkmcnt(0)")
        a("s_barrier")
        tick(a, 5)
        lq = LQ(a)
        def dst(src, t):
            if src == 0: return N + 4 * t
            if src == 4: return N + nv + 4 * t
            return RD + (src - 1 - (src > 4)) * nv + 4 * t
        for src in range(8):
            av, off = [(T + 2, 0), (T + 3, 61440), (T + 4, 122880)][src // 3]
            for t in range(ntile):
                lq.issue(f"p{src}", f"ds_read_b128 {vr(dst(src, t), 4)}, v{av} offset:{src * 20480 - off + t * 1024}")
        E = 176
        for src in (1, 2, 3):
            lq.wait("p0", f"p{src}")
            for i in range(0, nv, 2):
                a(pk("add", N + i, N + i, dst(src, 0) + i))
        for i in range(0, nv, 2):
            a(pk("mul", E + i, N + i, T + 10, bc=(1,)))
        for i in range(nv):
            a(f"v_exp_f32 v{E + i}, v{E + i}")
        for src in (5, 6, 7):
            lq.wait("p4", f"p{src}")
            for i in range(0, nv, 2):
                a(pk("add", N + nv + i, N + nv + i, dst(src, 0) + i))
        for i in range(0, nv, 2):
            a(pk("add", E + i, E + i, T + 12, bc=(1,)))
            a(pk("mul", N + i, N + i, N + nv + i))
        for i in range(nv):
            a(f"v_rcp_f32 v{E + i}, v{E + i}")
        a("s_nop 0")
        for i in range(0, nv, 2):
            a(pk("fma", XE + i, N + i, E + i, XE + i))
        for t in range(ntile):
            a(f"v_cvt_pk_bf16_f32 v{N + 2 * t}, v{XE + 4 * t}, v{XE + 4 * t + 1}")
            a(f"v_cvt_pk_bf16_f32 v{N + 2 * t + 1}, v{XE + 4 * t + 2}, v{XE + 4 * t + 3}")
            a(f"buffer_store_dwordx2 {vr(N + 2 * t, 2)}, v{T}, s[12:15], 0 offen offset:{t * 32}")
        if OPT["stamp"]:
            tick(a, 6)
            a("s_waitcnt vmcnt(0)")
            stamp(a, 5, T + 16, T + 17)
            tick_dump(a, 6 if tag == "h" else 7, 0 if tag == "h" else 4, T + 16, T + 17, "k2" + tag)
            if OPT["dbgout"] and tag == "h":
                a(f"s_cmp_lg_u32 s2, {OPT['dbgout'] - 1}")
                a("s_cbranch_scc1 L_k2_nodbg")
                a("s_cmp_lg_u32 s20, 0")
                a("s_cbranch_scc1 L_k2_nodbg")
                a("s_load_dwordx2 s[64:65], s[0:1], 64")
                a("s_waitcnt vmcnt(0) lgkmcnt(0)")
                srd(a, 44, 64, 65, 256)
                a(f"v_lshlrev_b32 v{T+16}, 13, v{W_LANE}")
                a("s_lshl_b32 s98, s2, 5")
                a(f"s_add_u32 s98, s98, {WS_USED}")
                a(f"buffer_load_dword v{T+17}, v{T+16}, s[92:95], s98 offen sc1")
                a(f"v_lshlrev_b32 v{T+16}, 2, v{W_LANE}")
                a("s_waitcnt vmcnt(0)")
                a(f"buffer_store_dword v{T+17}, v{T+16}, s[44:47], 0 offen")
                a("s_waitcnt vmcnt(0)")
                a.label("L_k2_nodbg")
    def xloads(vq, ntile):
        for t in range(ntile):
            vq.issue("x", f"buffer_load_dwordx2 {vr(W_X + 2 * t, 2)}, v{T}, s[8:11], 0 offen offset:{t * 32}")

    a("s_cmp_ge_u32 s20, 4")
    a("s_cbranch_scc1 L_k2_s")
    vq = VQ(a)
    RH, NK = OPT["k2_ring"], 14
    a("s_mul_i32 s32, s27, 14")
    a("s_cmp_eq_u32 s27, 3")
    a("s_cselect_b32 s32, 41, s32")
    a("s_mul_i32 s23, s21, 54")
    a("s_add_u32 s23, s23, s32")
    a("s_lshl_b32 s23, s23, 12")
    a("s_mul_i32 s24, s22, 54")
    a("s_add_u32 s24, s24, s32")
    a("s_mul_i32 s24, s24, 5120")
    a(f"s_add_u32 s24, s24, {W2F_OFF}")
    def ring_loads(k):
        R = H_RING + 36 * (k % RH)
        if k == NK - 1:
            a("s_cmp_ge_u32 s27, 2")
            a(f"s_cselect_b32 s23, {OOB}, s23")
            a(f"s_cselect_b32 s24, {OOB}, s24")
        for rb in range(4):
            vq.issue(f"R{k}", f"buffer_load_dwordx4 {vr(R + 4 * rb, 4)}, v{W_L16}, s[16:19], s23 offen offset:{rb * 1024}")
        for nb in range(5):
            if nb < 4:
                vq.issue(f"R{k}", f"buffer_load_dwordx4 {vr(R + 16 + 4 * nb, 4)}, v{W_L16}, s[16:19], s24 offen offset:{nb * 1024}")
            else:
                vq.issue(f"R{k}", f"buffer_load_dwordx4 {vr(R + 16 + 4 * nb, 4)}, v{W_L16B}, s[16:19], s24 offen")
        a("s_add_u32 s23, s23, 4096")
        a("s_add_u32 s24, s24, 5120")
    init = min(OPT["k2_init"], RH)
    ring_loads(0)
    setup(3, 0)
    a("s_barrier")
    for k in range(1, init): ring_loads(k)
    issued = init
    HK = OPT["k2_hold"]
    for k in range(NK):
        if HK and k == HK - 1 + 1 - 1 and HK == 1: pass
        if k in (0, 4, 8, 12): tick(a, k // 4)
        vq.wait(f"R{k}")
        R = H_RING + 36 * (k % RH)
        for rb in range(4):
            for nb in range(5):
                acc = vr(H_ACC + 20 * rb + 4 * nb, 4)
                a(f"v_mfma_f32_16x16x32_bf16 {acc}, {vr(R + 16 + 4 * nb, 4)}, {vr(R + 4 * rb, 4)}, {'0' if k == 0 else acc}")
            if k == NK - 1 and rb > 0:
                for nb in range(5):
                    a(f"ds_write_b128 v{T+1}, {vr(H_ACC + 20 * (rb - 1) + 4 * nb, 4)} offset:{(rb - 1) * 5120 + nb * 1024}")
        n = 0
        if HK and k == HK - 1:
            a("s_barrier")
        depth = init if (HK and k < HK - 1) else RH
        while issued < NK and issued <= k + depth and n < (RH if HK and k == HK - 1 else 2):
            ring_loads(issued); issued += 1; n += 1
        if k == 8: xloads(vq, 3)
    tick(a, 4)
    a("s_nop 3")
    for nb in range(5):
        a(f"ds_write_b128 v{T+1}, {vr(H_ACC + 60 + 4 * nb, 4)} offset:{3 * 5120 + nb * 1024}")
    final(3, vq, "h")
    a.label("L_k2_end")
    a("s_endpgm")

    def s_offsets():
        a("s_mul_i32 s33, s27, 5")
        a("s_mul_i32 s25, s21, 20")
        a("s_add_u32 s25, s25, s33")
        a("s_lshl_b32 s25, s25, 12")
        a(f"s_add_u32 s25, s25, {PQ_OFF}")
        a("s_mul_i32 s26, s22, 20")
        a("s_add_u32 s26, s26, s33")
        a("s_lshl_b32 s28, s26, 6")
        a(f"s_add_u32 s28, s28, {ZF_OFF}")
        a("s_mul_i32 s26, s26, 5120")
        a(f"s_add_u32 s26, s26, {MF_OFF}")
        a("s_lshl_b32 s30, s22, 7")
        a(f"s_add_u32 s30, s30, {FL_OFF}")
    def pq_loads(vq):
        for u in range(5):
            for rb in range(4):
                vq.issue("pq", f"buffer_load_dwordx4 {vr(S_PQ + 20 * rb + 4 * u, 4)}, v{W_L16}, s[16:19], s25 offen offset:{rb * 1024}")
            a("s_add_u32 s25, s25, 4096")
    a.label("L_k2_s")
    vq = VQ(a)
    a("s_cmp_lg_u32 s20, 4")
    a("s_cbranch_scc1 L_k2_s1")
    if OPT["k2_noprod"]: a("s_branch L_k2_s1")
    a("s_setprio 3")
    k2_producer(a)
    s_offsets()
    pq_loads(VQ(a))
    a(f"v_mov_b32 v{T+6}, {FLAG_LDS}")
    a(f"v_mov_b32 v{T+7}, 0")
    a(f"ds_write_b32 v{T+6}, v{T+7}")
    a("s_waitcnt lgkmcnt(0)")
    a("s_barrier")
    k2_producer2(a)
    tick(a, 0)
    a("s_branch L_k2_s2")
    a.label("L_k2_s1")
    a("s_barrier")
    s_offsets()
    if OPT["k2_hold"] and OPT["k2_early"]: a("s_barrier")
    pq_loads(vq)
    a.label("L_k2_s2")
    if OPT["k2_hold"] and not OPT["k2_early"]: a("s_barrier")
    if OPT["k2_sprio"]: a(f"s_setprio {OPT['k2_sprio']}")
    setup(2, 3)
    xloads(vq, 2)
    a(f"v_lshrrev_b32 v{T+8}, 4, v{W_LANE}")
    a(f"v_lshlrev_b32 v{T+8}, 4, v{T+8}")
    a(f"v_mov_b32 v{T+6}, {FLAG_LDS}")
    a("s_mov_b32 s29, 0")
    if OPT["k2_noprod"]: a("s_branch L_k2_go")
    a("s_cmp_lg_u32 s20, 4")
    a("s_cbranch_scc1 L_k2_wl")
    a(f"v_and_b32 v{T+9}, 31, v{W_LANE}")
    a(f"v_lshlrev_b32 v{T+9}, 2, v{T+9}")
    a.label("L_k2_poll")
    a(f"buffer_load_dword v{T+7}, v{T+9}, s[16:19], s30 offen sc1")
    a("s_add_u32 s29, s29, 1")
    a("s_cmp_ge_u32 s29, 200000")
    a("s_waitcnt vmcnt(0)")
    a("s_cbranch_scc1 L_k2_rel")
    a(f"v_cmp_ne_u32 vcc, 1, v{T+7}")
    a("s_cbranch_vccz L_k2_rel")
    a(f"s_sleep {OPT['k2_sleep']}")
    a("s_branch L_k2_poll")
    a.label("L_k2_rel")
    a(f"v_mov_b32 v{T+7}, 1")
    a(f"ds_write_b32 v{T+6}, v{T+7}")
    a(f"s_setprio {OPT['k2_sprio']}")
    a("s_branch L_k2_go")
    a.label("L_k2_wl")
    a("s_sleep 2")
    a(f"ds_read_b32 v{T+7}, v{T+6}")
    a("s_add_u32 s29, s29, 1")
    a("s_cmp_ge_u32 s29, 400000")
    a("s_waitcnt lgkmcnt(0)")
    a("s_cbranch_scc1 L_k2_go")
    a(f"v_cmp_ne_u32 vcc, 1, v{T+7}")
    a("s_cbranch_vccnz L_k2_wl")
    a.label("L_k2_go")
    tick(a, 1)
    for u in range(5):
        vq.issue("z", f"buffer_load_dwordx4 {vr(S_Z + 4 * u, 4)}, v{T+8}, s[16:19], s28 offen offset:{u * 64} sc1")
    for u in range(5):
        for nb in range(5):
            if nb < 4:
                vq.issue(f"M{u}", f"buffer_load_dwordx4 {vr(S_M + 20 * u + 4 * nb, 4)}, v{W_L16}, s[16:19], s26 offen offset:{nb * 1024} sc1")
            else:
                vq.issue(f"M{u}", f"buffer_load_dwordx4 {vr(S_M + 20 * u + 4 * nb, 4)}, v{W_L16B}, s[16:19], s26 offen sc1")
        a("s_add_u32 s26, s26, 5120")
    N = T + 10
    def norm(rb):
        P = S_PQ + 20 * rb
        for hd in range(2):
            a(f"v_mov_b32 v{N + 2 * hd}, {hex(EPS6)}")
            a(f"v_mov_b32 v{N + 2 * hd + 1}, 0")
        for i in range(10):
            for hd in range(2):
                dn = N + 2 * hd + (i & 1)
                a(f"v_dot2_f32_bf16 v{dn}, v{P + 10 * hd + i}, v{S_Z + 10 * hd + i}, v{dn}")
        a("s_nop 2")
        for hd in range(2):
            a(f"v_add_f32 v{N + 2 * hd}, v{N + 2 * hd}, v{N + 2 * hd + 1}")
        for hd in range(2):
            a(f"v_rcp_f32 v{N + 2 * hd}, v{N + 2 * hd}")
        E = S_ACC
        for i0 in range(0, 20, 10):
            for i in range(i0, i0 + 10):
                e = E + 2 * (i % 10)
                a(f"v_lshlrev_b32 v{e}, 16, v{P + i}")
                a(f"v_and_b32 v{e + 1}, 0xffff0000, v{P + i}")
            for i in range(i0, i0 + 10):
                e = E + 2 * (i % 10)
                a(pk("mul", e, e, N + 2 * (i // 10), bc=(1,)))
            for i in range(i0, i0 + 10):
                e = E + 2 * (i % 10)
                a(f"v_cvt_pk_bf16_f32 v{P + i}, v{e}, v{e + 1}")
    vq.wait("pq", "z")
    tick(a, 2)
    for rb in range(4): norm(rb)
    tick(a, 3)
    for rb in range(4):
        AC = S_ACC if rb % 2 == 0 else S_Z
        for u in range(5):
            vq.wait(f"M{u}")
            if rb == 0 and u == 0: a("s_nop 0")
            if rb >= 2 and u == 0: a("s_waitcnt lgkmcnt(0)")
            for nb in range(5):
                acc = vr(AC + 4 * nb, 4)
                a(f"v_mfma_f32_16x16x32_bf16 {acc}, {vr(S_M + 20 * u + 4 * nb, 4)}, {vr(S_PQ + 20 * rb + 4 * u, 4)}, {'0' if u == 0 else acc}")
            if rb > 0 and u == 1:
                PA = S_ACC if (rb - 1) % 2 == 0 else S_Z
                for nb in range(5):
                    a(f"ds_write_b128 v{T+1}, {vr(PA + 4 * nb, 4)} offset:{(rb - 1) * 5120 + nb * 1024}")
    a("s_nop 7")
    for nb in range(5):
        a(f"ds_write_b128 v{T+1}, {vr(S_Z + 4 * nb, 4)} offset:{3 * 5120 + nb * 1024}")
    tick(a, 4)
    final(2, vq, "s")
    a("s_endpgm")

def kd(name, vgpr, accum, sgpr=102):
    return f""".amdhsa_kernel {name}
  .amdhsa_next_free_vgpr {vgpr}
  .amdhsa_next_free_sgpr {sgpr}
  .amdhsa_accum_offset {accum}
  .amdhsa_group_segment_fixed_size 0
  .amdhsa_kernarg_size 80
  .amdhsa_user_sgpr_count 2
  .amdhsa_user_sgpr_kernarg_segment_ptr 1
  .amdhsa_system_sgpr_workgroup_id_x 1
.end_amdhsa_kernel"""

def main():
    a = Asm()
    a.raw(f"; @launch kernel=k1_kernel grid=(256,1,1) block=(512,1,1) lds={K1_LDS}")
    a.raw(f"; @launch kernel=k2_kernel grid=(256,1,1) block=(512,1,1) lds={K2_LDS}")
    if OPT["k2_twice"]:
        a.raw(f"; @launch kernel=k2_kernel grid=(256,1,1) block=(512,1,1) lds={K2_LDS}")
    a.raw('.amdgcn_target "amdgcn-amd-amdhsa--gfx950"')
    a.raw(".text")
    gen_k1(a)
    gen_k2(a)
    a.label("L_code_end")
    a("s_endpgm")
    a.raw('.section .rodata,"a"')
    a.raw(".p2align 6")
    a.raw(kd("k1_kernel", 256, 256))
    a.raw(".p2align 6")
    a.raw(kd("k2_kernel", 256, 256))
    open(sys.argv[1], "w").write(a.text())

if __name__ == "__main__":
    main()
```

```python
import sys

S, D, F = 2048, 640, 1728

HB_OFF   = 0
HB_SZ    = 32 * 54 * 4096
PQ_OFF   = HB_OFF + HB_SZ
PQ_SZ    = 32 * 20 * 4096
W2F_OFF  = PQ_OFF + PQ_SZ
W2F_SZ   = 8 * 54 * 5120
WOF_OFF  = W2F_OFF + W2F_SZ
WOF_SZ   = 32 * 8 * 5120
MF_OFF   = WOF_OFF + WOF_SZ
MF_SZ    = 8 * 20 * 5120
KVP_OFF  = MF_OFF + MF_SZ
KVP_SZ   = 8 * 32 * 1920
ZF_OFF   = KVP_OFF + KVP_SZ
ZF_SZ    = 8 * 1280
FL_OFF   = ZF_OFF + ZF_SZ
FL_SZ    = 8 * 128
ST_OFF   = FL_OFF + FL_SZ
ST_SZ    = 2 * 2048 * 4
WS_USED  = ST_OFF + ST_SZ
OOB      = 0x40000000

LOG2E = 0x3fb8aa3b
EPS6  = 0x358637bd
EPS5  = 0x3727c5ac
INV640 = 0x3acccccd
ONES_BF = 0x3f803f80

OPT = dict(k1map="4x8", k2map="8x4", stamp=0, prefetch_code=0, no_fill=0, no_x=0, no_dma=0, no_rd=0, no_mfma=0,
           flag_st=6, k2_twice=0, rot=0, k2_ring=3, k2_init=2, k2_sleep=4, k2_nos=0, pro=0, k2_hold=1, k2_sprio=1, k2_pqthr=1, k2_early=1, k2_noprod=0, k2_msc1=1, dbgout=0, st_flag='', rl_flag='', k2_sp_early=1, ld_w='', ld_x='')
for _a in sys.argv[2:]:
    _k, _v = _a.split("=")
    assert _k in OPT, _k
    OPT[_k] = int(_v) if _v.lstrip("-").isdigit() else _v

class Asm:
    def __init__(self):
        self.L = []
    def __call__(self, s):
        for line in s.strip("\n").split("\n"):
            self.L.append("    " + line.strip())
    def label(self, l):
        self.L.append(l + ":")
    def raw(self, s):
        self.L.append(s)
    def text(self):
        return "\n".join(self.L) + "\n"

class VQ:
    def __init__(self, a):
        self.a, self.q, self.done = a, [], 0
    def issue(self, tag, text):
        self.q.append(tag)
        self.a(text)
    def need(self, *tags):
        idxs = [i for i, t in enumerate(self.q) if t in tags]
        if not idxs:
            return None
        idx = max(idxs)
        if idx < self.done:
            return None
        n = min(63, len(self.q) - 1 - idx)
        self.done = len(self.q) - n
        return n
    def wait(self, *tags, lgkm=None):
        n = self.need(*tags) if tags else None
        parts = []
        if n is not None: parts.append(f"vmcnt({n})")
        if lgkm is not None: parts.append(f"lgkmcnt({lgkm})")
        if parts: self.a("s_waitcnt " + " ".join(parts))

class LQ:
    def __init__(self, a):
        self.a, self.q, self.done = a, [], 0
    def issue(self, tag, text):
        if len(self.q) - self.done >= 15:
            self.a("s_waitcnt lgkmcnt(14)")
            self.done = len(self.q) - 14
        self.q.append(tag)
        self.a(text)
    def need(self, *tags):
        idxs = [i for i, t in enumerate(self.q) if t in tags]
        if not idxs or max(idxs) < self.done:
            return None
        n = len(self.q) - 1 - max(idxs)
        self.done = len(self.q) - n
        return n
    def wait(self, *tags):
        n = self.need(*tags)
        if n is not None: self.a(f"s_waitcnt lgkmcnt({n})")
    def drained(self):
        self.done = len(self.q)

def vr(b, n):
    return f"v[{b}:{b+n-1}]" if n > 1 else f"v{b}"
def ar(b, n):
    return f"a[{b}:{b+n-1}]" if n > 1 else f"a{b}"

def srd(a, d, lo, hi, size):
    a(f"s_mov_b32 s{d}, s{lo}")
    a(f"s_and_b32 s{d+1}, s{hi}, 0xffff")
    a(f"s_mov_b32 s{d+2}, {size}")
    a(f"s_mov_b32 s{d+3}, 0x20000")

def stamp(a, slot, va, vb):
    if not OPT["stamp"]:
        return
    a("s_memrealtime s[96:97]")
    a("s_waitcnt lgkmcnt(0)")
    a(f"v_mov_b32 v{va}, s96")
    a("s_lshl_b32 s98, s2, 5")
    a("s_lshl_b32 s99, s20, 2")
    a("s_add_u32 s98, s98, s99")
    a(f"s_add_u32 s98, s98, {WS_USED + slot * 8192}")
    a(f"v_mov_b32 v{vb}, s98")
    a(f"buffer_store_dword v{va}, v{vb}, s[92:95], 0 offen")
    a("s_memtime s[96:97]")
    a("s_waitcnt lgkmcnt(0)")
    a(f"v_mov_b32 v{va}, s96")
    a("s_mov_b32 s99, 65536")
    a(f"buffer_store_dword v{va}, v{vb}, s[92:95], s99 offen")

def tick(a, i):
    if OPT["stamp"]:
        a("s_memtime s[60:61]")
        a("s_waitcnt lgkmcnt(0)")
        a(f"s_mov_b32 s{70 + i}, s60")

def tick_dump(a, slot, wave, va, vb, tag):
    if not OPT["stamp"]:
        return
    a(f"s_cmp_lg_u32 s20, {wave}")
    a(f"s_cbranch_scc1 L_nost_{tag}")
    for i in range(8):
        a(f"v_mov_b32 v{va}, s{70+i}")
        a("s_lshl_b32 s98, s2, 5")
        a(f"s_add_u32 s98, s98, {WS_USED + slot * 8192 + 4 * i}")
        a(f"v_mov_b32 v{vb}, s98")
        a(f"buffer_store_dword v{va}, v{vb}, s[92:95], 0 offen")
    a.label(f"L_nost_{tag}")

def pk(op, d, x, y, z=None, bc=()):
    def o(v):
        return v if isinstance(v, str) else f"v[{v}:{v+1}]"
    n = 3 if z is not None else 2
    hi = [0 if i in bc else 1 for i in range(n)]
    ops = [o(x), o(y)] + ([o(z)] if z is not None else [])
    t = f"v_pk_{op}_f32 v[{d}:{d+1}], " + ", ".join(ops)
    if bc:
        t += " op_sel_hi:[" + ",".join(map(str, hi)) + "]"
    return t

K1_LDS = 163840
SLOT = 24576
XL_LDS = 98304
V_LANE, V_XD, V_D0, V_R0, V_RC, V_XR, V_FL = 1, 2, 4, 7, 10, 13, 14
V_L16 = 15
V_CS = 16
V_EPS = 22
V_U = 24
V_NM, V_RS = 28, 36
V_KNM, V_KRS = 28, 44
V_T = 44
V_X = [60, 76]
V_F = [92, 122]
V_CA = 152
V_SA = 155
V_ACC = 160
V_E0 = 60

def k1_mainloop(a, kind, tag, late_setup):
    nt = 6 if kind == "ffn" else 5
    pitch = 192 if kind == "ffn" else 320
    wpitch = 3456 if kind == "ffn" else 3840
    NK = 20
    vq, lq = VQ(a), LQ(a)
    def rd_addr(ct):
        if kind == "ffn":
            return V_R0 + (ct >> 1), (ct & 1) * 12288
        if ct == 4:
            return V_R0 + 1, 0
        return V_R0, (8 if kind == "q" else 32) * ct
    naddr = ([V_R0, V_R0 + 1, V_R0 + 2] if kind == "ffn" else [V_R0, V_R0 + 1]) + [V_RC, V_RC + 1, V_RC + 2]
    def koff(n):
        s_, j = divmod(n, 2)
        return (s_ & 1) * SLOT + 32 * j * pitch
    def wread(ct, n, sec):
        if OPT["no_rd"] and n > 0: return
        av, off = rd_addr(ct)
        o = koff(n) + off + 4 * sec * pitch
        assert o < 65536
        lq.issue(f"f{n}_{ct}", f"ds_read_b64_tr_b16 {vr(V_F[n & 1] + 4 * ct + 2 * sec, 2)}, v{av} offset:{o}")
    def cread(i, n):
        if OPT["no_rd"] and n > 0: return
        lq.issue(f"c{n}", f"ds_read_b64_tr_b16 {vr(V_F[n & 1] + 24 + 2 * i, 2)}, v{V_RC + i} offset:{koff(n)}")
    def xread(rt, n):
        lq.issue(f"x{n}_{rt}", f"ds_read_b128 {vr(V_X[n & 1] + 4 * rt, 4)}, v{V_XR} offset:{(n % 4) * 16384 + rt * 1024}")
    def all_reads(n):
        L = [lambda rt=rt: xread(rt, n) for rt in range(4)]
        W = [lambda ct=ct, sec=sec: wread(ct, n, sec) for ct in range(nt) for sec in range(2)]
        C = [lambda i=i: cread(i, n) for i in range(3)]
        return L[:1] + W[:2] + L[1:] + C + W[2:]
    def dma(stage, i):
        if OPT["no_dma"] and stage > 2: return
        a(f"s_add_u32 m0, s{28+i}, {(stage % 4) * SLOT}")
        a("s_nop 0")
        vq.issue(f"D{stage}", f"buffer_load_dwordx4 v{V_D0+i}, s[12:15], s24 offen {OPT['ld_w']} lds")
        if i == 2:
            a(f"s_add_u32 s24, s24, {64 * wpitch}")
            if OPT["rot"]:
                a(f"s_cmp_eq_u32 s24, {640 * wpitch}")
                a(f"s_cselect_b32 s24, 0, s24")
    def xl(n, i):
        if OPT["no_x"] and n >= 4: return
        a(f"s_add_u32 m0, s26, {(n % 4) * 16384 + i * 1024}")
        a("s_nop 0")
        vq.issue(f"X{n}", f"buffer_load_dwordx4 v{V_XD + i}, s[8:11], s23 offen {OPT['ld_x']} lds")
        if i == 1:
            a("s_add_u32 s23, s23, 64")
            if OPT["rot"] and n & 1:
                a("s_cmp_eq_u32 s23, 1280")
                a("s_cselect_b32 s23, 0, s23")

    a(f"s_mul_i32 s24, s25, {64 * wpitch}")
    a("s_lshl_b32 s23, s25, 7")
    for i in range(3): dma(0, i)
    for n in range(2):
        for i in range(2): xl(n, i)
    late_setup()
    for r in range(6):
        a(f"v_mov_b32 v{V_CS + r}, 0")
    for i in range(3): dma(1, i)
    for n in range(2, 4):
        for i in range(2): xl(n, i)
    for i in range(3): dma(2, i)
    vq.wait("D0", "X0")
    a("s_barrier")
    for f in all_reads(0): f()
    for n in range(NK):
        s_, j = divmod(n, 2)
        cur, xc = V_F[n & 1], V_X[n & 1]
        last = n == NK - 1
        if n % 4 == 0 and OPT["stamp"]:
            tick(a, n // 4); lq.drained()
        extra = []
        if not last:
            need = [f"X{n + 1}"] + ([f"D{s_ + 1}"] if j == 1 else [])
            lg = lq.need(*[f"x{n}_{rt}" for rt in range(4)])
            vq.wait(*need, lgkm=lg)
            a("s_barrier")
            if n + 4 < NK:
                extra += [lambda i=i: xl(n + 4, i) for i in range(2)]
            if j == 0 and 1 <= s_ and s_ + 2 < 10:
                extra += [lambda i=i: dma(s_ + 2, i) for i in range(3)]
            if j == 1 and (s_ & 1):
                for av in naddr:
                    if (s_ & 2) == 0: a(f"v_add_u32 v{av}, {2 * SLOT}, v{av}")
                    else: a(f"v_subrev_u32 v{av}, {2 * SLOT}, v{av}")
        else:
            lq.wait(*[f"x{n}_{rt}" for rt in range(4)])
            a("s_barrier")
        if n == 2 * OPT["flag_st"]:
            extra.append(lambda: vq.issue("flag", f"buffer_load_dword v{V_FL}, off, s[44:47], s48 sc1"))
        if n == 2 * OPT["flag_st"] + 4:
            vq.wait("flag")
            a(f"v_cmp_ne_u32 vcc, 1, v{V_FL}")
            a(f"s_cbranch_vccnz L_k1_{tag}_spin")
            a.label(f"L_k1_{tag}_go")
            for rt in range(4):
                if kind == "kv":
                    extra.append(lambda rt=rt: vq.issue("stat", f"buffer_load_dwordx4 {vr(V_KNM + 4 * rt, 4)}, v{V_SA}, s[16:19], s49 offen offset:{64 * rt} sc1"))
                    extra.append(lambda rt=rt: vq.issue("stat", f"buffer_load_dwordx4 {vr(V_KRS + 4 * rt, 4)}, v{V_SA}, s[16:19], s50 offen offset:{64 * rt} sc1"))
                else:
                    extra.append(lambda rt=rt: vq.issue("stat", f"buffer_load_dword v{V_NM + 2 * rt}, v{V_SA}, s[16:19], s49 offen offset:{64 * rt} sc1"))
                    extra.append(lambda rt=rt: vq.issue("stat", f"buffer_load_dword v{V_RS + 2 * rt}, v{V_SA}, s[16:19], s50 offen offset:{64 * rt} sc1"))
        fill = []
        for r in range(6):
            t = V_U + 2 * (r & 1)
            c = V_CS + 2 * (r >> 1)
            fill.append(f"v_lshlrev_b32 v{t}, 16, v{cur + 24 + r}")
            fill.append(f"v_and_b32 v{t + 1}, 0xffff0000, v{cur + 24 + r}")
            fill.append(f"v_add_f32 v{c}, v{c}, v{t}")
            fill.append(f"v_add_f32 v{c + 1}, v{c + 1}, v{t + 1}")
        if OPT["no_fill"]: fill = []
        rds = [] if last else all_reads(n + 1)
        nm = 4 * nt
        m = 0
        first_fill = True
        for ct in range(nt):
            for rt in range(4):
                acc = vr(V_ACC + 16 * ct + 4 * rt, 4)
                w, x = vr(cur + 4 * ct, 4), vr(xc + 4 * rt, 4)
                c = "0" if n == 0 else acc
                lq.wait(f"f{n}_{ct}", f"x{n}_{rt}")
                if not OPT["no_mfma"]:
                    if kind == "kv":
                        a(f"v_mfma_f32_16x16x32_bf16 {acc}, {x}, {w}, {c}")
                    else:
                        a(f"v_mfma_f32_16x16x32_bf16 {acc}, {w}, {x}, {c}")
                left = nm - m
                k = -(-len(rds) // max(1, left - 4)) if rds else 0
                for _ in range(min(k, len(rds))): rds.pop(0)()
                if m >= 2:
                    k = -(-len(fill) // left)
                    if k and first_fill:
                        lq.wait(f"c{n}"); first_fill = False
                    for l in fill[:k]: a(l)
                    fill = fill[k:]
                if m % 3 == 1 or len(extra) > left // 2:
                    if extra: extra.pop(0)()
                m += 1
        while extra: extra.pop(0)()
    tick(a, 5)
    for i in range(3):
        a(f"v_add_f32 v{V_CS + 2 * i}, v{V_CS + 2 * i}, v{V_CS + 2 * i + 1}")
    for i in range(3):
        a(f"v_mov_b32 v{V_CS + 2 * i + 1}, v{V_CS + 2 * i}")
    a(f"s_mul_i32 s32, s20, 192")
    a(f"s_add_u32 s32, s32, {XL_LDS}")
    for i in range(3):
        a(f"v_permlane32_swap_b32 v{V_CS + 2 * i}, v{V_CS + 2 * i + 1}")
    a(f"v_and_b32 v{V_U}, 15, v{V_LANE}")
    for i in range(3):
        a(f"v_add_f32 v{V_CS + 2 * i}, v{V_CS + 2 * i}, v{V_CS + 2 * i + 1}")
    for i in range(3):
        a(f"v_mov_b32 v{V_CS + 2 * i + 1}, v{V_CS + 2 * i}")
    a(f"v_lshl_add_u32 v{V_U+1}, v{V_U}, 2, s32")
    a("s_nop 0")
    for i in range(3):
        a(f"v_permlane16_swap_b32 v{V_CS + 2 * i}, v{V_CS + 2 * i + 1}")
    a("s_nop 0")
    for i in range(3):
        a(f"v_add_f32 v{V_CS + 2 * i}, v{V_CS + 2 * i}, v{V_CS + 2 * i + 1}")
    for i in range(3):
        a(f"ds_write_b32 v{V_U+1}, v{V_CS + 2 * i} offset:{64 * i}")
    return vq

def k1_spin(a, tag):
    a.label(f"L_k1_{tag}_spin")
    a("s_mov_b32 s51, 0")
    a.label(f"L_k1_{tag}_spin2")
    a("s_sleep 4")
    a(f"buffer_load_dword v{V_FL}, off, s[44:47], s48 sc1")
    a("s_add_u32 s51, s51, 1")
    a("s_cmp_ge_u32 s51, 200000")
    a("s_waitcnt vmcnt(0)")
    a(f"s_cbranch_scc1 L_k1_{tag}_go")
    a(f"v_cmp_ne_u32 vcc, 1, v{V_FL}")
    a(f"s_cbranch_vccnz L_k1_{tag}_spin2")
    a(f"s_branch L_k1_{tag}_go")

def k1_store_offsets(a, region, nt, mul, full_mul, half_t):
    a("s_lshl_b32 s32, s21, 2")
    a("s_add_u32 s32, s32, s31")
    a(f"s_mul_i32 s32, s32, {nt}")
    a(f"s_mul_i32 s33, s22, {mul}")
    a("s_add_u32 s32, s32, s33")
    a("s_lshl_b32 s32, s32, 12")
    a(f"s_add_u32 s32, s32, {region}")
    a(f"s_mul_i32 s33, s27, {full_mul * 4096}")
    a("s_add_u32 s52, s32, s33")
    a("s_lshl_b32 s33, s27, 3")
    a("s_add_u32 s53, s32, s33")
    a(f"s_add_u32 s53, s53, {half_t * 4096}")

def k1_epi_ffn(a, vq):
    CS = V_E0
    C1, V2 = V_E0 + 48, V_E0 + 56
    E = V_E0 + 64
    P = V_E0 + 76
    vq.wait("stat", lgkm=0)
    a("s_barrier")
    for p in range(3):
        for mat in range(2):
            for h in range(2):
                a(f"ds_read_b128 {vr(CS + 24 * h + 4 * (2 * p + mat), 4)}, v{V_CA + p} offset:{768 * mat + 64 * h}")
    for rt in range(4):
        a(f"v_mul_f32 v{V2 + 2 * rt}, v{V_RS + 2 * rt}, v{V_RS + 2 * rt}")
        a(f"v_mul_f32 v{C1 + 2 * rt}, {hex(LOG2E | 0x80000000)}, v{V_RS + 2 * rt}")
    for rt in range(4):
        a(f"v_rcp_f32 v{V2 + 2 * rt}, v{V2 + 2 * rt}")
    a("s_waitcnt lgkmcnt(0)")
    for r in range(0, 24, 2):
        a(pk("add", CS + r, CS + r, CS + 24 + r))
    for rt in range(4):
        G = lambda p, r: V_ACC + 32 * p + 4 * rt + r
        U = lambda p, r: V_ACC + 32 * p + 16 + 4 * rt + r
        nm, c1, v2 = V_NM + 2 * rt, C1 + 2 * rt, V2 + 2 * rt
        pr = [(p, r) for p in range(3) for r in (0, 2)]
        for p, r in pr:
            a(pk("fma", G(p, r), nm, CS + 8 * p + r, G(p, r), bc=(0,)))
        for p, r in pr:
            a(pk("mul", E + 4 * p + r, G(p, r), c1, bc=(1,)))
            a(pk("fma", U(p, r), nm, CS + 8 * p + 4 + r, U(p, r), bc=(0,)))
        for i in range(12):
            a(f"v_exp_f32 v{E+i}, v{E+i}")
        for p, r in pr:
            a(pk("mul", G(p, r), G(p, r), U(p, r)))
            a(pk("fma", E + 4 * p + r, E + 4 * p + r, v2, v2, bc=(1, 2)))
        for i in range(12):
            a(f"v_rcp_f32 v{E+i}, v{E+i}")
        a("s_nop 0")
        for p, r in pr:
            a(pk("mul", G(p, r), G(p, r), E + 4 * p + r))
        PP = P + 6 * (rt & 1) + (2 if rt & 1 else 0)
        for p, r in pr:
            a(f"v_cvt_pk_bf16_f32 v{PP + 2 * p + r // 2}, v{G(p, r)}, v{G(p, r) + 1}")
        a(f"buffer_store_dwordx4 {vr(PP, 4)}, v{V_L16}, s[16:19], s52 offen offset:{1024 * rt} {OPT['st_flag']}")
        a(f"buffer_store_dwordx2 {vr(PP + 4, 2)}, v{V_L16}, s[16:19], s53 offen offset:{1024 * rt} {OPT['st_flag']}")

def phi_n(a, G, E, rl, rs, bc):
    b1 = (1,) if bc else ()
    n = len(G)
    for i in range(n):
        a(pk("mul", E + 2 * i, G[i], rl(i), bc=b1))
    for i in range(n):
        a(f"v_max_f32 v{G[i]}, 0, v{G[i]}")
        a(f"v_max_f32 v{G[i] + 1}, 0, v{G[i] + 1}")
    for i in range(2 * n):
        a(f"v_exp_f32_e64 v{E+i}, v{E+i} clamp")
    a("s_nop 0")
    for i in range(n):
        a(pk("add", E + 2 * i, E + 2 * i, V_EPS, bc=(1,)))
    for i in range(n):
        a(pk("fma", G[i], G[i], rs(i), E + 2 * i, bc=b1))

def k1_epi_q(a, vq):
    CS = V_E0
    RL = V_E0 + 40
    E = V_E0 + 48
    P = V_E0 + 68
    vq.wait("stat", lgkm=0)
    a("s_barrier")
    for p in range(5):
        for h in range(2):
            av, off = (V_CA, 128 * p) if p < 4 else (V_CA + 1, 0)
            a(f"ds_read_b128 {vr(CS + 20 * h + 4 * p, 4)}, v{av} offset:{off + 64 * h}")
    for rt in range(4):
        a(f"v_mul_f32 v{RL + 2 * rt}, {hex(LOG2E)}, v{V_RS + 2 * rt}")
    a(f"v_mov_b32 v{V_EPS}, {hex(EPS6)}")
    a("s_add_u32 s54, s52, 4096")
    a("s_waitcnt lgkmcnt(0)")
    for r in range(0, 20, 2):
        a(pk("add", CS + r, CS + r, CS + 20 + r))
    for rt in range(4):
        G = [V_ACC + 16 * p + 4 * rt + r for p in range(5) for r in (0, 2)]
        for i, g in enumerate(G):
            a(pk("fma", g, V_NM + 2 * rt, CS + 2 * i, g, bc=(0,)))
        phi_n(a, G, E, lambda i: RL + 2 * rt, lambda i: V_RS + 2 * rt, True)
        PP = P + 10 * (rt & 1)
        for i, g in enumerate(G):
            a(f"v_cvt_pk_bf16_f32 v{PP + i}, v{g}, v{g + 1}")
        a(f"buffer_store_dwordx4 {vr(PP, 4)}, v{V_L16}, s[16:19], s52 offen offset:{1024 * rt} {OPT['st_flag']}")
        a(f"buffer_store_dwordx4 {vr(PP + 4, 4)}, v{V_L16}, s[16:19], s54 offen offset:{1024 * rt} {OPT['st_flag']}")
        a(f"buffer_store_dwordx2 {vr(PP + 8, 2)}, v{V_L16}, s[16:19], s53 offen offset:{1024 * rt} {OPT['st_flag']}")

KV_JOBS = [(0,0),(0,1),(1,0),(1,1),(1,2),(2,1),(2,2),(2,3),(3,2),(3,3),(3,4),(4,3),(4,4),(0,5),(1,5),(2,5),(3,5),(4,5)]

def k1_epi_kv(a, vq):
    CS = V_E0
    RL = V_E0 + 20
    E = V_E0 + 36
    P = V_E0 + 52
    XA = V_E0 + 68
    vq.wait("stat", lgkm=0)
    a("s_barrier")
    for t in range(5):
        for h in range(2):
            a(f"ds_read_b32 v{CS + 10 * h + 2 * t}, v{V_CA} offset:{128 * t + 64 * h}")
    a("s_mul_i32 s32, s27, 40960")
    a("s_lshl_b32 s33, s31, 11")
    a("s_add_u32 s32, s32, s33")
    a(f"v_add_u32 v{XA}, s32, v{V_L16}")
    a("s_lshl_b32 s33, s20, 10")
    a("s_add_u32 s33, s33, 81920")
    a(f"v_add_u32 v{XA+1}, s33, v{V_L16}")
    for r in range(4):
        a(f"v_mov_b32 v{XA + 2 + r}, {hex(ONES_BF)}")
    a(f"ds_write_b128 v{XA+1}, {vr(XA + 2, 4)}")
    a(f"v_mov_b32 v{V_EPS}, {hex(EPS6)}")
    for r in range(16):
        a(f"v_mul_f32 v{RL+r}, {hex(LOG2E)}, v{V_KRS+r}")
    a("s_waitcnt lgkmcnt(1)")
    for t in range(5):
        a(f"v_add_f32 v{CS + 2 * t}, v{CS + 2 * t}, v{CS + 10 + 2 * t}")
    a("s_cmp_eq_u32 s27, 0")
    a("s_cbranch_scc0 L_k1_kv_v")
    def tiles(isk):
        for t in range(5):
            G = [V_ACC + 16 * t + r for r in range(0, 16, 2)]
            for i, g in enumerate(G):
                a(pk("fma", g, V_KNM + 2 * i, CS + 2 * t, g, bc=(1,)))
            if isk:
                phi_n(a, G, E, lambda i: RL + 2 * i, lambda i: V_KRS + 2 * i, False)
            else:
                for i, g in enumerate(G):
                    a(pk("mul", g, g, V_KRS + 2 * i))
            PP = P + 8 * (t & 1)
            for i, g in enumerate(G):
                a(f"v_cvt_pk_bf16_f32 v{PP + i}, v{g}, v{g + 1}")
            a(f"ds_write_b128 v{XA}, {vr(PP, 4)} offset:{8192 * t}")
            a(f"ds_write_b128 v{XA}, {vr(PP + 4, 4)} offset:{8192 * t + 1024}")
    tiles(True)
    a("s_branch L_k1_kv_x")
    a.label("L_k1_kv_v")
    tiles(False)
    a.label("L_k1_kv_x")
    J, T = 28, 40
    def tab(idx):
        v = 0
        for i, jb in enumerate(KV_JOBS + [(0, 0)] * 6): v |= jb[idx] << (4 * (i % 8) + 32 * (i // 8))
        return [(v >> (32 * k)) & 0xffffffff for k in range(3)]
    ta, tb = tab(0), tab(1)
    a("s_lshl_b32 s32, s20, 2")
    a("s_lshl_b32 s38, s21, 5")
    a("s_lshl_b32 s39, s22, 2")
    a("s_add_u32 s38, s38, s39")
    a("s_mul_i32 s38, s38, 1920")
    a(f"s_add_u32 s38, s38, {KVP_OFF}")
    a(f"v_lshrrev_b32 v{T}, 4, v{V_LANE}")
    a(f"v_mov_b32 v{T+1}, {hex(OOB)}")
    for i in range(3):
        a(f"s_lshr_b32 s36, {hex(ta[i])}, s32")
        a("s_and_b32 s36, s36, 7")
        a(f"s_lshr_b32 s37, {hex(tb[i])}, s32")
        a("s_and_b32 s37, s37, 7")
        a("s_lshl_b32 s33, s36, 13")
        a(f"v_add_u32 v{J+i}, s33, v{V_L16}")
        a("s_add_u32 s33, s37, 5")
        a("s_lshl_b32 s33, s33, 13")
        a(f"v_add_u32 v{J+3+i}, s33, v{V_L16}")
        a("s_lshl_b32 s33, s36, 4")
        a(f"v_add_u32 v{T+2}, s33, v{V_U}")
        a(f"v_mul_u32_u24 v{T+3}, 3277, v{T+2}")
        a(f"v_lshrrev_b32 v{T+3}, 16, v{T+3}")
        a(f"v_mul_u32_u24 v{T+4}, 20, v{T+3}")
        a(f"v_sub_u32 v{T+4}, v{T+2}, v{T+4}")
        a(f"v_mul_u32_u24 v{T+5}, 1920, v{T+3}")
        a(f"v_lshl_add_u32 v{T+5}, v{T+4}, 4, v{T+5}")
        a("s_lshl_b32 s33, s37, 2")
        a(f"v_add_u32 v{T+6}, s33, v{T}")
        a(f"v_mul_u32_u24 v{T+7}, 52, v{T+6}")
        a(f"v_lshrrev_b32 v{T+7}, 8, v{T+7}")
        a(f"v_mul_u32_u24 v{T+8}, 5, v{T+7}")
        a(f"v_sub_u32 v{T+8}, v{T+6}, v{T+8}")
        a(f"v_cmp_eq_u32 vcc, v{T+7}, v{T+3}")
        a(f"v_cmp_eq_u32 s[40:41], 20, v{T+6}")
        a(f"v_mul_u32_u24 v{T+8}, 320, v{T+8}")
        a(f"v_add3_u32 v{T+8}, v{T+8}, v{T+5}, s38")
        a(f"v_cndmask_b32 v{J+6+i}, v{T+1}, v{T+8}, vcc")
        a(f"v_add_u32 v{T+5}, 1600, v{T+5}")
        a(f"v_add_u32 v{T+5}, s38, v{T+5}")
        a(f"v_cndmask_b32 v{J+6+i}, v{J+6+i}, v{T+5}, s[40:41]")
    a("s_waitcnt lgkmcnt(0)")
    a("s_barrier")
    KB, VB, AC = 60, 124, 192
    def job(i, two):
        lq = LQ(a)
        ids = [i, i + 1] if two else [i]
        for g in range(8):
            for k, ii in enumerate(ids):
                lq.issue(f"r{k}_{g}", f"ds_read_b128 {vr(KB + 32 * k + 4 * g, 4)}, v{J+ii} offset:{g * 1024}")
                lq.issue(f"r{k}_{g}", f"ds_read_b128 {vr(VB + 32 * k + 4 * g, 4)}, v{J+3+ii} offset:{g * 1024}")
        for g in range(8):
            for k, ii in enumerate(ids):
                lq.wait(f"r{k}_{g}")
                acc = vr(AC + 4 * ii, 4)
                a(f"v_mfma_f32_16x16x32_bf16 {acc}, {vr(VB + 32 * k + 4 * g, 4)}, {vr(KB + 32 * k + 4 * g, 4)}, {'0' if g == 0 else acc}")
    job(0, True)
    a("s_cmp_lt_u32 s20, 2")
    a("s_cbranch_scc0 L_k1_kv_st")
    job(2, False)
    a("s_nop 7")
    a(f"buffer_store_dwordx4 {vr(AC + 8, 4)}, v{J+8}, s[16:19], 0 offen")
    a.label("L_k1_kv_st")
    a("s_nop 7")
    for i in range(2):
        a(f"buffer_store_dwordx4 {vr(AC + 4 * i, 4)}, v{J+6+i}, s[16:19], 0 offen")

def quad_sum(a, v, t):
    a("s_nop 1")
    a(f"v_add_f32_dpp v{t}, v{v}, v{v} quad_perm:[1,0,3,2] row_mask:0xf bank_mask:0xf")
    a("s_nop 1")
    a(f"v_add_f32_dpp v{v}, v{t}, v{t} quad_perm:[2,3,0,1] row_mask:0xf bank_mask:0xf")

def rbf(a, v):
    a(f"v_cvt_pk_bf16_f32 v{v}, v{v}, v{v}")
    a(f"v_and_b32 v{v}, 0xffff0000, v{v}")

def k1_spare(a):
    T = 28
    a("s_lshl_b32 s32, s21, 1")
    a("s_add_u32 s32, s32, s22")
    a("s_lshl_b32 s52, s32, 3")
    a("s_add_u32 s52, s52, s20")
    a("s_mul_i32 s33, s52, 20480")
    a(f"v_lshrrev_b32 v{T}, 2, v{V_LANE}")
    a(f"v_mul_u32_u24 v{T+1}, 1280, v{T}")
    a(f"v_and_b32 v{T+3}, 3, v{V_LANE}")
    a(f"v_lshl_add_u32 v{T+1}, v{T+3}, 4, v{T+1}")
    a(f"v_lshrrev_b32 v{T+2}, 4, v{V_LANE}")
    XR = 160
    for i in range(20):
        a(f"buffer_load_dwordx4 {vr(XR + 4 * i, 4)}, v{T+1}, s[8:11], s33 offen offset:{64 * i}")
    a("s_load_dwordx2 s[40:41], s[0:1], 48")
    a("s_load_dwordx2 s[42:43], s[0:1], 16")
    for i in range(5):
        a(f"v_add_u32 v{T+4}, {64 * i}, v{V_LANE}")
        a(f"v_mul_u32_u24 v{T+5}, 52429, v{T+4}")
        a(f"v_lshrrev_b32 v{T+5}, 19, v{T+5}")
        a(f"v_mul_u32_u24 v{T+6}, 10, v{T+5}")
        a(f"v_sub_u32 v{T+6}, v{T+4}, v{T+6}")
        a(f"v_mul_u32_u24 v{T+7}, 1280, v{T+5}")
        a(f"v_cmp_gt_u32 vcc, 20, v{T+5}")
        a(f"v_lshl_add_u32 v{64+i}, v{T+6}, 4, v{T+7}")
        a(f"v_mov_b32 v{T+7}, {hex(OOB)}")
        a(f"v_cndmask_b32 v{72+i}, v{T+7}, v{64+i}, vcc")
    a("s_mul_i32 s53, s20, 15360")
    a(f"v_bfe_u32 v{T+5}, v{V_LANE}, 2, 2")
    a(f"v_and_b32 v{T+6}, 3, v{V_LANE}")
    a(f"v_lshlrev_b32 v{T+6}, 3, v{T+6}")
    a(f"v_add_u32 v{T+6}, s53, v{T+6}")
    a(f"v_lshl_add_u32 v{T+7}, v{T+2}, 2, v{T+5}")
    a(f"v_mul_u32_u24 v{T+7}, 160, v{T+7}")
    a(f"v_add_u32 v80, v{T+7}, v{T+6}")
    a(f"v_lshl_add_u32 v{T+7}, v{T+2}, 3, v{T+5}")
    a(f"v_mul_u32_u24 v{T+7}, 160, v{T+7}")
    a(f"v_add_u32 v81, v{T+7}, v{T+6}")
    a(f"v_lshlrev_b32 v82, 4, v{V_LANE}")
    a(f"v_add_u32 v83, 4096, v82")
    a("s_waitcnt lgkmcnt(0)")
    srd(a, 84, 40, 41, F * D * 2)
    srd(a, 88, 42, 43, D * D * 2)
    def item_setup(kind, add, slot):
        a(f"s_add_u32 s34, s52, {add}")
        a("s_lshr_b32 s35, s34, 3")
        a("s_and_b32 s36, s34, 7")
        a(f"s_mul_i32 s37, s35, {32 * 1280 if kind == 'w2' else 20 * 1280}")
        a("s_mul_i32 s38, s36, 160")
        a(f"s_add_u32 s{54 + 2 * slot}, s37, s38")
        if kind == "w2":
            a("s_mul_i32 s37, s36, 54")
            a("s_add_u32 s37, s37, s35")
            a("s_mul_i32 s37, s37, 5120")
            a(f"s_add_u32 s{55 + 2 * slot}, s37, {W2F_OFF}")
            if add == 384:
                a("s_cmp_lt_u32 s34, 432")
                a(f"s_cselect_b32 s{54 + 2 * slot}, s{54 + 2 * slot}, {OOB}")
                a(f"s_cselect_b32 s{55 + 2 * slot}, s{55 + 2 * slot}, {OOB}")
        else:
            a("s_mul_i32 s37, s34, 5120")
            a(f"s_add_u32 s{55 + 2 * slot}, s37, {WOF_OFF}")
    rounds = ([("w2", 0), ("w2", 128), ("w2", 256)], [("wo", 0), ("wo", 128), ("w2", 384)])
    def round_loads(rnd):
        for slot, (kind, add) in enumerate(rnd):
            item_setup(kind, add, slot)
            for i in range(5):
                a(f"s_add_u32 m0, s53, {slot * 5120 + i * 1024}")
                a("s_nop 0")
                if kind == "w2":
                    a(f"buffer_load_dwordx4 v{64+i}, s[84:87], s{54 + 2 * slot} offen lds")
                else:
                    a(f"buffer_load_dwordx4 v{72+i}, s[88:91], s{54 + 2 * slot} offen lds")
    def round_out(rnd):
        for slot, (kind, add) in enumerate(rnd):
            R = 96 + 20 * slot
            av = 80 if kind == "w2" else 81
            sec = 16 * 160 if kind == "w2" else 4 * 160
            for nb in range(5):
                a(f"ds_read_b64_tr_b16 {vr(R + 4 * nb, 2)}, v{av} offset:{slot * 5120 + 32 * nb}")
                a(f"ds_read_b64_tr_b16 {vr(R + 4 * nb + 2, 2)}, v{av} offset:{slot * 5120 + 32 * nb + sec}")
            a("s_waitcnt lgkmcnt(0)")
            for nb in range(5):
                if nb < 4:
                    a(f"buffer_store_dwordx4 {vr(R + 4 * nb, 4)}, v82, s[16:19], s{55 + 2 * slot} offen offset:{nb * 1024} {OPT['rl_flag']}")
                else:
                    a(f"buffer_store_dwordx4 {vr(R + 4 * nb, 4)}, v83, s[16:19], s{55 + 2 * slot} offen {OPT['rl_flag']}")
    SM, SQ, TT = T + 10, T + 12, T + 14
    a(f"s_mov_b32 s31, {hex(ONES_BF)}")
    for r in range(4):
        a(f"v_mov_b32 v{SM + r}, 0")
    for i in range(20):
        if i % 2 == 0:
            a(f"s_waitcnt vmcnt({18 - i})")
        for r in range(4):
            a(f"v_dot2_f32_bf16 v{SM + (r & 1)}, v{XR + 4 * i + r}, s31, v{SM + (r & 1)}")
            a(f"v_dot2_f32_bf16 v{SQ + (r & 1)}, v{XR + 4 * i + r}, v{XR + 4 * i + r}, v{SQ + (r & 1)}")
    a("s_nop 2")
    a(f"v_add_f32 v{SM}, v{SM}, v{SM+1}")
    a(f"v_add_f32 v{SQ}, v{SQ}, v{SQ+1}")
    quad_sum(a, SM, TT)
    quad_sum(a, SQ, TT)
    a(f"v_mul_f32 v{SM}, {hex(INV640 | 0x80000000)}, v{SM}")
    a(f"v_mul_f32 v{SQ}, {hex(INV640)}, v{SQ}")
    a(f"v_fma_f32 v{SQ}, -v{SM}, v{SM}, v{SQ}")
    a(f"v_max_f32 v{SQ}, 0, v{SQ}")
    rbf(a, SQ)
    a(f"v_add_f32 v{SQ}, {hex(EPS5)}, v{SQ}")
    rbf(a, SQ)
    a(f"v_sqrt_f32 v{SQ}, v{SQ}")
    rbf(a, SM)
    rbf(a, SQ)
    a(f"v_rcp_f32 v{SQ}, v{SQ}")
    a(f"v_lshlrev_b32 v{TT}, 2, v{T}")
    a(f"v_mov_b32 v{TT+1}, {hex(OOB)}")
    a(f"v_cmp_eq_u32 vcc, 0, v{T+3}")
    a("s_lshl_b32 s33, s52, 6")
    a(f"s_add_u32 s33, s33, {ST_OFF}")
    a(f"v_cndmask_b32 v{TT}, v{TT+1}, v{TT}, vcc")
    a("s_add_u32 s34, s33, 8192")
    a(f"buffer_store_dword v{SM}, v{TT}, s[16:19], s33 offen sc1")
    a(f"buffer_store_dword v{SQ}, v{TT}, s[16:19], s34 offen sc1")
    a("s_waitcnt vmcnt(0)")
    a("s_barrier")
    tick(a, 0)
    a("s_cmp_lg_u32 s20, 0")
    a("s_cbranch_scc1 L_k1_sp_nofl")
    a("s_lshl_b32 s33, s32, 2")
    a(f"v_mov_b32 v{TT}, 1")
    a(f"buffer_store_dword v{TT}, off, s[44:47], s33 sc1")
    a.label("L_k1_sp_nofl")
    a("s_cmp_lt_u32 s52, 8")
    a("s_cbranch_scc0 L_k1_sp_nozero")
    a("s_lshl_b32 s34, s52, 7")
    a(f"s_add_u32 s34, s34, {FL_OFF}")
    a(f"v_and_b32 v{TT}, 31, v{V_LANE}")
    a(f"v_lshlrev_b32 v{TT}, 2, v{TT}")
    a(f"v_mov_b32 v{TT+1}, 0")
    a(f"buffer_store_dword v{TT+1}, v{TT}, s[16:19], s34 offen")
    a.label("L_k1_sp_nozero")
    round_loads(rounds[0])
    a("s_waitcnt vmcnt(0)")
    round_out(rounds[0])
    round_loads(rounds[1])
    a("s_waitcnt vmcnt(0)")
    round_out(rounds[1])

def gen_k1(a):
    T = V_T
    a.raw(".globl k1_kernel\n.p2align 8\n.type k1_kernel,@function")
    a.label("k1_kernel")
    a("s_cmp_ge_u32 s2, 256")
    a("s_cbranch_scc1 L_k1_exit")
    a("s_load_dwordx2 s[4:5], s[0:1], 0")
    a("s_load_dwordx4 s[64:67], s[0:1], 64")
    a("s_load_dwordx2 s[36:37], s[0:1], 8")
    a("s_load_dwordx4 s[40:43], s[0:1], 32")
    a(f"v_and_b32 v{V_LANE}, 63, v0")
    a(f"v_lshrrev_b32 v{T}, 6, v0")
    a("s_and_b32 s32, s2, 7")
    a(f"v_readfirstlane_b32 s20, v{T}")
    a("s_lshr_b32 s33, s2, 3")
    if OPT["k1map"] == "4x8":
        a("s_and_b32 s21, s32, 1")
        a("s_lshl_b32 s21, s21, 2")
        a("s_and_b32 s34, s33, 3")
        a("s_add_u32 s21, s21, s34")
        a("s_lshr_b32 s35, s32, 1")
        a("s_lshl_b32 s35, s35, 3")
        a("s_lshr_b32 s34, s33, 2")
        a("s_add_u32 s35, s35, s34")
    elif OPT["k1map"] == "2x16":
        a("s_lshr_b32 s21, s32, 1")
        a("s_lshl_b32 s21, s21, 1")
        a("s_and_b32 s34, s33, 1")
        a("s_add_u32 s21, s21, s34")
        a("s_and_b32 s35, s32, 1")
        a("s_lshl_b32 s35, s35, 4")
        a("s_lshr_b32 s34, s33, 1")
        a("s_add_u32 s35, s35, s34")
    elif OPT["k1map"] == "8x4":
        a("s_and_b32 s21, s33, 7")
        a("s_lshl_b32 s35, s32, 2")
        a("s_lshr_b32 s34, s33, 3")
        a("s_add_u32 s35, s35, s34")
    elif OPT["k1map"] == "1x32":
        a("s_mov_b32 s21, s32")
        a("s_mov_b32 s35, s33")
    if OPT["rot"]:
        ra, rj = {1: (3, 1), 2: (5, 2), 3: (5, 0), 4: (0, 1), 5: (5, 5)}[OPT["rot"]]
        a(f"s_mul_i32 s25, s21, {ra}")
        a(f"s_mul_i32 s23, s35, {rj}")
        a("s_add_u32 s25, s25, s23")
        a("s_mul_i32 s23, s25, 6554")
        a("s_lshr_b32 s23, s23, 16")
        a("s_mul_i32 s23, s23, 10")
        a("s_sub_u32 s25, s25, s23")
    else:
        a("s_mov_b32 s25, 0")
    a("s_and_b32 s31, s20, 3")
    a("s_lshr_b32 s27, s20, 2")
    a("s_lshl_b32 s32, s21, 3")
    a("s_add_u32 s32, s32, s20")
    a("s_mul_i32 s32, s32, 40960")
    a("s_lshl_b32 s26, s20, 11")
    a(f"s_add_u32 s26, s26, {XL_LDS}")
    a(f"v_lshrrev_b32 v{T}, 2, v{V_LANE}")
    a(f"v_mul_u32_u24 v{T}, 1280, v{T}")
    a(f"v_lshrrev_b32 v{T+1}, 5, v{V_LANE}")
    a(f"v_mul_u32_u24 v{T+1}, 3, v{T+1}")
    a(f"v_and_b32 v{T+2}, 3, v{V_LANE}")
    a(f"v_xor_b32 v{T+1}, v{T+1}, v{T+2}")
    a(f"v_lshl_add_u32 v{T}, v{T+1}, 4, v{T}")
    a(f"v_add_u32 v{V_XD}, s32, v{T}")
    a(f"v_add_u32 v{V_XD+1}, 20480, v{V_XD}")
    a(f"v_lshlrev_b32 v{V_L16}, 4, v{V_LANE}")
    a("s_waitcnt lgkmcnt(0)")
    srd(a, 8, 4, 5, S * D * 2)
    srd(a, 16, 66, 67, WS_USED)
    srd(a, 44, 64, 65, 256)
    if OPT["stamp"]:
        srd(a, 92, 66, 67, WS_USED + 16 * 8192)
        stamp(a, 0, T + 8, T + 9)
    a("s_cmp_lt_u32 s35, 18")
    a("s_cbranch_scc1 L_k1_ffn")
    a("s_cmp_lt_u32 s35, 26")
    a("s_cbranch_scc1 L_k1_kv")
    a("s_cmp_lt_u32 s35, 30")
    a("s_cbranch_scc1 L_k1_q")
    a("s_sub_u32 s22, s35, 30")
    k1_spare(a)
    stamp(a, 1, V_U, V_U + 1)
    a("s_branch L_k1_end")

    def late_common(pitch):
        a(f"v_lshrrev_b32 v{T+3}, 4, v{V_LANE}")
        a(f"v_bfe_u32 v{T+4}, v{V_LANE}, 2, 2")
        a(f"v_lshl_add_u32 v{T+4}, v{T+3}, 3, v{T+4}")
        a(f"v_mul_u32_u24 v{T+4}, {pitch}, v{T+4}")
        a(f"v_and_b32 v{T+5}, 1, v{T+3}")
        a(f"v_lshlrev_b32 v{T+5}, 5, v{T+5}")
        a(f"v_bfe_u32 v{T+6}, v{V_LANE}, 3, 1")
        a(f"v_mul_u32_u24 v{T+6}, 3, v{T+6}")
        a(f"v_xor_b32 v{T+6}, v{T+6}, v{T+3}")
        a(f"v_and_b32 v{T+7}, 15, v{V_LANE}")
        a(f"v_lshlrev_b32 v{T+8}, 6, v{T+7}")
        a(f"v_lshl_add_u32 v{T+8}, v{T+6}, 4, v{T+8}")
        a("s_lshl_b32 s32, s31, 12")
        a(f"s_add_u32 s32, s32, {XL_LDS}")
        a(f"v_add_u32 v{V_XR}, s32, v{T+8}")
        a("s_lshl_b32 s32, s21, 2")
        a("s_add_u32 s32, s32, s31")
        a("s_lshl_b32 s49, s32, 8")
        a(f"s_add_u32 s49, s49, {ST_OFF}")
        a("s_add_u32 s50, s49, 8192")
        a("s_lshr_b32 s48, s32, 1")
        a("s_lshl_b32 s48, s48, 2")
    def rot_addr(dst, scol, width, extra=None):
        a(f"v_add_u32 v{T+9}, {scol}, v{T+5}")
        a(f"v_subrev_u32 v{T+10}, {width}, v{T+9}")
        a(f"v_min_u32 v{T+9}, v{T+9}, v{T+10}")
        a(f"v_lshl_add_u32 v{T+9}, v{T+2}, 3, v{T+9}")
        if extra:
            a(f"v_add3_u32 v{dst}, v{T+9}, v{T+4}, {extra}")
        else:
            a(f"v_add_u32 v{dst}, v{T+9}, v{T+4}")

    a.label("L_k1_ffn")
    a("s_mov_b32 s22, s35")
    a("s_cmp_lt_u32 s20, 4")
    a("s_cselect_b32 s12, s40, s42")
    a("s_cselect_b32 s13, s41, s43")
    a("s_cselect_b32 s28, 0, 12288")
    a("s_and_b32 s13, s13, 0xffff")
    a(f"s_mov_b32 s14, {D * F * 2}")
    a("s_mov_b32 s15, 0x20000")
    a("s_mul_i32 s33, s31, 3072")
    a("s_add_u32 s28, s28, s33")
    a("s_add_u32 s29, s28, 1024")
    a("s_add_u32 s30, s28, 2048")
    a("s_mul_i32 s33, s31, 192")
    a("s_mul_i32 s34, s22, 192")
    for i in range(3):
        a(f"s_add_u32 s38, s33, {64 * i}")
        a(f"v_add_u32 v{T}, s38, v{V_LANE}")
        a(f"v_mul_u32_u24 v{T+1}, 43691, v{T}")
        a(f"v_lshrrev_b32 v{T+1}, 19, v{T+1}")
        a(f"v_mul_u32_u24 v{T+3}, 12, v{T+1}")
        a(f"v_sub_u32 v{T+3}, v{T}, v{T+3}")
        a(f"v_bfe_u32 v{T+4}, v{T+1}, 3, 1")
        a(f"v_mul_u32_u24 v{T+4}, 10, v{T+4}")
        a(f"v_add_u32 v{T+3}, v{T+3}, v{T+4}")
        a(f"v_subrev_u32 v{T+4}, 12, v{T+3}")
        a(f"v_min_u32 v{T+3}, v{T+3}, v{T+4}")
        a(f"v_mul_u32_u24 v{T+1}, 3456, v{T+1}")
        a(f"v_lshl_add_u32 v{T+1}, v{T+3}, 4, v{T+1}")
        a(f"v_add_u32 v{V_D0+i}, s34, v{T+1}")
    def late_ffn():
        late_common(192)
        for p in range(3):
            a("s_cmp_eq_u32 s27, 0")
            a(f"s_cselect_b32 s32, {32 * p}, {32 * [4, 5, 3][p]}")
            rot_addr(V_R0 + p, "s32", 192)
            a("s_lshl_b32 s32, s32, 2")
            a(f"s_add_u32 s32, s32, {XL_LDS}")
            a(f"v_lshl_add_u32 v{V_CA + p}, v{T+3}, 4, s32")
        for i in range(3):
            a("s_mul_i32 s32, s20, 3")
            a(f"s_add_u32 s32, s32, {i}")
            a("s_and_b32 s33, s32, 1")
            a(f"s_mul_i32 s33, s33, {4 * 192}")
            a("s_lshr_b32 s32, s32, 1")
            a("s_cmp_ge_u32 s32, 6")
            a("s_cselect_b32 s34, 12288, 0")
            a("s_cselect_b32 s38, 6, 0")
            a("s_add_u32 s33, s33, s34")
            a("s_sub_u32 s32, s32, s38")
            a("s_lshl_b32 s32, s32, 5")
            rot_addr(V_RC + i, "s32", 192, "s33")
        a(f"v_lshlrev_b32 v{V_SA}, 2, v{T+7}")
        k1_store_offsets(a, HB_OFF, 54, 3, 2, 1)
    vq = k1_mainloop(a, "ffn", "ffn", late_ffn)
    stamp(a, 1, V_U + 2, V_U + 3)
    k1_epi_ffn(a, vq)
    a("s_branch L_k1_end")
    k1_spin(a, "ffn")

    def qkv_common(kind):
        srd(a, 12, 36, 37, D * 1920 * 2)
        a("s_lshl_b32 s28, s20, 10")
        a("s_add_u32 s29, s28, 8192")
        a("s_add_u32 s30, s28, 16384")
        a("s_lshl_b32 s33, s20, 6")
        if kind == "q":
            a("s_mul_i32 s34, s22, 320")
        else:
            a("s_mul_i32 s34, s22, 160")
            a("s_add_u32 s34, s34, 1280")
        for i in range(3):
            a(f"s_add_u32 s38, s33, {512 * i}")
            a(f"v_add_u32 v{T}, s38, v{V_LANE}")
            a(f"v_mul_u32_u24 v{T+1}, 52429, v{T}")
            a(f"v_lshrrev_b32 v{T+1}, 20, v{T+1}")
            a(f"v_mul_u32_u24 v{T+3}, 20, v{T+1}")
            a(f"v_sub_u32 v{T+3}, v{T}, v{T+3}")
            if kind == "kv":
                a(f"v_bfe_u32 v{T+4}, v{T+1}, 3, 1")
                a(f"v_mul_u32_u24 v{T+4}, 18, v{T+4}")
                a(f"v_add_u32 v{T+3}, v{T+3}, v{T+4}")
                a(f"v_subrev_u32 v{T+4}, 20, v{T+3}")
                a(f"v_min_u32 v{T+3}, v{T+3}, v{T+4}")
            a(f"v_mul_u32_u24 v{T+4}, 3840, v{T+1}")
            a(f"v_lshl_add_u32 v{T+4}, v{T+3}, 4, v{T+4}")
            if kind == "kv":
                a(f"v_cmp_lt_u32 vcc, 9, v{T+3}")
                a(f"v_add_u32 v{T+6}, {1280 - 160}, v{T+4}")
                a("s_nop 0")
                a(f"v_cndmask_b32 v{T+4}, v{T+4}, v{T+6}, vcc")
            a(f"v_add_u32 v{V_D0+i}, s34, v{T+4}")
            if i == 2:
                a(f"v_cmp_lt_u32 vcc, 63, v{T+1}")
                a(f"v_mov_b32 v{T+6}, {hex(OOB)}")
                a("s_nop 0")
                a(f"v_cndmask_b32 v{V_D0+i}, v{V_D0+i}, v{T+6}, vcc")
    def cs_half(i):
        a("s_mul_i32 s32, s20, 3")
        a(f"s_add_u32 s32, s32, {i}")
        a("s_and_b32 s33, s32, 1")
        a(f"s_mul_i32 s33, s33, {4 * 320}")
        a("s_lshr_b32 s32, s32, 1")
        a("s_min_u32 s32, s32, 9")

    a.label("L_k1_kv")
    a("s_sub_u32 s22, s35, 18")
    qkv_common("kv")
    def late_kv():
        late_common(320)
        a("s_mul_i32 s32, s27, 160")
        rot_addr(V_R0, "s32", 320)
        a("s_add_u32 s32, s32, 128")
        rot_addr(V_R0 + 1, "s32", 320)
        for i in range(3):
            cs_half(i)
            a("s_lshl_b32 s32, s32, 5")
            rot_addr(V_RC + i, "s32", 320, "s33")
        a("s_mul_i32 s32, s27, 640")
        a(f"s_add_u32 s32, s32, {XL_LDS}")
        a(f"v_lshl_add_u32 v{V_CA}, v{T+7}, 2, s32")
        a(f"v_lshlrev_b32 v{V_SA}, 4, v{T+3}")
    vq = k1_mainloop(a, "kv", "kv", late_kv)
    stamp(a, 1, V_U + 2, V_U + 3)
    k1_epi_kv(a, vq)
    a("s_branch L_k1_end")
    k1_spin(a, "kv")

    a.label("L_k1_q")
    a("s_sub_u32 s22, s35, 26")
    qkv_common("q")
    def late_q():
        late_common(320)
        a(f"v_mul_u32_u24 v{T+9}, 80, v{T+2}")
        a(f"v_add_u32 v{T+9}, v{T+9}, v{T+4}")
        a("s_mul_i32 s32, s27, 6")
        a("s_add_u32 s33, s27, 4")
        for k, sr in enumerate(("s32", "s33")):
            a(f"s_lshl_b32 s34, {sr}, 3")
            a(f"v_add_u32 v{V_R0 + k}, s34, v{T+9}")
            a(f"s_lshl_b32 s34, {sr}, 7")
            a(f"s_add_u32 s34, s34, {XL_LDS}")
            a(f"v_lshl_add_u32 v{V_CA + k}, v{T+3}, 4, s34")
        for i in range(3):
            cs_half(i)
            a("s_lshl_b32 s32, s32, 3")
            a("s_add_u32 s32, s32, s33")
            a(f"v_add_u32 v{V_RC + i}, s32, v{T+9}")
        a(f"v_lshlrev_b32 v{V_SA}, 2, v{T+7}")
        k1_store_offsets(a, PQ_OFF, 20, 5, 3, 2)
    vq = k1_mainloop(a, "q", "q", late_q)
    stamp(a, 1, V_U + 2, V_U + 3)
    k1_epi_q(a, vq)
    a.label("L_k1_end")
    if OPT["stamp"]:
        tick(a, 6)
        a("s_waitcnt vmcnt(0)")
        stamp(a, 2, V_U + 2, V_U + 3)
        tick_dump(a, 3, 0, V_U + 2, V_U + 3, "k1")
    a.label("L_k1_exit")
    a("s_endpgm")
    k1_spin(a, "q")

K2_LDS = 163840
W_LANE, W_L16, W_L16B, W_T = 1, 2, 3, 4
W_PRE = 23
W_X = 24
H_ACC = 176
H_RING = 32
S_PQ, S_M, S_Z, S_ACC = 32, 112, 212, 232
FLAG_LDS = 163840 - 16

def k2_producer(a):
    T = W_T
    PB, PW = 112, 180
    SCR = 81920
    a(f"v_cmp_gt_u32 vcc, 56, v{W_LANE}")
    a(f"v_add_u32 v{T+3}, 1024, v{W_L16}")
    a(f"v_mov_b32 v{T+4}, {hex(OOB)}")
    a("s_mul_i32 s32, s21, 1920")
    a(f"s_add_u32 s32, s32, {KVP_OFF}")
    a(f"v_cndmask_b32 v{T+3}, v{T+4}, v{T+3}, vcc")
    for p in range(8):
        a(f"buffer_load_dwordx4 {vr(PB + 8 * p, 4)}, v{W_L16}, s[16:19], s32 offen")
        a(f"buffer_load_dwordx4 {vr(PB + 8 * p + 4, 4)}, v{T+3}, s[16:19], s32 offen")
        if p < 7:
            a(f"s_add_u32 s32, s32, {32 * 1920}")
    a("s_lshl_b32 s32, s21, 3")
    a("s_add_u32 s32, s32, s22")
    a("s_mul_i32 s32, s32, 5120")
    a(f"s_add_u32 s32, s32, {WOF_OFF}")
    for nb in range(5):
        if nb < 4:
            a(f"buffer_load_dwordx4 {vr(PW + 4 * nb, 4)}, v{W_L16}, s[16:19], s32 offen offset:{nb * 1024}")
        else:
            a(f"buffer_load_dwordx4 {vr(PW + 4 * nb, 4)}, v{W_L16B}, s[16:19], s32 offen")

def k2_producer2(a):
    T = W_T
    PB, PW = 112, 180
    SCR = 81920
    a(f"v_and_b32 v{T}, 15, v{W_LANE}")
    a(f"v_lshrrev_b32 v{T+1}, 4, v{W_LANE}")
    a(f"v_cmp_eq_u32 vcc, 2, v{T+1}")
    a(f"v_mov_b32 v{PW+20}, 0")
    a(f"v_mov_b32 v{PW+21}, 0")
    a(f"v_mov_b32 v{PW+23}, 0")
    a(f"v_mov_b32 v{T+5}, 0x3f80")
    a(f"v_cndmask_b32 v{PW+22}, 0, v{T+5}, vcc")
    a("s_lshr_b32 s33, s21, 3")
    a("s_bfe_u32 s34, s21, 0x20001")
    a("s_and_b32 s35, s21, 1")
    a("s_mul_i32 s35, s35, 20")
    a("s_mul_i32 s38, s22, 20")
    a("s_mul_i32 s39, s33, 5")
    a("s_add_u32 s38, s38, s39")
    a("s_mul_i32 s40, s38, 5120")
    a("s_lshl_b32 s41, s34, 8")
    a("s_add_u32 s40, s40, s41")
    a(f"s_add_u32 s40, s40, {MF_OFF}")
    a("s_lshl_b32 s42, s38, 6")
    a("s_lshl_b32 s41, s34, 4")
    a("s_add_u32 s42, s42, s41")
    a(f"s_add_u32 s42, s42, {ZF_OFF}")
    for tl in range(2):
        a(f"v_lshlrev_b32 v{T+6}, 2, v{T+1}")
        a(f"v_add_u32 v{T+6}, s35, v{T+6}")
        if tl:
            a(f"v_add_u32 v{T+6}, 16, v{T+6}")
        a(f"v_lshrrev_b32 v{T+7}, 3, v{T+6}")
        a(f"v_bfe_u32 v{T+8}, v{T+6}, 2, 1")
        a(f"v_lshlrev_b32 v{T+8}, 3, v{T+8}")
        a(f"v_mul_u32_u24 v{T+9}, 5120, v{T+7}")
        a(f"v_lshl_add_u32 v{T+9}, v{T}, 4, v{T+9}")
        a(f"v_cmp_eq_u32 vcc, 0, v{T}")
        a(f"v_add3_u32 v{T+10+tl}, v{T+9}, v{T+8}, s40")
        a(f"v_lshl_add_u32 v{T+9}, v{T+7}, 6, v{T+8}")
        a(f"v_add_u32 v{T+12+tl}, s42, v{T+9}")
        a(f"v_cndmask_b32 v{T+12+tl}, v{T+4}, v{T+12+tl}, vcc")
        if tl:
            a(f"v_cmp_eq_u32 vcc, 0, v{T+1}")
            a("s_nop 1")
            a(f"v_cndmask_b32 v{T+10+tl}, v{T+4}, v{T+10+tl}, vcc")
            a(f"v_cndmask_b32 v{T+12+tl}, v{T+4}, v{T+12+tl}, vcc")
    a(f"v_lshlrev_b32 v{T+14}, 3, v{W_LANE}")
    a(f"v_add_u32 v{T+14}, {SCR}, v{T+14}")
    a(f"v_mul_u32_u24 v{T+15}, 40, v{T+1}")
    a(f"v_add_u32 v{T+15}, v{T+15}, v{T}")
    a(f"v_add_u32 v{T+16}, 16, v{T+15}")
    a(f"v_mov_b32 v{T+17}, 120")
    a(f"v_cmp_gt_u32 vcc, 3, v{T+1}")
    a("s_lshl_b32 s32, s22, 7")
    a("s_lshl_b32 s33, s21, 2")
    a(f"v_cndmask_b32 v{T+15}, v{T+17}, v{T+15}, vcc")
    a(f"v_cndmask_b32 v{T+16}, v{T+17}, v{T+16}, vcc")
    a(f"v_cndmask_b32 v{T+18}, 0, 20, vcc")
    a(f"v_cmp_gt_u32 vcc, 4, v{T}")
    a("s_add_u32 s32, s32, s33")
    a(f"s_add_u32 s32, s32, {FL_OFF}")
    a(f"v_cndmask_b32 v{T+16}, v{T+17}, v{T+16}, vcc")
    a(f"v_cndmask_b32 v{T+17}, 0, v{T+18}, vcc")
    a(f"v_add_u32 v{T+18}, v{T+18}, v{T+15}")
    a(f"v_add_u32 v{T+17}, v{T+17}, v{T+16}")
    for r in (15, 16, 17, 18):
        a(f"v_lshlrev_b32 v{T+r}, 3, v{T+r}")
        a(f"v_add_u32 v{T+r}, {SCR}, v{T+r}")
    for p in range(1, 8):
        a(f"s_waitcnt vmcnt({5 + 2 * (7 - p) + NPRE_S})")
        for r in range(0, 8, 2):
            a(pk("add", PB + r, PB + r, PB + 8 * p + r))
    for r in range(4):
        a(f"v_cvt_pk_bf16_f32 v{PB+8+r}, v{PB+2*r}, v{PB+2*r+1}")
    a(f"ds_write_b64 v{T+14}, {vr(PB + 8, 2)}")
    a(f"ds_write_b64 v{T+14}, {vr(PB + 10, 2)} offset:512")
    a("s_waitcnt lgkmcnt(0)")
    AF = PB + 16
    a(f"ds_read_b64 {vr(AF, 2)}, v{T+15}")
    a(f"ds_read_b64 {vr(AF + 2, 2)}, v{T+18}")
    a(f"ds_read_b64 {vr(AF + 4, 2)}, v{T+16}")
    a(f"ds_read_b64 {vr(AF + 6, 2)}, v{T+17}")
    a(f"s_waitcnt vmcnt({NPRE_S}) lgkmcnt(0)")
    DD = 204 - 48 + 48
    for nb in range(6):
        for tl in range(2):
            a(f"v_mfma_f32_16x16x32_bf16 {vr(DD + 8 * nb + 4 * tl, 4)}, {vr(AF + 4 * tl, 4)}, {vr(PW + 4 * nb, 4)}, 0")
    a("s_mov_b32 s43, 4096")
    a(f"v_mov_b32 v{T+5}, 1")
    for nb in range(6):
        for tl in range(2):
            d = DD + 8 * nb + 4 * tl
            a(f"v_cvt_pk_bf16_f32 v{d}, v{d}, v{d+1}")
            a(f"v_cvt_pk_bf16_f32 v{d+1}, v{d+2}, v{d+3}")
            if nb < 4:
                a(f"buffer_store_dwordx2 {vr(d, 2)}, v{T+10+tl}, s[16:19], 0 offen offset:{nb * 1024} sc1")
            elif nb == 4:
                a(f"buffer_store_dwordx2 {vr(d, 2)}, v{T+10+tl}, s[16:19], s43 offen sc1")
            else:
                a(f"buffer_store_dwordx2 {vr(d, 2)}, v{T+12+tl}, s[16:19], 0 offen sc1")
    if OPT["k2_hold"] and OPT["k2_early"]: a("s_barrier")
    tick(a, 7)
    a("s_waitcnt vmcnt(0)")
    a(f"buffer_store_dword v{T+5}, off, s[16:19], s32 sc1")

NPRE_S = 20

def gen_k2(a):
    T = W_T
    a.raw(".globl k2_kernel\n.p2align 8\n.type k2_kernel,@function")
    a.label("k2_kernel")
    a("s_cmp_ge_u32 s2, 256")
    a("s_cbranch_scc1 L_k2_end")
    a("s_load_dwordx2 s[4:5], s[0:1], 0")
    a("s_load_dwordx2 s[6:7], s[0:1], 72")
    a("s_load_dwordx2 s[36:37], s[0:1], 56")
    a(f"v_and_b32 v{W_LANE}, 63, v0")
    a(f"v_lshrrev_b32 v{T}, 6, v0")
    a(f"v_lshlrev_b32 v{W_L16}, 4, v{W_LANE}")
    a(f"v_readfirstlane_b32 s20, v{T}")
    a(f"v_add_u32 v{W_L16B}, 4096, v{W_L16}")
    if OPT["prefetch_code"]:
        a("s_getpc_b64 s[62:63]")
        a(f"v_lshlrev_b32 v{T+1}, 7, v0")
        a(f"v_min_u32 v{T+1}, L_code_end-k2_kernel-256, v{T+1}")
        a(f"global_load_dword v{W_PRE}, v{T+1}, s[62:63]")
    a("s_and_b32 s32, s2, 7")
    a("s_lshr_b32 s33, s2, 3")
    if OPT["k2map"] == "8x4":
        a("s_lshr_b32 s21, s32, 1")
        a("s_lshl_b32 s21, s21, 3")
        a("s_and_b32 s34, s33, 7")
        a("s_add_u32 s21, s21, s34")
        a("s_and_b32 s22, s32, 1")
        a("s_lshl_b32 s22, s22, 2")
        a("s_lshr_b32 s34, s33, 3")
        a("s_add_u32 s22, s22, s34")
    elif OPT["k2map"] == "4x8":
        a("s_lshl_b32 s21, s32, 2")
        a("s_and_b32 s34, s33, 3")
        a("s_add_u32 s21, s21, s34")
        a("s_lshr_b32 s22, s33, 2")
    a("s_and_b32 s27, s20, 3")
    a("s_waitcnt lgkmcnt(0)")
    srd(a, 16, 6, 7, WS_USED)
    if OPT["stamp"]:
        srd(a, 92, 6, 7, WS_USED + 16 * 8192)
        stamp(a, 4, T + 16, T + 17)
    def setup(ntile, tile0):
        srd(a, 8, 4, 5, S * D * 2)
        srd(a, 12, 36, 37, S * D * 2)
        a("s_lshl_b32 s33, s21, 2")
        a("s_add_u32 s33, s33, s27")
        a("s_mul_i32 s33, s33, 20480")
        a("s_mul_i32 s34, s22, 160")
        a("s_add_u32 s33, s33, s34")
        a(f"s_add_u32 s33, s33, {32 * tile0}")
        a(f"v_lshrrev_b32 v{T+3}, 2, v{W_LANE}")
        a(f"v_and_b32 v{T+4}, 3, v{W_LANE}")
        a(f"v_mul_u32_u24 v{T}, 1280, v{T+3}")
        a(f"v_lshl_add_u32 v{T}, v{T+4}, 3, v{T}")
        a(f"v_add_u32 v{T}, s33, v{T}")
        a(f"v_bfe_u32 v{T+5}, v{T+3}, 1, 2")
        a(f"v_xor_b32 v{T+5}, v{T+5}, v{T+4}")
        a(f"v_lshl_add_u32 v{T+5}, v{T+3}, 2, v{T+5}")
        a("s_mul_i32 s33, s27, 5120")
        a(f"s_add_u32 s33, s33, {1024 * tile0}")
        a(f"v_lshl_add_u32 v{T+2}, v{T+5}, 4, s33")
        a(f"v_and_b32 v{T+3}, 15, v{W_LANE}")
        a(f"v_lshrrev_b32 v{T+4}, 4, v{W_LANE}")
        a(f"v_bfe_u32 v{T+5}, v{T+3}, 1, 2")
        a(f"v_xor_b32 v{T+5}, v{T+5}, v{T+4}")
        a(f"v_lshl_add_u32 v{T+5}, v{T+3}, 2, v{T+5}")
        a("s_mul_i32 s33, s20, 20480")
        a(f"v_lshl_add_u32 v{T+1}, v{T+5}, 4, s33")
    def final(ntile, vq, tag):
        N = 32
        RD = 64
        XE = 140
        nv = 4 * ntile
        vq.wait("x")
        for i in range(2 * ntile):
            a(f"v_lshlrev_b32 v{XE + 2 * i}, 16, v{W_X + i}")
            a(f"v_and_b32 v{XE + 2 * i + 1}, 0xffff0000, v{W_X + i}")
        a(f"v_mov_b32 v{T+10}, {hex(LOG2E | 0x80000000)}")
        a(f"v_mov_b32 v{T+12}, 1.0")
        a(f"v_add_u32 v{T+3}, 61440, v{T+2}")
        a(f"v_add_u32 v{T+4}, 122880, v{T+2}")
        a("s_waitcnt lgkmcnt(0)")
        a("s_barrier")
        tick(a, 5)
        lq = LQ(a)
        def dst(src, t):
            if src == 0: return N + 4 * t
            if src == 4: return N + nv + 4 * t
            return RD + (src - 1 - (src > 4)) * nv + 4 * t
        for src in range(8):
            av, off = [(T + 2, 0), (T + 3, 61440), (T + 4, 122880)][src // 3]
            for t in range(ntile):
                lq.issue(f"p{src}", f"ds_read_b128 {vr(dst(src, t), 4)}, v{av} offset:{src * 20480 - off + t * 1024}")
        E = 176
        for src in (1, 2, 3):
            lq.wait("p0", f"p{src}")
            for i in range(0, nv, 2):
                a(pk("add", N + i, N + i, dst(src, 0) + i))
        for i in range(0, nv, 2):
            a(pk("mul", E + i, N + i, T + 10, bc=(1,)))
        for i in range(nv):
            a(f"v_exp_f32 v{E + i}, v{E + i}")
        for src in (5, 6, 7):
            lq.wait("p4", f"p{src}")
            for i in range(0, nv, 2):
                a(pk("add", N + nv + i, N + nv + i, dst(src, 0) + i))
        for i in range(0, nv, 2):
            a(pk("add", E + i, E + i, T + 12, bc=(1,)))
            a(pk("mul", N + i, N + i, N + nv + i))
        for i in range(nv):
            a(f"v_rcp_f32 v{E + i}, v{E + i}")
        a("s_nop 0")
        for i in range(0, nv, 2):
            a(pk("fma", XE + i, N + i, E + i, XE + i))
        for t in range(ntile):
            a(f"v_cvt_pk_bf16_f32 v{N + 2 * t}, v{XE + 4 * t}, v{XE + 4 * t + 1}")
            a(f"v_cvt_pk_bf16_f32 v{N + 2 * t + 1}, v{XE + 4 * t + 2}, v{XE + 4 * t + 3}")
            a(f"buffer_store_dwordx2 {vr(N + 2 * t, 2)}, v{T}, s[12:15], 0 offen offset:{t * 32}")
        if OPT["stamp"]:
            tick(a, 6)
            a("s_waitcnt vmcnt(0)")
            stamp(a, 5, T + 16, T + 17)
            tick_dump(a, 6 if tag == "h" else 7, 0 if tag == "h" else 4, T + 16, T + 17, "k2" + tag)
            if OPT["dbgout"] and tag == "h":
                a(f"s_cmp_lg_u32 s2, {OPT['dbgout'] - 1}")
                a("s_cbranch_scc1 L_k2_nodbg")
                a("s_cmp_lg_u32 s20, 0")
                a("s_cbranch_scc1 L_k2_nodbg")
                a("s_load_dwordx2 s[64:65], s[0:1], 64")
                a("s_waitcnt vmcnt(0) lgkmcnt(0)")
                srd(a, 44, 64, 65, 256)
                a(f"v_lshlrev_b32 v{T+16}, 13, v{W_LANE}")
                a("s_lshl_b32 s98, s2, 5")
                a(f"s_add_u32 s98, s98, {WS_USED}")
                a(f"buffer_load_dword v{T+17}, v{T+16}, s[92:95], s98 offen sc1")
                a(f"v_lshlrev_b32 v{T+16}, 2, v{W_LANE}")
                a("s_waitcnt vmcnt(0)")
                a(f"buffer_store_dword v{T+17}, v{T+16}, s[44:47], 0 offen")
                a("s_waitcnt vmcnt(0)")
                a.label("L_k2_nodbg")
    def xloads(vq, ntile):
        for t in range(ntile):
            vq.issue("x", f"buffer_load_dwordx2 {vr(W_X + 2 * t, 2)}, v{T}, s[8:11], 0 offen offset:{t * 32}")

    a("s_cmp_ge_u32 s20, 4")
    a("s_cbranch_scc1 L_k2_s")
    vq = VQ(a)
    RH, NK = OPT["k2_ring"], 14
    a("s_mul_i32 s32, s27, 14")
    a("s_cmp_eq_u32 s27, 3")
    a("s_cselect_b32 s32, 41, s32")
    a("s_mul_i32 s23, s21, 54")
    a("s_add_u32 s23, s23, s32")
    a("s_lshl_b32 s23, s23, 12")
    a("s_mul_i32 s24, s22, 54")
    a("s_add_u32 s24, s24, s32")
    a("s_mul_i32 s24, s24, 5120")
    a(f"s_add_u32 s24, s24, {W2F_OFF}")
    def ring_loads(k):
        R = H_RING + 36 * (k % RH)
        if k == NK - 1:
            a("s_cmp_ge_u32 s27, 2")
            a(f"s_cselect_b32 s23, {OOB}, s23")
            a(f"s_cselect_b32 s24, {OOB}, s24")
        for rb in range(4):
            vq.issue(f"R{k}", f"buffer_load_dwordx4 {vr(R + 4 * rb, 4)}, v{W_L16}, s[16:19], s23 offen offset:{rb * 1024}")
        for nb in range(5):
            if nb < 4:
                vq.issue(f"R{k}", f"buffer_load_dwordx4 {vr(R + 16 + 4 * nb, 4)}, v{W_L16}, s[16:19], s24 offen offset:{nb * 1024}")
            else:
                vq.issue(f"R{k}", f"buffer_load_dwordx4 {vr(R + 16 + 4 * nb, 4)}, v{W_L16B}, s[16:19], s24 offen")
        a("s_add_u32 s23, s23, 4096")
        a("s_add_u32 s24, s24, 5120")
    init = min(OPT["k2_init"], RH)
    ring_loads(0)
    setup(3, 0)
    a("s_barrier")
    for k in range(1, init): ring_loads(k)
    issued = init
    HK = OPT["k2_hold"]
    for k in range(NK):
        if HK and k == HK - 1 + 1 - 1 and HK == 1: pass
        if k in (0, 4, 8, 12): tick(a, k // 4)
        vq.wait(f"R{k}")
        R = H_RING + 36 * (k % RH)
        for rb in range(4):
            for nb in range(5):
                acc = vr(H_ACC + 20 * rb + 4 * nb, 4)
                a(f"v_mfma_f32_16x16x32_bf16 {acc}, {vr(R + 16 + 4 * nb, 4)}, {vr(R + 4 * rb, 4)}, {'0' if k == 0 else acc}")
            if k == NK - 1 and rb > 0:
                for nb in range(5):
                    a(f"ds_write_b128 v{T+1}, {vr(H_ACC + 20 * (rb - 1) + 4 * nb, 4)} offset:{(rb - 1) * 5120 + nb * 1024}")
        n = 0
        if HK and k == HK - 1:
            a("s_barrier")
        depth = init if (HK and k < HK - 1) else RH
        while issued < NK and issued <= k + depth and n < (RH if HK and k == HK - 1 else 2):
            ring_loads(issued); issued += 1; n += 1
        if k == 8: xloads(vq, 3)
    tick(a, 4)
    a("s_nop 3")
    for nb in range(5):
        a(f"ds_write_b128 v{T+1}, {vr(H_ACC + 60 + 4 * nb, 4)} offset:{3 * 5120 + nb * 1024}")
    final(3, vq, "h")
    a.label("L_k2_end")
    a("s_endpgm")

    def s_offsets():
        a("s_mul_i32 s33, s27, 5")
        a("s_mul_i32 s25, s21, 20")
        a("s_add_u32 s25, s25, s33")
        a("s_lshl_b32 s25, s25, 12")
        a(f"s_add_u32 s25, s25, {PQ_OFF}")
        a("s_mul_i32 s26, s22, 20")
        a("s_add_u32 s26, s26, s33")
        a("s_lshl_b32 s28, s26, 6")
        a(f"s_add_u32 s28, s28, {ZF_OFF}")
        a("s_mul_i32 s26, s26, 5120")
        a(f"s_add_u32 s26, s26, {MF_OFF}")
        a("s_lshl_b32 s30, s22, 7")
        a(f"s_add_u32 s30, s30, {FL_OFF}")
    def pq_loads(vq):
        for u in range(5):
            for rb in range(4):
                vq.issue("pq", f"buffer_load_dwordx4 {vr(S_PQ + 20 * rb + 4 * u, 4)}, v{W_L16}, s[16:19], s25 offen offset:{rb * 1024}")
            a("s_add_u32 s25, s25, 4096")
    a.label("L_k2_s")
    vq = VQ(a)
    a("s_cmp_lg_u32 s20, 4")
    a("s_cbranch_scc1 L_k2_s1")
    if OPT["k2_noprod"]: a("s_branch L_k2_s1")
    a("s_setprio 3")
    k2_producer(a)
    s_offsets()
    pq_loads(VQ(a))
    a(f"v_mov_b32 v{T+6}, {FLAG_LDS}")
    a(f"v_mov_b32 v{T+7}, 0")
    a(f"ds_write_b32 v{T+6}, v{T+7}")
    a("s_waitcnt lgkmcnt(0)")
    a("s_barrier")
    k2_producer2(a)
    tick(a, 0)
    a("s_branch L_k2_s2")
    a.label("L_k2_s1")
    if OPT["k2_sp_early"]: a(f"s_setprio {OPT['k2_sprio']}")
    a("s_barrier")
    s_offsets()
    if OPT["k2_hold"] and OPT["k2_early"]: a("s_barrier")
    pq_loads(vq)
    a.label("L_k2_s2")
    if OPT["k2_hold"] and not OPT["k2_early"]: a("s_barrier")
    if OPT["k2_sprio"]: a(f"s_setprio {OPT['k2_sprio']}")
    setup(2, 3)
    xloads(vq, 2)
    a(f"v_lshrrev_b32 v{T+8}, 4, v{W_LANE}")
    a(f"v_lshlrev_b32 v{T+8}, 4, v{T+8}")
    a(f"v_mov_b32 v{T+6}, {FLAG_LDS}")
    a("s_mov_b32 s29, 0")
    if OPT["k2_noprod"]: a("s_branch L_k2_go")
    a("s_cmp_lg_u32 s20, 4")
    a("s_cbranch_scc1 L_k2_wl")
    a(f"v_and_b32 v{T+9}, 31, v{W_LANE}")
    a(f"v_lshlrev_b32 v{T+9}, 2, v{T+9}")
    a.label("L_k2_poll")
    a(f"buffer_load_dword v{T+7}, v{T+9}, s[16:19], s30 offen sc1")
    a("s_add_u32 s29, s29, 1")
    a("s_cmp_ge_u32 s29, 200000")
    a("s_waitcnt vmcnt(0)")
    a("s_cbranch_scc1 L_k2_rel")
    a(f"v_cmp_ne_u32 vcc, 1, v{T+7}")
    a("s_cbranch_vccz L_k2_rel")
    a(f"s_sleep {OPT['k2_sleep']}")
    a("s_branch L_k2_poll")
    a.label("L_k2_rel")
    a(f"v_mov_b32 v{T+7}, 1")
    a(f"ds_write_b32 v{T+6}, v{T+7}")
    a(f"s_setprio {OPT['k2_sprio']}")
    a("s_branch L_k2_go")
    a.label("L_k2_wl")
    a("s_sleep 2")
    a(f"ds_read_b32 v{T+7}, v{T+6}")
    a("s_add_u32 s29, s29, 1")
    a("s_cmp_ge_u32 s29, 400000")
    a("s_waitcnt lgkmcnt(0)")
    a("s_cbranch_scc1 L_k2_go")
    a(f"v_cmp_ne_u32 vcc, 1, v{T+7}")
    a("s_cbranch_vccnz L_k2_wl")
    a.label("L_k2_go")
    tick(a, 1)
    for u in range(5):
        vq.issue("z", f"buffer_load_dwordx4 {vr(S_Z + 4 * u, 4)}, v{T+8}, s[16:19], s28 offen offset:{u * 64} sc1")
    for u in range(5):
        for nb in range(5):
            if nb < 4:
                vq.issue(f"M{u}", f"buffer_load_dwordx4 {vr(S_M + 20 * u + 4 * nb, 4)}, v{W_L16}, s[16:19], s26 offen offset:{nb * 1024} sc1")
            else:
                vq.issue(f"M{u}", f"buffer_load_dwordx4 {vr(S_M + 20 * u + 4 * nb, 4)}, v{W_L16B}, s[16:19], s26 offen sc1")
        a("s_add_u32 s26, s26, 5120")
    N = T + 10
    def norm(rb):
        P = S_PQ + 20 * rb
        for hd in range(2):
            a(f"v_mov_b32 v{N + 2 * hd}, {hex(EPS6)}")
            a(f"v_mov_b32 v{N + 2 * hd + 1}, 0")
        for i in range(10):
            for hd in range(2):
                dn = N + 2 * hd + (i & 1)
                a(f"v_dot2_f32_bf16 v{dn}, v{P + 10 * hd + i}, v{S_Z + 10 * hd + i}, v{dn}")
        a("s_nop 2")
        for hd in range(2):
            a(f"v_add_f32 v{N + 2 * hd}, v{N + 2 * hd}, v{N + 2 * hd + 1}")
        for hd in range(2):
            a(f"v_rcp_f32 v{N + 2 * hd}, v{N + 2 * hd}")
        E = S_ACC
        for i0 in range(0, 20, 10):
            for i in range(i0, i0 + 10):
                e = E + 2 * (i % 10)
                a(f"v_lshlrev_b32 v{e}, 16, v{P + i}")
                a(f"v_and_b32 v{e + 1}, 0xffff0000, v{P + i}")
            for i in range(i0, i0 + 10):
                e = E + 2 * (i % 10)
                a(pk("mul", e, e, N + 2 * (i // 10), bc=(1,)))
            for i in range(i0, i0 + 10):
                e = E + 2 * (i % 10)
                a(f"v_cvt_pk_bf16_f32 v{P + i}, v{e}, v{e + 1}")
    vq.wait("pq", "z")
    tick(a, 2)
    for rb in range(4): norm(rb)
    tick(a, 3)
    for rb in range(4):
        AC = S_ACC if rb % 2 == 0 else S_Z
        for u in range(5):
            vq.wait(f"M{u}")
            if rb == 0 and u == 0: a("s_nop 0")
            if rb >= 2 and u == 0: a("s_waitcnt lgkmcnt(0)")
            for nb in range(5):
                acc = vr(AC + 4 * nb, 4)
                a(f"v_mfma_f32_16x16x32_bf16 {acc}, {vr(S_M + 20 * u + 4 * nb, 4)}, {vr(S_PQ + 20 * rb + 4 * u, 4)}, {'0' if u == 0 else acc}")
            if rb > 0 and u == 1:
                PA = S_ACC if (rb - 1) % 2 == 0 else S_Z
                for nb in range(5):
                    a(f"ds_write_b128 v{T+1}, {vr(PA + 4 * nb, 4)} offset:{(rb - 1) * 5120 + nb * 1024}")
    a("s_nop 7")
    for nb in range(5):
        a(f"ds_write_b128 v{T+1}, {vr(S_Z + 4 * nb, 4)} offset:{3 * 5120 + nb * 1024}")
    tick(a, 4)
    final(2, vq, "s")
    a("s_endpgm")

def kd(name, vgpr, accum, sgpr=102):
    return f""".amdhsa_kernel {name}
  .amdhsa_next_free_vgpr {vgpr}
  .amdhsa_next_free_sgpr {sgpr}
  .amdhsa_accum_offset {accum}
  .amdhsa_group_segment_fixed_size 0
  .amdhsa_kernarg_size 80
  .amdhsa_user_sgpr_count 2
  .amdhsa_user_sgpr_kernarg_segment_ptr 1
  .amdhsa_system_sgpr_workgroup_id_x 1
.end_amdhsa_kernel"""

def main():
    a = Asm()
    a.raw(f"; @launch kernel=k1_kernel grid=(256,1,1) block=(512,1,1) lds={K1_LDS}")
    a.raw(f"; @launch kernel=k2_kernel grid=(256,1,1) block=(512,1,1) lds={K2_LDS}")
    if OPT["k2_twice"]:
        a.raw(f"; @launch kernel=k2_kernel grid=(256,1,1) block=(512,1,1) lds={K2_LDS}")
    a.raw('.amdgcn_target "amdgcn-amd-amdhsa--gfx950"')
    a.raw(".text")
    gen_k1(a)
    gen_k2(a)
    a.label("L_code_end")
    a("s_endpgm")
    a.raw('.section .rodata,"a"')
    a.raw(".p2align 6")
    a.raw(kd("k1_kernel", 256, 256))
    a.raw(".p2align 6")
    a.raw(kd("k2_kernel", 256, 256))
    open(sys.argv[1], "w").write(a.text())

if __name__ == "__main__":
    main()
```

```python
import sys

S, D, F = 2048, 640, 1728

HB_OFF   = 0
HB_SZ    = 32 * 54 * 4096
PQ_OFF   = HB_OFF + HB_SZ
PQ_SZ    = 32 * 20 * 4096
W2F_OFF  = PQ_OFF + PQ_SZ
W2F_SZ   = 8 * 54 * 5120
WOF_OFF  = W2F_OFF + W2F_SZ
WOF_SZ   = 32 * 8 * 5120
MF_OFF   = WOF_OFF + WOF_SZ
MF_SZ    = 8 * 20 * 5120
KVP_OFF  = MF_OFF + MF_SZ
KVP_SZ   = 8 * 32 * 1920
ZF_OFF   = KVP_OFF + KVP_SZ
ZF_SZ    = 8 * 1280
FL_OFF   = ZF_OFF + ZF_SZ
FL_SZ    = 8 * 128
ST_OFF   = FL_OFF + FL_SZ
ST_SZ    = 2 * 2048 * 4
WS_USED  = ST_OFF + ST_SZ
OOB      = 0x40000000

LOG2E = 0x3fb8aa3b
EPS6  = 0x358637bd
EPS5  = 0x3727c5ac
INV640 = 0x3acccccd
ONES_BF = 0x3f803f80

OPT = dict(k1map="4x8", k2map="8x4", stamp=0, prefetch_code=0, no_fill=0, no_x=0, no_dma=0, no_rd=0, no_mfma=0,
           flag_st=6, k2_twice=0, rot=0, k2_ring=3, k2_init=2, k2_sleep=4, k2_nos=0, pro=0, k2_hold=1, k2_sprio=1, k2_pqthr=1, k2_early=1, k2_noprod=0, k2_msc1=1, dbgout=0, st_flag='sc1', rl_flag='sc1', k2_sp_early=1, ld_w='', ld_x='', pf='', spf=0, kvtick=0)
for _a in sys.argv[2:]:
    _k, _v = _a.split("=")
    assert _k in OPT, _k
    OPT[_k] = int(_v) if _v.lstrip("-").isdigit() else _v

class Asm:
    def __init__(self):
        self.L = []
    def __call__(self, s):
        for line in s.strip("\n").split("\n"):
            self.L.append("    " + line.strip())
    def label(self, l):
        self.L.append(l + ":")
    def raw(self, s):
        self.L.append(s)
    def text(self):
        return "\n".join(self.L) + "\n"

class VQ:
    def __init__(self, a):
        self.a, self.q, self.done = a, [], 0
    def issue(self, tag, text):
        self.q.append(tag)
        self.a(text)
    def need(self, *tags):
        idxs = [i for i, t in enumerate(self.q) if t in tags]
        if not idxs:
            return None
        idx = max(idxs)
        if idx < self.done:
            return None
        n = min(63, len(self.q) - 1 - idx)
        self.done = len(self.q) - n
        return n
    def wait(self, *tags, lgkm=None):
        n = self.need(*tags) if tags else None
        parts = []
        if n is not None: parts.append(f"vmcnt({n})")
        if lgkm is not None: parts.append(f"lgkmcnt({lgkm})")
        if parts: self.a("s_waitcnt " + " ".join(parts))

class LQ:
    def __init__(self, a):
        self.a, self.q, self.done = a, [], 0
    def issue(self, tag, text):
        if len(self.q) - self.done >= 15:
            self.a("s_waitcnt lgkmcnt(14)")
            self.done = len(self.q) - 14
        self.q.append(tag)
        self.a(text)
    def need(self, *tags):
        idxs = [i for i, t in enumerate(self.q) if t in tags]
        if not idxs or max(idxs) < self.done:
            return None
        n = len(self.q) - 1 - max(idxs)
        self.done = len(self.q) - n
        return n
    def wait(self, *tags):
        n = self.need(*tags)
        if n is not None: self.a(f"s_waitcnt lgkmcnt({n})")
    def drained(self):
        self.done = len(self.q)

def vr(b, n):
    return f"v[{b}:{b+n-1}]" if n > 1 else f"v{b}"
def ar(b, n):
    return f"a[{b}:{b+n-1}]" if n > 1 else f"a{b}"

def srd(a, d, lo, hi, size):
    a(f"s_mov_b32 s{d}, s{lo}")
    a(f"s_and_b32 s{d+1}, s{hi}, 0xffff")
    a(f"s_mov_b32 s{d+2}, {size}")
    a(f"s_mov_b32 s{d+3}, 0x20000")

def stamp(a, slot, va, vb):
    if not OPT["stamp"]:
        return
    a("s_memrealtime s[96:97]")
    a("s_waitcnt lgkmcnt(0)")
    a(f"v_mov_b32 v{va}, s96")
    a("s_lshl_b32 s98, s2, 5")
    a("s_lshl_b32 s99, s20, 2")
    a("s_add_u32 s98, s98, s99")
    a(f"s_add_u32 s98, s98, {WS_USED + slot * 8192}")
    a(f"v_mov_b32 v{vb}, s98")
    a(f"buffer_store_dword v{va}, v{vb}, s[92:95], 0 offen")
    a("s_memtime s[96:97]")
    a("s_waitcnt lgkmcnt(0)")
    a(f"v_mov_b32 v{va}, s96")
    a("s_mov_b32 s99, 65536")
    a(f"buffer_store_dword v{va}, v{vb}, s[92:95], s99 offen")

def tick(a, i):
    if OPT["stamp"]:
        a("s_memtime s[60:61]")
        a("s_waitcnt lgkmcnt(0)")
        a(f"s_mov_b32 s{70 + i}, s60")

def tick_dump(a, slot, wave, va, vb, tag):
    if not OPT["stamp"]:
        return
    a(f"s_cmp_lg_u32 s20, {wave}")
    a(f"s_cbranch_scc1 L_nost_{tag}")
    for i in range(8):
        a(f"v_mov_b32 v{va}, s{70+i}")
        a("s_lshl_b32 s98, s2, 5")
        a(f"s_add_u32 s98, s98, {WS_USED + slot * 8192 + 4 * i}")
        a(f"v_mov_b32 v{vb}, s98")
        a(f"buffer_store_dword v{va}, v{vb}, s[92:95], 0 offen")
    a.label(f"L_nost_{tag}")

def pk(op, d, x, y, z=None, bc=()):
    def o(v):
        return v if isinstance(v, str) else f"v[{v}:{v+1}]"
    n = 3 if z is not None else 2
    hi = [0 if i in bc else 1 for i in range(n)]
    ops = [o(x), o(y)] + ([o(z)] if z is not None else [])
    t = f"v_pk_{op}_f32 v[{d}:{d+1}], " + ", ".join(ops)
    if bc:
        t += " op_sel_hi:[" + ",".join(map(str, hi)) + "]"
    return t

K1_LDS = 163840
SLOT = 24576
XL_LDS = 98304
V_LANE, V_XD, V_D0, V_R0, V_RC, V_XR, V_FL = 1, 2, 6, 9, 12, 156, 159
V_L16 = 15
V_CS = 16
V_EPS = 22
V_U = 24
V_NM, V_RS = 28, 36
V_KNM, V_KRS = 28, 44
V_T = 44
V_X = [60, 76]
V_F = [92, 122]
V_CA = 152
V_SA = 155
V_PD = 158
V_ACC = 160
V_E0 = 60

def k1_mainloop(a, kind, tag, late_setup, pre_epi):
    nt = 6 if kind == "ffn" else 5
    pitch = 192 if kind == "ffn" else 320
    wpitch = 3456 if kind == "ffn" else 3840
    NK = 20
    vq, lq = VQ(a), LQ(a)
    def rd_addr(ct):
        if kind == "ffn":
            return V_R0 + (ct >> 1), (ct & 1) * 12288
        if ct == 4:
            return V_R0 + 1, 0
        return V_R0, (8 if kind == "q" else 32) * ct
    naddr = ([V_R0, V_R0 + 1, V_R0 + 2] if kind == "ffn" else [V_R0, V_R0 + 1]) + [V_RC, V_RC + 1, V_RC + 2]
    def koff(n):
        s_, j = divmod(n, 2)
        return (s_ & 1) * SLOT + 32 * j * pitch
    def wread(ct, n, sec):
        if OPT["no_rd"] and n > 0: return
        av, off = rd_addr(ct)
        o = koff(n) + off + 4 * sec * pitch
        assert o < 65536
        lq.issue(f"f{n}_{ct}", f"ds_read_b64_tr_b16 {vr(V_F[n & 1] + 4 * ct + 2 * sec, 2)}, v{av} offset:{o}")
    def cread(i, n):
        if OPT["no_rd"] and n > 0: return
        lq.issue(f"c{n}", f"ds_read_b64_tr_b16 {vr(V_F[n & 1] + 24 + 2 * i, 2)}, v{V_RC + i} offset:{koff(n)}")
    def xread(rt, n):
        lq.issue(f"x{n}_{rt}", f"ds_read_b128 {vr(V_X[n & 1] + 4 * rt, 4)}, v{V_XR + (n & 1)} offset:{((n >> 1) & 1) * 32768 + rt * 2048}")
    def all_reads(n):
        L = [lambda rt=rt: xread(rt, n) for rt in range(4)]
        W = [lambda ct=ct, sec=sec: wread(ct, n, sec) for ct in range(nt) for sec in range(2)]
        C = [lambda i=i: cread(i, n) for i in range(3)]
        return L[:1] + W[:2] + L[1:] + C + W[2:]
    def dma(stage, i):
        if OPT["no_dma"] and stage > 2: return
        a(f"s_add_u32 m0, s{28+i}, {(stage % 4) * SLOT}")
        a("s_nop 0")
        vq.issue(f"D{stage}", f"buffer_load_dwordx4 v{V_D0+i}, s[12:15], s24 offen {OPT['ld_w']} lds")
        if i == 2:
            a(f"s_add_u32 s24, s24, {64 * wpitch}")
            if OPT["rot"]:
                a(f"s_cmp_eq_u32 s24, {640 * wpitch}")
                a(f"s_cselect_b32 s24, 0, s24")
    def xl(st, i):
        if OPT["no_x"] and st >= 2: return
        a(f"s_add_u32 m0, s26, {(st & 1) * 32768 + i * 1024}")
        a("s_nop 0")
        vq.issue(f"X{st}", f"buffer_load_dwordx4 v{V_XD + i}, s[8:11], s23 offen {OPT['ld_x']} lds")
        if i == 3:
            a("s_add_u32 s23, s23, 128")
            if OPT["rot"]:
                a("s_cmp_eq_u32 s23, 1280")
                a("s_cselect_b32 s23, 0, s23")

    a(f"s_mul_i32 s24, s25, {64 * wpitch}")
    a("s_lshl_b32 s23, s25, 7")
    for i in range(3): dma(0, i)
    for i in range(4): xl(0, i)
    late_setup()
    for r in range(6):
        a(f"v_mov_b32 v{V_CS + r}, 0")
    for i in range(3): dma(1, i)
    for i in range(4): xl(1, i)
    for i in range(3): dma(2, i)
    vq.wait("D0", "X0")
    a("s_barrier")
    for f in all_reads(0): f()
    for n in range(NK):
        s_, j = divmod(n, 2)
        cur, xc = V_F[n & 1], V_X[n & 1]
        last = n == NK - 1
        if n % 4 == 0 and OPT["stamp"]:
            tick(a, n // 4); lq.drained()
        extra = []
        if j == 1:
            lg = lq.need(*[f"x{n}_{rt}" for rt in range(4)])
            vq.wait(*([] if last else [f"X{s_ + 1}", f"D{s_ + 1}"]), lgkm=lg)
            a("s_barrier")
            if s_ + 2 < 10:
                extra += [lambda i=i: xl(s_ + 2, i) for i in range(4)]
            if s_ + 3 < 10:
                extra += [lambda i=i: dma(s_ + 3, i) for i in range(3)]
            if s_ & 1 and not last:
                for av in naddr:
                    if (s_ & 2) == 0: a(f"v_add_u32 v{av}, {2 * SLOT}, v{av}")
                    else: a(f"v_subrev_u32 v{av}, {2 * SLOT}, v{av}")
        if n == 2 * OPT["flag_st"]:
            extra.append(lambda: vq.issue("flag", f"buffer_load_dword v{V_FL}, off, s[44:47], s48 sc1"))
        if n == 2 * OPT["flag_st"] + 4:
            vq.wait("flag")
            a(f"v_cmp_ne_u32 vcc, 1, v{V_FL}")
            a(f"s_cbranch_vccnz L_k1_{tag}_spin")
            a.label(f"L_k1_{tag}_go")
            for rt in range(4):
                if kind == "kv":
                    extra.append(lambda rt=rt: vq.issue("stat", f"buffer_load_dwordx4 {vr(V_KNM + 4 * rt, 4)}, v{V_SA}, s[16:19], s49 offen offset:{64 * rt} sc1"))
                    extra.append(lambda rt=rt: vq.issue("stat", f"buffer_load_dwordx4 {vr(V_KRS + 4 * rt, 4)}, v{V_SA}, s[16:19], s50 offen offset:{64 * rt} sc1"))
                else:
                    extra.append(lambda rt=rt: vq.issue("stat", f"buffer_load_dword v{V_NM + 2 * rt}, v{V_SA}, s[16:19], s49 offen offset:{64 * rt} sc1"))
                    extra.append(lambda rt=rt: vq.issue("stat", f"buffer_load_dword v{V_RS + 2 * rt}, v{V_SA}, s[16:19], s50 offen offset:{64 * rt} sc1"))
        def cs_fill(fb):
            L = []
            for r in range(6):
                t = V_U + 2 * (r & 1)
                c = V_CS + 2 * (r >> 1)
                L.append(f"v_lshlrev_b32 v{t}, 16, v{fb + 24 + r}")
                L.append(f"v_and_b32 v{t + 1}, 0xffff0000, v{fb + 24 + r}")
                L.append(f"v_add_f32 v{c}, v{c}, v{t}")
                L.append(f"v_add_f32 v{c + 1}, v{c + 1}, v{t + 1}")
            return L
        fill = [] if last else cs_fill(cur)
        if n == NK - 2:
            fill += [lambda: lq.wait(f"c{n + 1}")] + cs_fill(V_F[(n + 1) & 1])
        if OPT["no_fill"]: fill = []
        if last:
            R3 = range(3)
            fill += [f"v_add_f32 v{V_CS + 2 * i}, v{V_CS + 2 * i}, v{V_CS + 2 * i + 1}" for i in R3]
            fill += [f"v_mov_b32 v{V_CS + 2 * i + 1}, v{V_CS + 2 * i}" for i in R3]
            fill += ["s_mul_i32 s32, s20, 192", f"s_add_u32 s32, s32, {XL_LDS}"]
            fill += [f"v_permlane32_swap_b32 v{V_CS + 2 * i}, v{V_CS + 2 * i + 1}" for i in R3]
            fill += [f"v_and_b32 v{V_U}, 15, v{V_LANE}"]
            fill += [f"v_add_f32 v{V_CS + 2 * i}, v{V_CS + 2 * i}, v{V_CS + 2 * i + 1}" for i in R3]
            fill += [f"v_mov_b32 v{V_CS + 2 * i + 1}, v{V_CS + 2 * i}" for i in R3]
            fill += [f"v_lshl_add_u32 v{V_U+1}, v{V_U}, 2, s32", "s_nop 0"]
            fill += [f"v_permlane16_swap_b32 v{V_CS + 2 * i}, v{V_CS + 2 * i + 1}" for i in R3]
            fill += ["s_nop 0"]
            fill += [f"v_add_f32 v{V_CS + 2 * i}, v{V_CS + 2 * i}, v{V_CS + 2 * i + 1}" for i in R3]
            def cs_out():
                for i in R3:
                    lq.issue("csw", f"ds_write_b32 v{V_U+1}, v{V_CS + 2 * i} offset:{64 * i}")
            def cs_bar():
                lq.wait("csw"); a("s_barrier")
            fill += [cs_out, cs_bar] + pre_epi(vq, lq)
        rds = [] if last else all_reads(n + 1)
        nm = 4 * nt
        m = 0
        first_fill = True
        for ct in range(nt):
            for rt in range(4):
                acc = vr(V_ACC + 16 * ct + 4 * rt, 4)
                w, x = vr(cur + 4 * ct, 4), vr(xc + 4 * rt, 4)
                c = "0" if n == 0 else acc
                lq.wait(f"f{n}_{ct}", f"x{n}_{rt}")
                if not OPT["no_mfma"]:
                    if kind == "kv":
                        a(f"v_mfma_f32_16x16x32_bf16 {acc}, {x}, {w}, {c}")
                    else:
                        a(f"v_mfma_f32_16x16x32_bf16 {acc}, {w}, {x}, {c}")
                left = nm - m
                k = -(-len(rds) // max(1, left - 4)) if rds else 0
                for _ in range(min(k, len(rds))): rds.pop(0)()
                if m >= 2 or last:
                    k = -(-len(fill) // left)
                    if k and first_fill:
                        lq.wait(f"c{n}"); first_fill = False
                    for l in fill[:k]:
                        if callable(l): l()
                        else: a(l)
                    fill = fill[k:]
                if m % 2 == 0 or len(extra) > left // 2:
                    if extra: extra.pop(0)()
                m += 1
        while extra: extra.pop(0)()
    tick(a, 5)
    return vq, lq

def k1_spin(a, tag):
    a.label(f"L_k1_{tag}_spin")
    a("s_mov_b32 s51, 0")
    a.label(f"L_k1_{tag}_spin2")
    a("s_sleep 4")
    a(f"buffer_load_dword v{V_FL}, off, s[44:47], s48 sc1")
    a("s_add_u32 s51, s51, 1")
    a("s_cmp_ge_u32 s51, 200000")
    a("s_waitcnt vmcnt(0)")
    a(f"s_cbranch_scc1 L_k1_{tag}_go")
    a(f"v_cmp_ne_u32 vcc, 1, v{V_FL}")
    a(f"s_cbranch_vccnz L_k1_{tag}_spin2")
    a(f"s_branch L_k1_{tag}_go")

def k1_store_offsets(a, region, nt, mul, full_mul, half_t):
    a("s_lshl_b32 s32, s21, 2")
    a("s_add_u32 s32, s32, s31")
    a(f"s_mul_i32 s32, s32, {nt}")
    a(f"s_mul_i32 s33, s22, {mul}")
    a("s_add_u32 s32, s32, s33")
    a("s_lshl_b32 s32, s32, 12")
    a(f"s_add_u32 s32, s32, {region}")
    a(f"s_mul_i32 s33, s27, {full_mul * 4096}")
    a("s_add_u32 s52, s32, s33")
    a("s_lshl_b32 s33, s27, 3")
    a("s_add_u32 s53, s32, s33")
    a(f"s_add_u32 s53, s53, {half_t * 4096}")

FE_CS, FE_CS2, FE_C1, FE_V2 = 92, 44, 60, 68

def k1_pre_ffn(a):
    def f(vq, lq):
        L = []
        def rd(p, mat, h):
            dst = (92 if h == 0 else 44) + 4 * (2 * p + mat) if (h == 0 or 2 * p + mat < 4) else 60 + 4 * (2 * p + mat - 4)
            lq.issue("cs", f"ds_read_b128 {vr(dst, 4)}, v{V_CA + p} offset:{768 * mat + 64 * h}")
        for p in range(3):
            for mat in range(2):
                for h in range(2):
                    L.append(lambda p=p, mat=mat, h=h: rd(p, mat, h))
        return L
    return f

def k1_epi_ffn(a, vq, lq):
    CS = 92
    C1, V2 = 68, 76
    E = 122
    P = 136
    vq.wait("stat")
    for rt in range(4):
        a(f"v_mul_f32 v{V2 + 2 * rt}, v{V_RS + 2 * rt}, v{V_RS + 2 * rt}")
        a(f"v_mul_f32 v{C1 + 2 * rt}, {hex(LOG2E | 0x80000000)}, v{V_RS + 2 * rt}")
    for rt in range(4):
        a(f"v_rcp_f32 v{V2 + 2 * rt}, v{V2 + 2 * rt}")
    lq.wait("cs")
    for r in range(0, 24, 2):
        a(pk("add", CS + r, CS + r, (44 + r) if r < 16 else (60 + r - 16)))
    for rt in range(4):
        G = lambda p, r: V_ACC + 32 * p + 4 * rt + r
        U = lambda p, r: V_ACC + 32 * p + 16 + 4 * rt + r
        nm, c1, v2 = V_NM + 2 * rt, C1 + 2 * rt, V2 + 2 * rt
        pr = [(p, r) for p in range(3) for r in (0, 2)]
        for p, r in pr:
            a(pk("fma", G(p, r), nm, CS + 8 * p + r, G(p, r), bc=(0,)))
        for p, r in pr:
            a(pk("mul", E + 4 * p + r, G(p, r), c1, bc=(1,)))
            a(pk("fma", U(p, r), nm, CS + 8 * p + 4 + r, U(p, r), bc=(0,)))
        for i in range(12):
            a(f"v_exp_f32 v{E+i}, v{E+i}")
        for p, r in pr:
            a(pk("mul", G(p, r), G(p, r), U(p, r)))
            a(pk("fma", E + 4 * p + r, E + 4 * p + r, v2, v2, bc=(1, 2)))
        for i in range(12):
            a(f"v_rcp_f32 v{E+i}, v{E+i}")
        a("s_nop 0")
        for p, r in pr:
            a(pk("mul", G(p, r), G(p, r), E + 4 * p + r))
        PP = P + 6 * (rt & 1) + (2 if rt & 1 else 0)
        for p, r in pr:
            a(f"v_cvt_pk_bf16_f32 v{PP + 2 * p + r // 2}, v{G(p, r)}, v{G(p, r) + 1}")
        a(f"buffer_store_dwordx4 {vr(PP, 4)}, v{V_L16}, s[16:19], s52 offen offset:{1024 * rt} {OPT['st_flag']}")
        a(f"buffer_store_dwordx2 {vr(PP + 4, 2)}, v{V_L16}, s[16:19], s53 offen offset:{1024 * rt} {OPT['st_flag']}")

def phi_n(a, G, E, rl, rs, bc):
    b1 = (1,) if bc else ()
    n = len(G)
    for i in range(n):
        a(pk("mul", E + 2 * i, G[i], rl(i), bc=b1))
    for i in range(n):
        a(f"v_max_f32 v{G[i]}, 0, v{G[i]}")
        a(f"v_max_f32 v{G[i] + 1}, 0, v{G[i] + 1}")
    for i in range(2 * n):
        a(f"v_exp_f32_e64 v{E+i}, v{E+i} clamp")
    a("s_nop 0")
    for i in range(n):
        a(pk("add", E + 2 * i, E + 2 * i, V_EPS, bc=(1,)))
    for i in range(n):
        a(pk("fma", G[i], G[i], rs(i), E + 2 * i, bc=b1))

def k1_pre_q(a):
    def f(vq, lq):
        L = []
        def rd(p, h):
            av, off = (V_CA, 128 * p) if p < 4 else (V_CA + 1, 0)
            dst = 92 + 4 * p if h == 0 else (44 + 4 * p if p < 4 else 60)
            lq.issue("cs", f"ds_read_b128 {vr(dst, 4)}, v{av} offset:{off + 64 * h}")
        for p in range(5):
            for h in range(2):
                L.append(lambda p=p, h=h: rd(p, h))
        L.append(f"v_mov_b32 v{V_EPS}, {hex(EPS6)}")
        L.append("s_add_u32 s54, s52, 4096")
        return L
    return f

def k1_epi_q(a, vq, lq):
    CS = 92
    RL = 64
    E = 112
    P = 132
    vq.wait("stat")
    for rt in range(4):
        a(f"v_mul_f32 v{RL + 2 * rt}, {hex(LOG2E)}, v{V_RS + 2 * rt}")
    lq.wait("cs")
    for r in range(0, 20, 2):
        a(pk("add", CS + r, CS + r, (44 + r) if r < 16 else (60 + r - 16)))
    for rt in range(4):
        G = [V_ACC + 16 * p + 4 * rt + r for p in range(5) for r in (0, 2)]
        for i, g in enumerate(G):
            a(pk("fma", g, V_NM + 2 * rt, CS + 2 * i, g, bc=(0,)))
        phi_n(a, G, E, lambda i: RL + 2 * rt, lambda i: V_RS + 2 * rt, True)
        PP = P + 10 * (rt & 1)
        for i, g in enumerate(G):
            a(f"v_cvt_pk_bf16_f32 v{PP + i}, v{g}, v{g + 1}")
        a(f"buffer_store_dwordx4 {vr(PP, 4)}, v{V_L16}, s[16:19], s52 offen offset:{1024 * rt} {OPT['st_flag']}")
        a(f"buffer_store_dwordx4 {vr(PP + 4, 4)}, v{V_L16}, s[16:19], s54 offen offset:{1024 * rt} {OPT['st_flag']}")
        a(f"buffer_store_dwordx2 {vr(PP + 8, 2)}, v{V_L16}, s[16:19], s53 offen offset:{1024 * rt} {OPT['st_flag']}")

V_KJ = 240

def k1_kv_jobs(a, T):
    a("s_min_u32 s36, s20, 4")
    a("s_lshl_b32 s33, s36, 13")
    a(f"v_add_u32 v{V_KJ}, s33, v{V_L16}")
    a("s_add_u32 s33, s33, 32768")
    a(f"v_add_u32 v{V_KJ+1}, s33, v{V_L16}")
    a("s_lshl_b32 s38, s21, 5")
    a("s_lshl_b32 s39, s22, 2")
    a("s_add_u32 s38, s38, s39")
    a("s_mul_i32 s38, s38, 1920")
    a(f"s_add_u32 s38, s38, {KVP_OFF}")
    a("s_lshl_b32 s33, s36, 4")
    a(f"v_add_u32 v{T+9}, s33, v{T+7}")
    a(f"v_mul_u32_u24 v{T+10}, 3277, v{T+9}")
    a(f"v_lshrrev_b32 v{T+10}, 16, v{T+10}")
    a(f"v_mul_u32_u24 v{T+11}, 20, v{T+10}")
    a(f"v_sub_u32 v{T+11}, v{T+9}, v{T+11}")
    a(f"v_mul_u32_u24 v{T+12}, 1920, v{T+10}")
    a(f"v_lshl_add_u32 v{T+12}, v{T+11}, 4, v{T+12}")
    a(f"v_add_u32 v{T+12}, s38, v{T+12}")
    a(f"v_mov_b32 v{T+13}, {hex(OOB)}")
    a(f"v_add_u32 v{T+10}, 1, v{T+10}")
    for i in range(3):
        a("s_lshl_b32 s33, s36, 2")
        a(f"s_add_u32 s33, s33, {4 * i + 1}")
        a(f"v_add_u32 v{T+9}, s33, v{T+3}")
        a(f"v_mul_u32_u24 v{T+11}, 52, v{T+9}")
        a(f"v_lshrrev_b32 v{T+11}, 8, v{T+11}")
        a(f"v_cmp_eq_u32 vcc, v{T+11}, v{T+10}")
        a(f"v_mul_u32_u24 v{T+11}, 5, v{T+11}")
        a(f"v_sub_u32 v{T+9}, v{T+9}, v{T+11}")
        a(f"v_mul_u32_u24 v{T+9}, 320, v{T+9}")
        a(f"v_add_u32 v{T+9}, v{T+9}, v{T+12}")
        a(f"v_cndmask_b32 v{V_KJ+2+i}, v{T+13}, v{T+9}, vcc")
    a(f"v_cmp_eq_u32 vcc, 0, v{T+3}")
    a(f"v_add_u32 v{T+12}, 1600, v{T+12}")
    a("s_mul_i32 s32, s27, 40960")
    a(f"v_cndmask_b32 v{V_KJ+5}, v{T+13}, v{T+12}, vcc")
    a("s_lshl_b32 s33, s31, 11")
    a("s_add_u32 s32, s32, s33")
    a(f"v_add_u32 v{V_KJ+6}, s32, v{V_L16}")
    for r in range(4):
        a(f"v_mov_b32 v{V_KJ + 8 + r}, {hex(ONES_BF)}")

def k1_pre_kv(a):
    def f(vq, lq):
        L = []
        for t in range(5):
            for h in range(2):
                L.append(lambda t=t, h=h: lq.issue("cs", f"ds_read_b32 v{92 + 10 * h + 2 * t}, v{V_CA} offset:{128 * t + 64 * h}"))
        L.append(f"v_mov_b32 v{V_EPS}, {hex(EPS6)}")
        return L
    return f

def k1_epi_kv(a, vq, lq):
    CS, RL, E, P = 92, 60, 112, 128
    XA = V_KJ + 6
    vq.wait("stat")
    lq.wait("cs")
    for t in range(5):
        a(f"v_add_f32 v{CS + 2 * t}, v{CS + 2 * t}, v{CS + 10 + 2 * t}")
    if OPT["kvtick"]: tick(a, 1)
    a("s_cmp_eq_u32 s27, 0")
    a("s_cbranch_scc0 L_k1_kv_v")
    def tiles(isk):
        if isk:
            for r in range(16):
                a(f"v_mul_f32 v{RL+r}, {hex(LOG2E)}, v{V_KRS+r}")
        for t in range(5):
            G = [V_ACC + 16 * t + r for r in range(0, 16, 2)]
            for i, g in enumerate(G):
                a(pk("fma", g, V_KNM + 2 * i, CS + 2 * t, g, bc=(1,)))
            if isk:
                phi_n(a, G, E, lambda i: RL + 2 * i, lambda i: V_KRS + 2 * i, False)
            else:
                for i, g in enumerate(G):
                    a(pk("mul", g, g, V_KRS + 2 * i))
            PP = P + 8 * (t & 1)
            for i, g in enumerate(G):
                a(f"v_cvt_pk_bf16_f32 v{PP + i}, v{g}, v{g + 1}")
            a(f"ds_write_b128 v{XA}, {vr(PP, 4)} offset:{8192 * t}")
            a(f"ds_write_b128 v{XA}, {vr(PP + 4, 4)} offset:{8192 * t + 1024}")
    a("s_setprio 1")
    tiles(True)
    a("s_branch L_k1_kv_x")
    a.label("L_k1_kv_v")
    tiles(False)
    a.label("L_k1_kv_x")
    if OPT["kvtick"]: tick(a, 2)
    a("s_waitcnt lgkmcnt(0)")
    a("s_barrier")
    if OPT["kvtick"]: tick(a, 4)
    a("s_cmp_ge_u32 s20, 5")
    a("s_cbranch_scc1 L_k1_end")
    KB, VB, AC = 28, 60, 160
    lq = LQ(a)
    def rd(g):
        lq.issue(f"r{g}", f"ds_read_b128 {vr(KB + 4 * g, 4)}, v{V_KJ} offset:{g * 1024}")
        for i in range(3):
            lq.issue(f"r{g}", f"ds_read_b128 {vr(VB + 32 * i + 4 * g, 4)}, v{V_KJ+1} offset:{i * 8192 + g * 1024}")
    for g in range(3): rd(g)
    for g in range(8):
        lq.wait(f"r{g}")
        for i in range(4):
            acc = vr(AC + 4 * i, 4)
            src = vr(VB + 32 * i + 4 * g, 4) if i < 3 else vr(V_KJ + 8, 4)
            a(f"v_mfma_f32_16x16x32_bf16 {acc}, {src}, {vr(KB + 4 * g, 4)}, {'0' if g == 0 else acc}")
        if g + 3 < 8: rd(g + 3)
    a("s_nop 4")
    for i in range(4):
        a(f"buffer_store_dwordx4 {vr(AC + 4 * i, 4)}, v{V_KJ+2+i}, s[16:19], 0 offen")

def quad_sum(a, v, t):
    a("s_nop 1")
    a(f"v_add_f32_dpp v{t}, v{v}, v{v} quad_perm:[1,0,3,2] row_mask:0xf bank_mask:0xf")
    a("s_nop 1")
    a(f"v_add_f32_dpp v{v}, v{t}, v{t} quad_perm:[2,3,0,1] row_mask:0xf bank_mask:0xf")

def rbf(a, v):
    a(f"v_cvt_pk_bf16_f32 v{v}, v{v}, v{v}")
    a(f"v_and_b32 v{v}, 0xffff0000, v{v}")

def k1_spare(a):
    T = 28
    a("s_lshl_b32 s32, s21, 1")
    a("s_add_u32 s32, s32, s22")
    a("s_lshl_b32 s52, s32, 3")
    a("s_add_u32 s52, s52, s20")
    a("s_mul_i32 s33, s52, 20480")
    a(f"v_lshrrev_b32 v{T}, 2, v{V_LANE}")
    a(f"v_mul_u32_u24 v{T+1}, 1280, v{T}")
    a(f"v_and_b32 v{T+3}, 3, v{V_LANE}")
    a(f"v_lshl_add_u32 v{T+1}, v{T+3}, 4, v{T+1}")
    a(f"v_lshrrev_b32 v{T+2}, 4, v{V_LANE}")
    XR = 160
    svq = VQ(a)
    if OPT["spf"]:
        a("s_lshl_b32 s34, s20, 4")
        a("s_add_u32 s34, s34, s32")
        a("s_cmp_lt_u32 s34, 27")
        a("s_cselect_b32 s12, s40, s42")
        a("s_cselect_b32 s13, s41, s43")
        a("s_cselect_b32 s38, 0, 27")
        a(f"s_mov_b32 s14, {D * F * 2}")
        a(f"s_mov_b32 s39, {64 * 3456}")
        a("s_cmp_lt_u32 s34, 54")
        a("s_cselect_b32 s12, s12, s36")
        a("s_cselect_b32 s13, s13, s37")
        a("s_cselect_b32 s38, s38, 54")
        a(f"s_cselect_b32 s14, s14, {D * 1920 * 2}")
        a(f"s_cselect_b32 s39, s39, {64 * 3840}")
        a("s_and_b32 s13, s13, 0xffff")
        a("s_mov_b32 s15, 0x20000")
        a("s_sub_u32 s38, s34, s38")
        a("s_lshl_b32 s38, s38, 13")
        a("s_cmp_lt_u32 s34, 84")
        a(f"s_cselect_b32 s38, s38, {OOB}")
        a(f"v_lshlrev_b32 v{T+4}, 7, v{V_LANE}")
    def wt(st):
        if not OPT["spf"]: return
        a("s_add_u32 s38, s38, s39")
        svq.issue("t", f"buffer_load_dword v{V_PD}, v{T+4}, s[12:15], s38 offen")
    lead = OPT["spf"]
    for st in range(1, 1 + lead): wt(st)
    nxt = 1 + lead
    for i in range(20):
        svq.issue(f"x{i}", f"buffer_load_dwordx4 {vr(XR + 4 * i, 4)}, v{T+1}, s[8:11], s33 offen offset:{64 * i}")
        if i % 2 == 1 and nxt < 10:
            wt(nxt); nxt += 1
    a("s_load_dwordx2 s[40:41], s[0:1], 48")
    a("s_load_dwordx2 s[42:43], s[0:1], 16")
    for i in range(5):
        a(f"v_add_u32 v{T+4}, {64 * i}, v{V_LANE}")
        a(f"v_mul_u32_u24 v{T+5}, 52429, v{T+4}")
        a(f"v_lshrrev_b32 v{T+5}, 19, v{T+5}")
        a(f"v_mul_u32_u24 v{T+6}, 10, v{T+5}")
        a(f"v_sub_u32 v{T+6}, v{T+4}, v{T+6}")
        a(f"v_mul_u32_u24 v{T+7}, 1280, v{T+5}")
        a(f"v_cmp_gt_u32 vcc, 20, v{T+5}")
        a(f"v_lshl_add_u32 v{64+i}, v{T+6}, 4, v{T+7}")
        a(f"v_mov_b32 v{T+7}, {hex(OOB)}")
        a(f"v_cndmask_b32 v{72+i}, v{T+7}, v{64+i}, vcc")
    a("s_mul_i32 s53, s20, 15360")
    a(f"v_bfe_u32 v{T+5}, v{V_LANE}, 2, 2")
    a(f"v_and_b32 v{T+6}, 3, v{V_LANE}")
    a(f"v_lshlrev_b32 v{T+6}, 3, v{T+6}")
    a(f"v_add_u32 v{T+6}, s53, v{T+6}")
    a(f"v_lshl_add_u32 v{T+7}, v{T+2}, 2, v{T+5}")
    a(f"v_mul_u32_u24 v{T+7}, 160, v{T+7}")
    a(f"v_add_u32 v80, v{T+7}, v{T+6}")
    a(f"v_lshl_add_u32 v{T+7}, v{T+2}, 3, v{T+5}")
    a(f"v_mul_u32_u24 v{T+7}, 160, v{T+7}")
    a(f"v_add_u32 v81, v{T+7}, v{T+6}")
    a(f"v_lshlrev_b32 v82, 4, v{V_LANE}")
    a(f"v_add_u32 v83, 4096, v82")
    a("s_waitcnt lgkmcnt(0)")
    srd(a, 84, 40, 41, F * D * 2)
    srd(a, 88, 42, 43, D * D * 2)
    def item_setup(kind, add, slot):
        a(f"s_add_u32 s34, s52, {add}")
        a("s_lshr_b32 s35, s34, 3")
        a("s_and_b32 s36, s34, 7")
        a(f"s_mul_i32 s37, s35, {32 * 1280 if kind == 'w2' else 20 * 1280}")
        a("s_mul_i32 s38, s36, 160")
        a(f"s_add_u32 s{54 + 2 * slot}, s37, s38")
        if kind == "w2":
            a("s_mul_i32 s37, s36, 54")
            a("s_add_u32 s37, s37, s35")
            a("s_mul_i32 s37, s37, 5120")
            a(f"s_add_u32 s{55 + 2 * slot}, s37, {W2F_OFF}")
            if add == 384:
                a("s_cmp_lt_u32 s34, 432")
                a(f"s_cselect_b32 s{54 + 2 * slot}, s{54 + 2 * slot}, {OOB}")
                a(f"s_cselect_b32 s{55 + 2 * slot}, s{55 + 2 * slot}, {OOB}")
        else:
            a("s_mul_i32 s37, s34, 5120")
            a(f"s_add_u32 s{55 + 2 * slot}, s37, {WOF_OFF}")
    rounds = ([("w2", 0), ("w2", 128), ("w2", 256)], [("wo", 0), ("wo", 128), ("w2", 384)])
    def round_loads(rnd):
        for slot, (kind, add) in enumerate(rnd):
            item_setup(kind, add, slot)
            for i in range(5):
                a(f"s_add_u32 m0, s53, {slot * 5120 + i * 1024}")
                a("s_nop 0")
                if kind == "w2":
                    a(f"buffer_load_dwordx4 v{64+i}, s[84:87], s{54 + 2 * slot} offen lds")
                else:
                    a(f"buffer_load_dwordx4 v{72+i}, s[88:91], s{54 + 2 * slot} offen lds")
    def round_out(rnd):
        for slot, (kind, add) in enumerate(rnd):
            R = 96 + 20 * slot
            av = 80 if kind == "w2" else 81
            sec = 16 * 160 if kind == "w2" else 4 * 160
            for nb in range(5):
                a(f"ds_read_b64_tr_b16 {vr(R + 4 * nb, 2)}, v{av} offset:{slot * 5120 + 32 * nb}")
                a(f"ds_read_b64_tr_b16 {vr(R + 4 * nb + 2, 2)}, v{av} offset:{slot * 5120 + 32 * nb + sec}")
            a("s_waitcnt lgkmcnt(0)")
            for nb in range(5):
                if nb < 4:
                    a(f"buffer_store_dwordx4 {vr(R + 4 * nb, 4)}, v82, s[16:19], s{55 + 2 * slot} offen offset:{nb * 1024} {OPT['rl_flag']}")
                else:
                    a(f"buffer_store_dwordx4 {vr(R + 4 * nb, 4)}, v83, s[16:19], s{55 + 2 * slot} offen {OPT['rl_flag']}")
    SM, SQ, TT = T + 10, T + 12, T + 14
    a(f"s_mov_b32 s31, {hex(ONES_BF)}")
    for r in range(4):
        a(f"v_mov_b32 v{SM + r}, 0")
    for i in range(20):
        if i % 2 == 0:
            svq.wait(f"x{i + 1}")
        for r in range(4):
            a(f"v_dot2_f32_bf16 v{SM + (r & 1)}, v{XR + 4 * i + r}, s31, v{SM + (r & 1)}")
            a(f"v_dot2_f32_bf16 v{SQ + (r & 1)}, v{XR + 4 * i + r}, v{XR + 4 * i + r}, v{SQ + (r & 1)}")
    a("s_nop 2")
    a(f"v_add_f32 v{SM}, v{SM}, v{SM+1}")
    a(f"v_add_f32 v{SQ}, v{SQ}, v{SQ+1}")
    quad_sum(a, SM, TT)
    quad_sum(a, SQ, TT)
    a(f"v_mul_f32 v{SM}, {hex(INV640 | 0x80000000)}, v{SM}")
    a(f"v_mul_f32 v{SQ}, {hex(INV640)}, v{SQ}")
    a(f"v_fma_f32 v{SQ}, -v{SM}, v{SM}, v{SQ}")
    a(f"v_max_f32 v{SQ}, 0, v{SQ}")
    rbf(a, SQ)
    a(f"v_add_f32 v{SQ}, {hex(EPS5)}, v{SQ}")
    rbf(a, SQ)
    a(f"v_sqrt_f32 v{SQ}, v{SQ}")
    rbf(a, SM)
    rbf(a, SQ)
    a(f"v_rcp_f32 v{SQ}, v{SQ}")
    a(f"v_lshlrev_b32 v{TT}, 2, v{T}")
    a(f"v_mov_b32 v{TT+1}, {hex(OOB)}")
    a(f"v_cmp_eq_u32 vcc, 0, v{T+3}")
    a("s_lshl_b32 s33, s52, 6")
    a(f"s_add_u32 s33, s33, {ST_OFF}")
    a(f"v_cndmask_b32 v{TT}, v{TT+1}, v{TT}, vcc")
    a("s_add_u32 s34, s33, 8192")
    a(f"buffer_store_dword v{SM}, v{TT}, s[16:19], s33 offen sc1")
    a(f"buffer_store_dword v{SQ}, v{TT}, s[16:19], s34 offen sc1")
    a("s_waitcnt vmcnt(0)")
    a("s_barrier")
    tick(a, 0)
    a("s_cmp_lg_u32 s20, 0")
    a("s_cbranch_scc1 L_k1_sp_nofl")
    a("s_lshl_b32 s33, s32, 2")
    a(f"v_mov_b32 v{TT}, 1")
    a(f"buffer_store_dword v{TT}, off, s[44:47], s33 sc1")
    a.label("L_k1_sp_nofl")
    a("s_cmp_lt_u32 s52, 8")
    a("s_cbranch_scc0 L_k1_sp_nozero")
    a("s_lshl_b32 s34, s52, 7")
    a(f"s_add_u32 s34, s34, {FL_OFF}")
    a(f"v_and_b32 v{TT}, 31, v{V_LANE}")
    a(f"v_lshlrev_b32 v{TT}, 2, v{TT}")
    a(f"v_mov_b32 v{TT+1}, 0")
    a(f"buffer_store_dword v{TT+1}, v{TT}, s[16:19], s34 offen")
    a.label("L_k1_sp_nozero")
    round_loads(rounds[0])
    a("s_waitcnt vmcnt(0)")
    round_out(rounds[0])
    round_loads(rounds[1])
    a("s_waitcnt vmcnt(0)")
    round_out(rounds[1])

def gen_k1(a):
    T = V_T
    a.raw(".globl k1_kernel\n.p2align 8\n.type k1_kernel,@function")
    a.label("k1_kernel")
    a("s_cmp_ge_u32 s2, 256")
    a("s_cbranch_scc1 L_k1_exit")
    a("s_load_dwordx2 s[4:5], s[0:1], 0")
    a("s_load_dwordx4 s[64:67], s[0:1], 64")
    a("s_load_dwordx2 s[36:37], s[0:1], 8")
    a("s_load_dwordx4 s[40:43], s[0:1], 32")
    a(f"v_and_b32 v{V_LANE}, 63, v0")
    a(f"v_lshrrev_b32 v{T}, 6, v0")
    a("s_and_b32 s32, s2, 7")
    a(f"v_readfirstlane_b32 s20, v{T}")
    a("s_lshr_b32 s33, s2, 3")
    if OPT["k1map"] == "4x8":
        a("s_and_b32 s21, s32, 1")
        a("s_lshl_b32 s21, s21, 2")
        a("s_and_b32 s34, s33, 3")
        a("s_add_u32 s21, s21, s34")
        a("s_lshr_b32 s35, s32, 1")
        a("s_lshl_b32 s35, s35, 3")
        a("s_lshr_b32 s34, s33, 2")
        a("s_add_u32 s35, s35, s34")
    elif OPT["k1map"] == "2x16":
        a("s_lshr_b32 s21, s32, 1")
        a("s_lshl_b32 s21, s21, 1")
        a("s_and_b32 s34, s33, 1")
        a("s_add_u32 s21, s21, s34")
        a("s_and_b32 s35, s32, 1")
        a("s_lshl_b32 s35, s35, 4")
        a("s_lshr_b32 s34, s33, 1")
        a("s_add_u32 s35, s35, s34")
    elif OPT["k1map"] == "8x4":
        a("s_and_b32 s21, s33, 7")
        a("s_lshl_b32 s35, s32, 2")
        a("s_lshr_b32 s34, s33, 3")
        a("s_add_u32 s35, s35, s34")
    elif OPT["k1map"] == "1x32":
        a("s_mov_b32 s21, s32")
        a("s_mov_b32 s35, s33")
    if OPT["rot"]:
        ra, rj = {1: (3, 1), 2: (5, 2), 3: (5, 0), 4: (0, 1), 5: (5, 5)}[OPT["rot"]]
        a(f"s_mul_i32 s25, s21, {ra}")
        a(f"s_mul_i32 s23, s35, {rj}")
        a("s_add_u32 s25, s25, s23")
        a("s_mul_i32 s23, s25, 6554")
        a("s_lshr_b32 s23, s23, 16")
        a("s_mul_i32 s23, s23, 10")
        a("s_sub_u32 s25, s25, s23")
    else:
        a("s_mov_b32 s25, 0")
    a("s_and_b32 s31, s20, 3")
    a("s_lshr_b32 s27, s20, 2")
    a("s_lshl_b32 s32, s21, 3")
    a("s_add_u32 s32, s32, s20")
    a("s_mul_i32 s32, s32, 40960")
    a("s_lshl_b32 s26, s20, 12")
    a(f"s_add_u32 s26, s26, {XL_LDS}")
    a(f"v_lshrrev_b32 v{T}, 3, v{V_LANE}")
    a(f"v_mul_u32_u24 v{T}, 1280, v{T}")
    a(f"v_add_u32 v{T}, s32, v{T}")
    a(f"v_lshrrev_b32 v{T+1}, 4, v{V_LANE}")
    a(f"v_and_b32 v{T+2}, 7, v{V_LANE}")
    a(f"v_xor_b32 v{T+1}, v{T+1}, v{T+2}")
    a(f"v_lshl_add_u32 v{V_XD}, v{T+1}, 4, v{T}")
    a(f"v_xor_b32 v{T+1}, 4, v{T+1}")
    a(f"v_lshl_add_u32 v{V_XD+1}, v{T+1}, 4, v{T}")
    a(f"v_add_u32 v{V_XD+1}, 10240, v{V_XD+1}")
    a(f"v_add_u32 v{V_XD+2}, 20480, v{V_XD}")
    a(f"v_add_u32 v{V_XD+3}, 20480, v{V_XD+1}")
    a(f"v_and_b32 v{T+2}, 3, v{V_LANE}")
    a(f"v_lshlrev_b32 v{V_L16}, 4, v{V_LANE}")
    a("s_waitcnt lgkmcnt(0)")
    srd(a, 8, 4, 5, S * D * 2)
    srd(a, 16, 66, 67, WS_USED)
    srd(a, 44, 64, 65, 256)
    if OPT["stamp"]:
        srd(a, 92, 66, 67, WS_USED + 16 * 8192)
        stamp(a, 0, T + 8, T + 9)
    a("s_cmp_lt_u32 s35, 18")
    a("s_cbranch_scc1 L_k1_ffn")
    a("s_cmp_lt_u32 s35, 26")
    a("s_cbranch_scc1 L_k1_kv")
    a("s_cmp_lt_u32 s35, 30")
    a("s_cbranch_scc1 L_k1_q")
    a("s_sub_u32 s22, s35, 30")
    k1_spare(a)
    stamp(a, 1, V_U, V_U + 1)
    a("s_branch L_k1_end")

    def late_common(pitch):
        a(f"v_lshrrev_b32 v{T+3}, 4, v{V_LANE}")
        a(f"v_bfe_u32 v{T+4}, v{V_LANE}, 2, 2")
        a(f"v_lshl_add_u32 v{T+4}, v{T+3}, 3, v{T+4}")
        a(f"v_mul_u32_u24 v{T+4}, {pitch}, v{T+4}")
        a(f"v_and_b32 v{T+5}, 1, v{T+3}")
        a(f"v_lshlrev_b32 v{T+5}, 5, v{T+5}")
        a(f"v_bfe_u32 v{T+6}, v{V_LANE}, 1, 3")
        a(f"v_xor_b32 v{T+6}, v{T+6}, v{T+3}")
        a(f"v_and_b32 v{T+7}, 15, v{V_LANE}")
        a(f"v_lshlrev_b32 v{T+8}, 7, v{T+7}")
        a(f"v_lshl_add_u32 v{T+8}, v{T+6}, 4, v{T+8}")
        a("s_lshl_b32 s32, s31, 13")
        a(f"s_add_u32 s32, s32, {XL_LDS}")
        a(f"v_add_u32 v{V_XR}, s32, v{T+8}")
        a(f"v_xor_b32 v{T+8}, 64, v{T+8}")
        a(f"v_add_u32 v{V_XR+1}, s32, v{T+8}")
        a("s_lshl_b32 s32, s21, 2")
        a("s_add_u32 s32, s32, s31")
        a("s_lshl_b32 s49, s32, 8")
        a(f"s_add_u32 s49, s49, {ST_OFF}")
        a("s_add_u32 s50, s49, 8192")
        a("s_lshr_b32 s48, s32, 1")
        a("s_lshl_b32 s48, s48, 2")
    def rot_addr(dst, scol, width, extra=None):
        a(f"v_add_u32 v{T+9}, {scol}, v{T+5}")
        a(f"v_subrev_u32 v{T+10}, {width}, v{T+9}")
        a(f"v_min_u32 v{T+9}, v{T+9}, v{T+10}")
        a(f"v_lshl_add_u32 v{T+9}, v{T+2}, 3, v{T+9}")
        if extra:
            a(f"v_add3_u32 v{dst}, v{T+9}, v{T+4}, {extra}")
        else:
            a(f"v_add_u32 v{dst}, v{T+9}, v{T+4}")

    a.label("L_k1_ffn")
    a("s_mov_b32 s22, s35")
    a("s_cmp_lt_u32 s20, 4")
    a("s_cselect_b32 s12, s40, s42")
    a("s_cselect_b32 s13, s41, s43")
    a("s_cselect_b32 s28, 0, 12288")
    a("s_and_b32 s13, s13, 0xffff")
    a(f"s_mov_b32 s14, {D * F * 2}")
    a("s_mov_b32 s15, 0x20000")
    a("s_mul_i32 s33, s31, 3072")
    a("s_add_u32 s28, s28, s33")
    a("s_add_u32 s29, s28, 1024")
    a("s_add_u32 s30, s28, 2048")
    a("s_mul_i32 s33, s31, 192")
    a("s_mul_i32 s34, s22, 192")
    for i in range(3):
        a(f"s_add_u32 s38, s33, {64 * i}")
        a(f"v_add_u32 v{T}, s38, v{V_LANE}")
        a(f"v_mul_u32_u24 v{T+1}, 43691, v{T}")
        a(f"v_lshrrev_b32 v{T+1}, 19, v{T+1}")
        a(f"v_mul_u32_u24 v{T+3}, 12, v{T+1}")
        a(f"v_sub_u32 v{T+3}, v{T}, v{T+3}")
        a(f"v_bfe_u32 v{T+4}, v{T+1}, 3, 1")
        a(f"v_mul_u32_u24 v{T+4}, 10, v{T+4}")
        a(f"v_add_u32 v{T+3}, v{T+3}, v{T+4}")
        a(f"v_subrev_u32 v{T+4}, 12, v{T+3}")
        a(f"v_min_u32 v{T+3}, v{T+3}, v{T+4}")
        a(f"v_mul_u32_u24 v{T+1}, 3456, v{T+1}")
        a(f"v_lshl_add_u32 v{T+1}, v{T+3}, 4, v{T+1}")
        a(f"v_add_u32 v{V_D0+i}, s34, v{T+1}")
    def late_ffn():
        late_common(192)
        for p in range(3):
            a("s_cmp_eq_u32 s27, 0")
            a(f"s_cselect_b32 s32, {32 * p}, {32 * [4, 5, 3][p]}")
            rot_addr(V_R0 + p, "s32", 192)
            a("s_lshl_b32 s32, s32, 2")
            a(f"s_add_u32 s32, s32, {XL_LDS}")
            a(f"v_lshl_add_u32 v{V_CA + p}, v{T+3}, 4, s32")
        for i in range(3):
            a("s_mul_i32 s32, s20, 3")
            a(f"s_add_u32 s32, s32, {i}")
            a("s_and_b32 s33, s32, 1")
            a(f"s_mul_i32 s33, s33, {4 * 192}")
            a("s_lshr_b32 s32, s32, 1")
            a("s_cmp_ge_u32 s32, 6")
            a("s_cselect_b32 s34, 12288, 0")
            a("s_cselect_b32 s38, 6, 0")
            a("s_add_u32 s33, s33, s34")
            a("s_sub_u32 s32, s32, s38")
            a("s_lshl_b32 s32, s32, 5")
            rot_addr(V_RC + i, "s32", 192, "s33")
        a(f"v_lshlrev_b32 v{V_SA}, 2, v{T+7}")
        k1_store_offsets(a, HB_OFF, 54, 3, 2, 1)
    vq, lq = k1_mainloop(a, "ffn", "ffn", late_ffn, k1_pre_ffn(a))
    stamp(a, 1, V_U + 2, V_U + 3)
    k1_epi_ffn(a, vq, lq)
    a("s_branch L_k1_end")
    k1_spin(a, "ffn")

    def qkv_common(kind):
        srd(a, 12, 36, 37, D * 1920 * 2)
        a("s_lshl_b32 s28, s20, 10")
        a("s_add_u32 s29, s28, 8192")
        a("s_add_u32 s30, s28, 16384")
        a("s_lshl_b32 s33, s20, 6")
        if kind == "q":
            a("s_mul_i32 s34, s22, 320")
        else:
            a("s_mul_i32 s34, s22, 160")
            a("s_add_u32 s34, s34, 1280")
        for i in range(3):
            a(f"s_add_u32 s38, s33, {512 * i}")
            a(f"v_add_u32 v{T}, s38, v{V_LANE}")
            a(f"v_mul_u32_u24 v{T+1}, 52429, v{T}")
            a(f"v_lshrrev_b32 v{T+1}, 20, v{T+1}")
            a(f"v_mul_u32_u24 v{T+3}, 20, v{T+1}")
            a(f"v_sub_u32 v{T+3}, v{T}, v{T+3}")
            if kind == "kv":
                a(f"v_bfe_u32 v{T+4}, v{T+1}, 3, 1")
                a(f"v_mul_u32_u24 v{T+4}, 18, v{T+4}")
                a(f"v_add_u32 v{T+3}, v{T+3}, v{T+4}")
                a(f"v_subrev_u32 v{T+4}, 20, v{T+3}")
                a(f"v_min_u32 v{T+3}, v{T+3}, v{T+4}")
            a(f"v_mul_u32_u24 v{T+4}, 3840, v{T+1}")
            a(f"v_lshl_add_u32 v{T+4}, v{T+3}, 4, v{T+4}")
            if kind == "kv":
                a(f"v_cmp_lt_u32 vcc, 9, v{T+3}")
                a(f"v_add_u32 v{T+6}, {1280 - 160}, v{T+4}")
                a("s_nop 0")
                a(f"v_cndmask_b32 v{T+4}, v{T+4}, v{T+6}, vcc")
            a(f"v_add_u32 v{V_D0+i}, s34, v{T+4}")
            if i == 2:
                a(f"v_cmp_lt_u32 vcc, 63, v{T+1}")
                a(f"v_mov_b32 v{T+6}, {hex(OOB)}")
                a("s_nop 0")
                a(f"v_cndmask_b32 v{V_D0+i}, v{V_D0+i}, v{T+6}, vcc")
    def cs_half(i):
        a("s_mul_i32 s32, s20, 3")
        a(f"s_add_u32 s32, s32, {i}")
        a("s_and_b32 s33, s32, 1")
        a(f"s_mul_i32 s33, s33, {4 * 320}")
        a("s_lshr_b32 s32, s32, 1")
        a("s_min_u32 s32, s32, 9")

    a.label("L_k1_kv")
    a("s_sub_u32 s22, s35, 18")
    qkv_common("kv")
    def late_kv():
        late_common(320)
        a("s_mul_i32 s32, s27, 160")
        rot_addr(V_R0, "s32", 320)
        a("s_add_u32 s32, s32, 128")
        rot_addr(V_R0 + 1, "s32", 320)
        for i in range(3):
            cs_half(i)
            a("s_lshl_b32 s32, s32, 5")
            rot_addr(V_RC + i, "s32", 320, "s33")
        a("s_mul_i32 s32, s27, 640")
        a(f"s_add_u32 s32, s32, {XL_LDS}")
        a(f"v_lshl_add_u32 v{V_CA}, v{T+7}, 2, s32")
        a(f"v_lshlrev_b32 v{V_SA}, 4, v{T+3}")
        k1_kv_jobs(a, T)
    vq, lq = k1_mainloop(a, "kv", "kv", late_kv, k1_pre_kv(a))
    stamp(a, 1, V_U + 2, V_U + 3)
    k1_epi_kv(a, vq, lq)
    a("s_branch L_k1_end")
    k1_spin(a, "kv")

    a.label("L_k1_q")
    a("s_sub_u32 s22, s35, 26")
    qkv_common("q")
    def late_q():
        late_common(320)
        a(f"v_mul_u32_u24 v{T+9}, 80, v{T+2}")
        a(f"v_add_u32 v{T+9}, v{T+9}, v{T+4}")
        a("s_mul_i32 s32, s27, 6")
        a("s_add_u32 s33, s27, 4")
        for k, sr in enumerate(("s32", "s33")):
            a(f"s_lshl_b32 s34, {sr}, 3")
            a(f"v_add_u32 v{V_R0 + k}, s34, v{T+9}")
            a(f"s_lshl_b32 s34, {sr}, 7")
            a(f"s_add_u32 s34, s34, {XL_LDS}")
            a(f"v_lshl_add_u32 v{V_CA + k}, v{T+3}, 4, s34")
        for i in range(3):
            cs_half(i)
            a("s_lshl_b32 s32, s32, 3")
            a("s_add_u32 s32, s32, s33")
            a(f"v_add_u32 v{V_RC + i}, s32, v{T+9}")
        a(f"v_lshlrev_b32 v{V_SA}, 2, v{T+7}")
        k1_store_offsets(a, PQ_OFF, 20, 5, 3, 2)
    vq, lq = k1_mainloop(a, "q", "q", late_q, k1_pre_q(a))
    stamp(a, 1, V_U + 2, V_U + 3)
    k1_epi_q(a, vq, lq)
    a.label("L_k1_end")
    if OPT["stamp"]:
        tick(a, 6)
        a("s_waitcnt vmcnt(0)")
        stamp(a, 2, V_U + 2, V_U + 3)
        tick_dump(a, 3, 0, V_U + 2, V_U + 3, "k1")
    a.label("L_k1_exit")
    a("s_endpgm")
    k1_spin(a, "q")

K2_LDS = 163840
W_LANE, W_L16, W_L16B, W_T = 1, 2, 3, 4
W_PRE = 23
W_X = 24
H_ACC = 176
H_RING = 32
S_PQ, S_M, S_Z, S_ACC = 32, 112, 212, 232
FLAG_LDS = 163840 - 16

def k2_producer(a):
    T = W_T
    PB, PW = 112, 180
    SCR = 81920
    a(f"v_cmp_gt_u32 vcc, 56, v{W_LANE}")
    a(f"v_add_u32 v{T+3}, 1024, v{W_L16}")
    a(f"v_mov_b32 v{T+4}, {hex(OOB)}")
    a("s_mul_i32 s32, s21, 1920")
    a(f"s_add_u32 s32, s32, {KVP_OFF}")
    a(f"v_cndmask_b32 v{T+3}, v{T+4}, v{T+3}, vcc")
    for p in range(8):
        a(f"buffer_load_dwordx4 {vr(PB + 8 * p, 4)}, v{W_L16}, s[16:19], s32 offen")
        a(f"buffer_load_dwordx4 {vr(PB + 8 * p + 4, 4)}, v{T+3}, s[16:19], s32 offen")
        if p < 7:
            a(f"s_add_u32 s32, s32, {32 * 1920}")
    a("s_lshl_b32 s32, s21, 3")
    a("s_add_u32 s32, s32, s22")
    a("s_mul_i32 s32, s32, 5120")
    a(f"s_add_u32 s32, s32, {WOF_OFF}")
    for nb in range(5):
        if nb < 4:
            a(f"buffer_load_dwordx4 {vr(PW + 4 * nb, 4)}, v{W_L16}, s[16:19], s32 offen offset:{nb * 1024}")
        else:
            a(f"buffer_load_dwordx4 {vr(PW + 4 * nb, 4)}, v{W_L16B}, s[16:19], s32 offen")

def k2_producer2(a):
    T = W_T
    PB, PW = 112, 180
    SCR = 81920
    a(f"v_and_b32 v{T}, 15, v{W_LANE}")
    a(f"v_lshrrev_b32 v{T+1}, 4, v{W_LANE}")
    a(f"v_cmp_eq_u32 vcc, 2, v{T+1}")
    a(f"v_mov_b32 v{PW+20}, 0")
    a(f"v_mov_b32 v{PW+21}, 0")
    a(f"v_mov_b32 v{PW+23}, 0")
    a(f"v_mov_b32 v{T+5}, 0x3f80")
    a(f"v_cndmask_b32 v{PW+22}, 0, v{T+5}, vcc")
    a("s_lshr_b32 s33, s21, 3")
    a("s_bfe_u32 s34, s21, 0x20001")
    a("s_and_b32 s35, s21, 1")
    a("s_mul_i32 s35, s35, 20")
    a("s_mul_i32 s38, s22, 20")
    a("s_mul_i32 s39, s33, 5")
    a("s_add_u32 s38, s38, s39")
    a("s_mul_i32 s40, s38, 5120")
    a("s_lshl_b32 s41, s34, 8")
    a("s_add_u32 s40, s40, s41")
    a(f"s_add_u32 s40, s40, {MF_OFF}")
    a("s_lshl_b32 s42, s38, 6")
    a("s_lshl_b32 s41, s34, 4")
    a("s_add_u32 s42, s42, s41")
    a(f"s_add_u32 s42, s42, {ZF_OFF}")
    for tl in range(2):
        a(f"v_lshlrev_b32 v{T+6}, 2, v{T+1}")
        a(f"v_add_u32 v{T+6}, s35, v{T+6}")
        if tl:
            a(f"v_add_u32 v{T+6}, 16, v{T+6}")
        a(f"v_lshrrev_b32 v{T+7}, 3, v{T+6}")
        a(f"v_bfe_u32 v{T+8}, v{T+6}, 2, 1")
        a(f"v_lshlrev_b32 v{T+8}, 3, v{T+8}")
        a(f"v_mul_u32_u24 v{T+9}, 5120, v{T+7}")
        a(f"v_lshl_add_u32 v{T+9}, v{T}, 4, v{T+9}")
        a(f"v_cmp_eq_u32 vcc, 0, v{T}")
        a(f"v_add3_u32 v{T+10+tl}, v{T+9}, v{T+8}, s40")
        a(f"v_lshl_add_u32 v{T+9}, v{T+7}, 6, v{T+8}")
        a(f"v_add_u32 v{T+12+tl}, s42, v{T+9}")
        a(f"v_cndmask_b32 v{T+12+tl}, v{T+4}, v{T+12+tl}, vcc")
        if tl:
            a(f"v_cmp_eq_u32 vcc, 0, v{T+1}")
            a("s_nop 1")
            a(f"v_cndmask_b32 v{T+10+tl}, v{T+4}, v{T+10+tl}, vcc")
            a(f"v_cndmask_b32 v{T+12+tl}, v{T+4}, v{T+12+tl}, vcc")
    a(f"v_lshlrev_b32 v{T+14}, 3, v{W_LANE}")
    a(f"v_add_u32 v{T+14}, {SCR}, v{T+14}")
    a(f"v_mul_u32_u24 v{T+15}, 40, v{T+1}")
    a(f"v_add_u32 v{T+15}, v{T+15}, v{T}")
    a(f"v_add_u32 v{T+16}, 16, v{T+15}")
    a(f"v_mov_b32 v{T+17}, 120")
    a(f"v_cmp_gt_u32 vcc, 3, v{T+1}")
    a("s_lshl_b32 s32, s22, 7")
    a("s_lshl_b32 s33, s21, 2")
    a(f"v_cndmask_b32 v{T+15}, v{T+17}, v{T+15}, vcc")
    a(f"v_cndmask_b32 v{T+16}, v{T+17}, v{T+16}, vcc")
    a(f"v_cndmask_b32 v{T+18}, 0, 20, vcc")
    a(f"v_cmp_gt_u32 vcc, 4, v{T}")
    a("s_add_u32 s32, s32, s33")
    a(f"s_add_u32 s32, s32, {FL_OFF}")
    a(f"v_cndmask_b32 v{T+16}, v{T+17}, v{T+16}, vcc")
    a(f"v_cndmask_b32 v{T+17}, 0, v{T+18}, vcc")
    a(f"v_add_u32 v{T+18}, v{T+18}, v{T+15}")
    a(f"v_add_u32 v{T+17}, v{T+17}, v{T+16}")
    for r in (15, 16, 17, 18):
        a(f"v_lshlrev_b32 v{T+r}, 3, v{T+r}")
        a(f"v_add_u32 v{T+r}, {SCR}, v{T+r}")
    for p in range(1, 8):
        a(f"s_waitcnt vmcnt({5 + 2 * (7 - p) + NPRE_S})")
        for r in range(0, 8, 2):
            a(pk("add", PB + r, PB + r, PB + 8 * p + r))
    for r in range(4):
        a(f"v_cvt_pk_bf16_f32 v{PB+8+r}, v{PB+2*r}, v{PB+2*r+1}")
    a(f"ds_write_b64 v{T+14}, {vr(PB + 8, 2)}")
    a(f"ds_write_b64 v{T+14}, {vr(PB + 10, 2)} offset:512")
    a("s_waitcnt lgkmcnt(0)")
    AF = PB + 16
    a(f"ds_read_b64 {vr(AF, 2)}, v{T+15}")
    a(f"ds_read_b64 {vr(AF + 2, 2)}, v{T+18}")
    a(f"ds_read_b64 {vr(AF + 4, 2)}, v{T+16}")
    a(f"ds_read_b64 {vr(AF + 6, 2)}, v{T+17}")
    a(f"s_waitcnt vmcnt({NPRE_S}) lgkmcnt(0)")
    DD = 204 - 48 + 48
    for nb in range(6):
        for tl in range(2):
            a(f"v_mfma_f32_16x16x32_bf16 {vr(DD + 8 * nb + 4 * tl, 4)}, {vr(AF + 4 * tl, 4)}, {vr(PW + 4 * nb, 4)}, 0")
    a("s_mov_b32 s43, 4096")
    a(f"v_mov_b32 v{T+5}, 1")
    for nb in range(6):
        for tl in range(2):
            d = DD + 8 * nb + 4 * tl
            a(f"v_cvt_pk_bf16_f32 v{d}, v{d}, v{d+1}")
            a(f"v_cvt_pk_bf16_f32 v{d+1}, v{d+2}, v{d+3}")
            if nb < 4:
                a(f"buffer_store_dwordx2 {vr(d, 2)}, v{T+10+tl}, s[16:19], 0 offen offset:{nb * 1024} sc1")
            elif nb == 4:
                a(f"buffer_store_dwordx2 {vr(d, 2)}, v{T+10+tl}, s[16:19], s43 offen sc1")
            else:
                a(f"buffer_store_dwordx2 {vr(d, 2)}, v{T+12+tl}, s[16:19], 0 offen sc1")
    if OPT["k2_hold"] and OPT["k2_early"]: a("s_barrier")
    tick(a, 7)
    a("s_waitcnt vmcnt(0)")
    a(f"buffer_store_dword v{T+5}, off, s[16:19], s32 sc1")

NPRE_S = 20

def gen_k2(a):
    T = W_T
    a.raw(".globl k2_kernel\n.p2align 8\n.type k2_kernel,@function")
    a.label("k2_kernel")
    a("s_cmp_ge_u32 s2, 256")
    a("s_cbranch_scc1 L_k2_end")
    a("s_load_dwordx2 s[4:5], s[0:1], 0")
    a("s_load_dwordx2 s[6:7], s[0:1], 72")
    a("s_load_dwordx2 s[36:37], s[0:1], 56")
    a(f"v_and_b32 v{W_LANE}, 63, v0")
    a(f"v_lshrrev_b32 v{T}, 6, v0")
    a(f"v_lshlrev_b32 v{W_L16}, 4, v{W_LANE}")
    a(f"v_readfirstlane_b32 s20, v{T}")
    a(f"v_add_u32 v{W_L16B}, 4096, v{W_L16}")
    if OPT["prefetch_code"]:
        a("s_getpc_b64 s[62:63]")
        a(f"v_lshlrev_b32 v{T+1}, 7, v0")
        a(f"v_min_u32 v{T+1}, L_code_end-k2_kernel-256, v{T+1}")
        a(f"global_load_dword v{W_PRE}, v{T+1}, s[62:63]")
    a("s_and_b32 s32, s2, 7")
    a("s_lshr_b32 s33, s2, 3")
    if OPT["k2map"] == "8x4":
        a("s_lshr_b32 s21, s32, 1")
        a("s_lshl_b32 s21, s21, 3")
        a("s_and_b32 s34, s33, 7")
        a("s_add_u32 s21, s21, s34")
        a("s_and_b32 s22, s32, 1")
        a("s_lshl_b32 s22, s22, 2")
        a("s_lshr_b32 s34, s33, 3")
        a("s_add_u32 s22, s22, s34")
    elif OPT["k2map"] == "4x8":
        a("s_lshl_b32 s21, s32, 2")
        a("s_and_b32 s34, s33, 3")
        a("s_add_u32 s21, s21, s34")
        a("s_lshr_b32 s22, s33, 2")
    a("s_and_b32 s27, s20, 3")
    a("s_waitcnt lgkmcnt(0)")
    srd(a, 16, 6, 7, WS_USED)
    if OPT["stamp"]:
        srd(a, 92, 6, 7, WS_USED + 16 * 8192)
        stamp(a, 4, T + 16, T + 17)
    def setup(ntile, tile0):
        srd(a, 8, 4, 5, S * D * 2)
        srd(a, 12, 36, 37, S * D * 2)
        a("s_lshl_b32 s33, s21, 2")
        a("s_add_u32 s33, s33, s27")
        a("s_mul_i32 s33, s33, 20480")
        a("s_mul_i32 s34, s22, 160")
        a("s_add_u32 s33, s33, s34")
        a(f"s_add_u32 s33, s33, {32 * tile0}")
        a(f"v_lshrrev_b32 v{T+3}, 2, v{W_LANE}")
        a(f"v_and_b32 v{T+4}, 3, v{W_LANE}")
        a(f"v_mul_u32_u24 v{T}, 1280, v{T+3}")
        a(f"v_lshl_add_u32 v{T}, v{T+4}, 3, v{T}")
        a(f"v_add_u32 v{T}, s33, v{T}")
        a(f"v_bfe_u32 v{T+5}, v{T+3}, 1, 2")
        a(f"v_xor_b32 v{T+5}, v{T+5}, v{T+4}")
        a(f"v_lshl_add_u32 v{T+5}, v{T+3}, 2, v{T+5}")
        a("s_mul_i32 s33, s27, 5120")
        a(f"s_add_u32 s33, s33, {1024 * tile0}")
        a(f"v_lshl_add_u32 v{T+2}, v{T+5}, 4, s33")
        a(f"v_and_b32 v{T+3}, 15, v{W_LANE}")
        a(f"v_lshrrev_b32 v{T+4}, 4, v{W_LANE}")
        a(f"v_bfe_u32 v{T+5}, v{T+3}, 1, 2")
        a(f"v_xor_b32 v{T+5}, v{T+5}, v{T+4}")
        a(f"v_lshl_add_u32 v{T+5}, v{T+3}, 2, v{T+5}")
        a("s_mul_i32 s33, s20, 20480")
        a(f"v_lshl_add_u32 v{T+1}, v{T+5}, 4, s33")
    def final(ntile, vq, tag):
        N = 32
        RD = 64
        XE = 140
        nv = 4 * ntile
        vq.wait("x")
        for i in range(2 * ntile):
            a(f"v_lshlrev_b32 v{XE + 2 * i}, 16, v{W_X + i}")
            a(f"v_and_b32 v{XE + 2 * i + 1}, 0xffff0000, v{W_X + i}")
        a(f"v_mov_b32 v{T+10}, {hex(LOG2E | 0x80000000)}")
        a(f"v_mov_b32 v{T+12}, 1.0")
        a(f"v_add_u32 v{T+3}, 61440, v{T+2}")
        a(f"v_add_u32 v{T+4}, 122880, v{T+2}")
        a("s_waitcnt lgkmcnt(0)")
        a("s_barrier")
        tick(a, 5)
        lq = LQ(a)
        def dst(src, t):
            if src == 0: return N + 4 * t
            if src == 4: return N + nv + 4 * t
            return RD + (src - 1 - (src > 4)) * nv + 4 * t
        for src in range(8):
            av, off = [(T + 2, 0), (T + 3, 61440), (T + 4, 122880)][src // 3]
            for t in range(ntile):
                lq.issue(f"p{src}", f"ds_read_b128 {vr(dst(src, t), 4)}, v{av} offset:{src * 20480 - off + t * 1024}")
        E = 176
        for src in (1, 2, 3):
            lq.wait("p0", f"p{src}")
            for i in range(0, nv, 2):
                a(pk("add", N + i, N + i, dst(src, 0) + i))
        for i in range(0, nv, 2):
            a(pk("mul", E + i, N + i, T + 10, bc=(1,)))
        for i in range(nv):
            a(f"v_exp_f32 v{E + i}, v{E + i}")
        for src in (5, 6, 7):
            lq.wait("p4", f"p{src}")
            for i in range(0, nv, 2):
                a(pk("add", N + nv + i, N + nv + i, dst(src, 0) + i))
        for i in range(0, nv, 2):
            a(pk("add", E + i, E + i, T + 12, bc=(1,)))
            a(pk("mul", N + i, N + i, N + nv + i))
        for i in range(nv):
            a(f"v_rcp_f32 v{E + i}, v{E + i}")
        a("s_nop 0")
        for i in range(0, nv, 2):
            a(pk("fma", XE + i, N + i, E + i, XE + i))
        for t in range(ntile):
            a(f"v_cvt_pk_bf16_f32 v{N + 2 * t}, v{XE + 4 * t}, v{XE + 4 * t + 1}")
            a(f"v_cvt_pk_bf16_f32 v{N + 2 * t + 1}, v{XE + 4 * t + 2}, v{XE + 4 * t + 3}")
            a(f"buffer_store_dwordx2 {vr(N + 2 * t, 2)}, v{T}, s[12:15], 0 offen offset:{t * 32}")
        if OPT["stamp"]:
            tick(a, 6)
            a("s_waitcnt vmcnt(0)")
            stamp(a, 5, T + 16, T + 17)
            tick_dump(a, 6 if tag == "h" else 7, 0 if tag == "h" else 4, T + 16, T + 17, "k2" + tag)
            if OPT["dbgout"] and tag == "h":
                a(f"s_cmp_lg_u32 s2, {OPT['dbgout'] - 1}")
                a("s_cbranch_scc1 L_k2_nodbg")
                a("s_cmp_lg_u32 s20, 0")
                a("s_cbranch_scc1 L_k2_nodbg")
                a("s_load_dwordx2 s[64:65], s[0:1], 64")
                a("s_waitcnt vmcnt(0) lgkmcnt(0)")
                srd(a, 44, 64, 65, 256)
                a(f"v_lshlrev_b32 v{T+16}, 13, v{W_LANE}")
                a("s_lshl_b32 s98, s2, 5")
                a(f"s_add_u32 s98, s98, {WS_USED}")
                a(f"buffer_load_dword v{T+17}, v{T+16}, s[92:95], s98 offen sc1")
                a(f"v_lshlrev_b32 v{T+16}, 2, v{W_LANE}")
                a("s_waitcnt vmcnt(0)")
                a(f"buffer_store_dword v{T+17}, v{T+16}, s[44:47], 0 offen")
                a("s_waitcnt vmcnt(0)")
                a.label("L_k2_nodbg")
    def xloads(vq, ntile):
        for t in range(ntile):
            vq.issue("x", f"buffer_load_dwordx2 {vr(W_X + 2 * t, 2)}, v{T}, s[8:11], 0 offen offset:{t * 32}")

    a("s_cmp_ge_u32 s20, 4")
    a("s_cbranch_scc1 L_k2_s")
    vq = VQ(a)
    RH, NK = OPT["k2_ring"], 14
    a("s_mul_i32 s32, s27, 14")
    a("s_cmp_eq_u32 s27, 3")
    a("s_cselect_b32 s32, 41, s32")
    a("s_mul_i32 s23, s21, 54")
    a("s_add_u32 s23, s23, s32")
    a("s_lshl_b32 s23, s23, 12")
    a("s_mul_i32 s24, s22, 54")
    a("s_add_u32 s24, s24, s32")
    a("s_mul_i32 s24, s24, 5120")
    a(f"s_add_u32 s24, s24, {W2F_OFF}")
    def ring_loads(k):
        R = H_RING + 36 * (k % RH)
        if k == NK - 1:
            a("s_cmp_ge_u32 s27, 2")
            a(f"s_cselect_b32 s23, {OOB}, s23")
            a(f"s_cselect_b32 s24, {OOB}, s24")
        for rb in range(4):
            vq.issue(f"R{k}", f"buffer_load_dwordx4 {vr(R + 4 * rb, 4)}, v{W_L16}, s[16:19], s23 offen offset:{rb * 1024}")
        for nb in range(5):
            if nb < 4:
                vq.issue(f"R{k}", f"buffer_load_dwordx4 {vr(R + 16 + 4 * nb, 4)}, v{W_L16}, s[16:19], s24 offen offset:{nb * 1024}")
            else:
                vq.issue(f"R{k}", f"buffer_load_dwordx4 {vr(R + 16 + 4 * nb, 4)}, v{W_L16B}, s[16:19], s24 offen")
        a("s_add_u32 s23, s23, 4096")
        a("s_add_u32 s24, s24, 5120")
    init = min(OPT["k2_init"], RH)
    ring_loads(0)
    setup(3, 0)
    a("s_barrier")
    for k in range(1, init): ring_loads(k)
    issued = init
    HK = OPT["k2_hold"]
    for k in range(NK):
        if HK and k == HK - 1 + 1 - 1 and HK == 1: pass
        if k in (0, 4, 8, 12): tick(a, k // 4)
        vq.wait(f"R{k}")
        R = H_RING + 36 * (k % RH)
        for rb in range(4):
            for nb in range(5):
                acc = vr(H_ACC + 20 * rb + 4 * nb, 4)
                a(f"v_mfma_f32_16x16x32_bf16 {acc}, {vr(R + 16 + 4 * nb, 4)}, {vr(R + 4 * rb, 4)}, {'0' if k == 0 else acc}")
            if k == NK - 1 and rb > 0:
                for nb in range(5):
                    a(f"ds_write_b128 v{T+1}, {vr(H_ACC + 20 * (rb - 1) + 4 * nb, 4)} offset:{(rb - 1) * 5120 + nb * 1024}")
        n = 0
        if HK and k == HK - 1:
            a("s_barrier")
        depth = init if (HK and k < HK - 1) else RH
        while issued < NK and issued <= k + depth and n < (RH if HK and k == HK - 1 else 2):
            ring_loads(issued); issued += 1; n += 1
        if k == 8: xloads(vq, 3)
    tick(a, 4)
    a("s_nop 3")
    for nb in range(5):
        a(f"ds_write_b128 v{T+1}, {vr(H_ACC + 60 + 4 * nb, 4)} offset:{3 * 5120 + nb * 1024}")
    final(3, vq, "h")
    a.label("L_k2_end")
    a("s_endpgm")

    def s_offsets():
        a("s_mul_i32 s33, s27, 5")
        a("s_mul_i32 s25, s21, 20")
        a("s_add_u32 s25, s25, s33")
        a("s_lshl_b32 s25, s25, 12")
        a(f"s_add_u32 s25, s25, {PQ_OFF}")
        a("s_mul_i32 s26, s22, 20")
        a("s_add_u32 s26, s26, s33")
        a("s_lshl_b32 s28, s26, 6")
        a(f"s_add_u32 s28, s28, {ZF_OFF}")
        a("s_mul_i32 s26, s26, 5120")
        a(f"s_add_u32 s26, s26, {MF_OFF}")
        a("s_lshl_b32 s30, s22, 7")
        a(f"s_add_u32 s30, s30, {FL_OFF}")
    def pq_loads(vq):
        for u in range(5):
            for rb in range(4):
                vq.issue("pq", f"buffer_load_dwordx4 {vr(S_PQ + 20 * rb + 4 * u, 4)}, v{W_L16}, s[16:19], s25 offen offset:{rb * 1024}")
            a("s_add_u32 s25, s25, 4096")
    a.label("L_k2_s")
    vq = VQ(a)
    a("s_cmp_lg_u32 s20, 4")
    a("s_cbranch_scc1 L_k2_s1")
    if OPT["k2_noprod"]: a("s_branch L_k2_s1")
    a("s_setprio 3")
    k2_producer(a)
    s_offsets()
    pq_loads(VQ(a))
    a(f"v_mov_b32 v{T+6}, {FLAG_LDS}")
    a(f"v_mov_b32 v{T+7}, 0")
    a(f"ds_write_b32 v{T+6}, v{T+7}")
    a("s_waitcnt lgkmcnt(0)")
    a("s_barrier")
    k2_producer2(a)
    tick(a, 0)
    a("s_branch L_k2_s2")
    a.label("L_k2_s1")
    if OPT["k2_sp_early"]: a(f"s_setprio {OPT['k2_sprio']}")
    a("s_barrier")
    s_offsets()
    if OPT["k2_hold"] and OPT["k2_early"]: a("s_barrier")
    pq_loads(vq)
    a.label("L_k2_s2")
    if OPT["k2_hold"] and not OPT["k2_early"]: a("s_barrier")
    if OPT["k2_sprio"]: a(f"s_setprio {OPT['k2_sprio']}")
    setup(2, 3)
    xloads(vq, 2)
    a(f"v_lshrrev_b32 v{T+8}, 4, v{W_LANE}")
    a(f"v_lshlrev_b32 v{T+8}, 4, v{T+8}")
    a(f"v_mov_b32 v{T+6}, {FLAG_LDS}")
    a("s_mov_b32 s29, 0")
    if OPT["k2_noprod"]: a("s_branch L_k2_go")
    a("s_cmp_lg_u32 s20, 4")
    a("s_cbranch_scc1 L_k2_wl")
    a(f"v_and_b32 v{T+9}, 31, v{W_LANE}")
    a(f"v_lshlrev_b32 v{T+9}, 2, v{T+9}")
    a.label("L_k2_poll")
    a(f"buffer_load_dword v{T+7}, v{T+9}, s[16:19], s30 offen sc1")
    a("s_add_u32 s29, s29, 1")
    a("s_cmp_ge_u32 s29, 200000")
    a("s_waitcnt vmcnt(0)")
    a("s_cbranch_scc1 L_k2_rel")
    a(f"v_cmp_ne_u32 vcc, 1, v{T+7}")
    a("s_cbranch_vccz L_k2_rel")
    a(f"s_sleep {OPT['k2_sleep']}")
    a("s_branch L_k2_poll")
    a.label("L_k2_rel")
    a(f"v_mov_b32 v{T+7}, 1")
    a(f"ds_write_b32 v{T+6}, v{T+7}")
    a(f"s_setprio {OPT['k2_sprio']}")
    a("s_branch L_k2_go")
    a.label("L_k2_wl")
    a("s_sleep 2")
    a(f"ds_read_b32 v{T+7}, v{T+6}")
    a("s_add_u32 s29, s29, 1")
    a("s_cmp_ge_u32 s29, 400000")
    a("s_waitcnt lgkmcnt(0)")
    a("s_cbranch_scc1 L_k2_go")
    a(f"v_cmp_ne_u32 vcc, 1, v{T+7}")
    a("s_cbranch_vccnz L_k2_wl")
    a.label("L_k2_go")
    tick(a, 1)
    for u in range(5):
        vq.issue("z", f"buffer_load_dwordx4 {vr(S_Z + 4 * u, 4)}, v{T+8}, s[16:19], s28 offen offset:{u * 64} sc1")
    for u in range(5):
        for nb in range(5):
            if nb < 4:
                vq.issue(f"M{u}", f"buffer_load_dwordx4 {vr(S_M + 20 * u + 4 * nb, 4)}, v{W_L16}, s[16:19], s26 offen offset:{nb * 1024} sc1")
            else:
                vq.issue(f"M{u}", f"buffer_load_dwordx4 {vr(S_M + 20 * u + 4 * nb, 4)}, v{W_L16B}, s[16:19], s26 offen sc1")
        a("s_add_u32 s26, s26, 5120")
    N = T + 10
    def norm(rb):
        P = S_PQ + 20 * rb
        for hd in range(2):
            a(f"v_mov_b32 v{N + 2 * hd}, {hex(EPS6)}")
            a(f"v_mov_b32 v{N + 2 * hd + 1}, 0")
        for i in range(10):
            for hd in range(2):
                dn = N + 2 * hd + (i & 1)
                a(f"v_dot2_f32_bf16 v{dn}, v{P + 10 * hd + i}, v{S_Z + 10 * hd + i}, v{dn}")
        a("s_nop 2")
        for hd in range(2):
            a(f"v_add_f32 v{N + 2 * hd}, v{N + 2 * hd}, v{N + 2 * hd + 1}")
        for hd in range(2):
            a(f"v_rcp_f32 v{N + 2 * hd}, v{N + 2 * hd}")
        E = S_ACC
        for i0 in range(0, 20, 10):
            for i in range(i0, i0 + 10):
                e = E + 2 * (i % 10)
                a(f"v_lshlrev_b32 v{e}, 16, v{P + i}")
                a(f"v_and_b32 v{e + 1}, 0xffff0000, v{P + i}")
            for i in range(i0, i0 + 10):
                e = E + 2 * (i % 10)
                a(pk("mul", e, e, N + 2 * (i // 10), bc=(1,)))
            for i in range(i0, i0 + 10):
                e = E + 2 * (i % 10)
                a(f"v_cvt_pk_bf16_f32 v{P + i}, v{e}, v{e + 1}")
    vq.wait("pq", "z")
    tick(a, 2)
    for rb in range(4): norm(rb)
    tick(a, 3)
    for rb in range(4):
        AC = S_ACC if rb % 2 == 0 else S_Z
        for u in range(5):
            vq.wait(f"M{u}")
            if rb == 0 and u == 0: a("s_nop 0")
            if rb >= 2 and u == 0: a("s_waitcnt lgkmcnt(0)")
            for nb in range(5):
                acc = vr(AC + 4 * nb, 4)
                a(f"v_mfma_f32_16x16x32_bf16 {acc}, {vr(S_M + 20 * u + 4 * nb, 4)}, {vr(S_PQ + 20 * rb + 4 * u, 4)}, {'0' if u == 0 else acc}")
            if rb > 0 and u == 1:
                PA = S_ACC if (rb - 1) % 2 == 0 else S_Z
                for nb in range(5):
                    a(f"ds_write_b128 v{T+1}, {vr(PA + 4 * nb, 4)} offset:{(rb - 1) * 5120 + nb * 1024}")
    a("s_nop 7")
    for nb in range(5):
        a(f"ds_write_b128 v{T+1}, {vr(S_Z + 4 * nb, 4)} offset:{3 * 5120 + nb * 1024}")
    tick(a, 4)
    final(2, vq, "s")
    a("s_endpgm")

def kd(name, vgpr, accum, sgpr=102):
    return f""".amdhsa_kernel {name}
  .amdhsa_next_free_vgpr {vgpr}
  .amdhsa_next_free_sgpr {sgpr}
  .amdhsa_accum_offset {accum}
  .amdhsa_group_segment_fixed_size 0
  .amdhsa_kernarg_size 80
  .amdhsa_user_sgpr_count 2
  .amdhsa_user_sgpr_kernarg_segment_ptr 1
  .amdhsa_system_sgpr_workgroup_id_x 1
.end_amdhsa_kernel"""

def main():
    a = Asm()
    a.raw(f"; @launch kernel=k1_kernel grid=(256,1,1) block=(512,1,1) lds={K1_LDS}")
    a.raw(f"; @launch kernel=k2_kernel grid=(256,1,1) block=(512,1,1) lds={K2_LDS}")
    if OPT["k2_twice"]:
        a.raw(f"; @launch kernel=k2_kernel grid=(256,1,1) block=(512,1,1) lds={K2_LDS}")
    a.raw('.amdgcn_target "amdgcn-amd-amdhsa--gfx950"')
    a.raw(".text")
    gen_k1(a)
    gen_k2(a)
    a.label("L_code_end")
    a("s_endpgm")
    a.raw('.section .rodata,"a"')
    a.raw(".p2align 6")
    a.raw(kd("k1_kernel", 256, 256))
    a.raw(".p2align 6")
    a.raw(kd("k2_kernel", 256, 256))
    open(sys.argv[1], "w").write(a.text())

if __name__ == "__main__":
    main()
```
